```python
import torch

def _softmax(x, axis=-1):
    return torch.softmax(x, dim=axis)
def _gelu(x):
    return torch.nn.functional.gelu(x, approximate="tanh")
def _silu(x):
    return torch.nn.functional.silu(x)
def _sigmoid(x):
    return torch.sigmoid(x)
def _layernorm(x, axis=-1, eps=1e-5):
    m = x.mean(dim=axis, keepdim=True)
    v = x.var(dim=axis, keepdim=True, unbiased=False)
    return (x - m) / torch.sqrt(v + eps)
def _scatter_add(tgt, idx, src, axis=0):
    return tgt.clone().index_add_(axis, idx, src)
def _segment_sum(src, seg, n):
    out = torch.zeros((n,) + src.shape[1:], dtype=src.dtype)
    return out.index_add_(0, seg, src)
def _pad(x, pw):
    flat = tuple(v for pair in reversed(pw) for v in pair)
    return torch.nn.functional.pad(x, flat)

kernel_name = 'standalone__detection_seg_mask2former__vision'

def setup_inputs():

    _w = (lambda a: (lambda t: t.to(torch.bfloat16) if t.is_floating_point() else t)(torch.as_tensor(a)))
    H = W = 256
    C = 384
    Hc, Wc = H // 2, W // 2
    nh = 4
    Nq = 16
    sc = C ** -0.5
    return {
        "q": _w((lambda *s: torch.randn(*s, dtype=torch.bfloat16) * 0.2)(1, Nq, C)),
        "f_hi": _w((lambda *s: torch.randn(*s, dtype=torch.bfloat16) * 0.2)(1, H, W, C)),
        "f_lo": _w((lambda *s: torch.randn(*s, dtype=torch.bfloat16) * 0.4)(1, Hc, Wc, C)),
        "w_lat": _w((lambda *s: torch.randn(*s, dtype=torch.bfloat16) * 0.4)(C, C) * sc),
        "w_q": _w((lambda *s: torch.randn(*s, dtype=torch.bfloat16) * 3.2)(nh, C, C // nh) * sc),
        "w_k": _w((lambda *s: torch.randn(*s, dtype=torch.bfloat16) * 3.2)(nh, C, C // nh) * sc),
        "w_v": _w((lambda *s: torch.randn(*s, dtype=torch.bfloat16) * 3.2)(nh, C, C // nh) * sc),
        "w_o": _w((lambda *s: torch.randn(*s, dtype=torch.bfloat16) * 3.2)(C, C) * sc),
        "w_m": _w((lambda *s: torch.randn(*s, dtype=torch.bfloat16) * 1.6)(C, C) * sc),
    }

def reference(q, f_hi, f_lo, w_lat, w_q, w_k, w_v, w_o, w_m):
    B, Nq, C = q.shape
    _, H, W, _ = f_hi.shape
    nh = w_q.shape[0]
    dh = C // nh
    up = (lambda x, n, axis: torch.repeat_interleave(x, n, dim=axis))((lambda x, n, axis: torch.repeat_interleave(x, n, dim=axis))(f_lo, 2, axis=1), 2, axis=2)
    feat = f_hi + up @ w_lat
    feat = _layernorm(feat, axis=-1)
    kv = feat.reshape(B, H * W, C)
    m_embed = q @ w_m
    mask_bias = torch.einsum('bqc,bkc->bqk', m_embed, kv) * (C ** -0.5)
    Q = torch.einsum('bqc,hcd->bhqd', q, w_q)
    K = torch.einsum('bkc,hcd->bhkd', kv, w_k)
    V = torch.einsum('bkc,hcd->bhkd', kv, w_v)
    logits = torch.einsum('bhqd,bhkd->bhqk', Q, K) * (dh ** -0.5)
    logits = logits + mask_bias[:, None, :, :]
    attn = _softmax(logits, axis=-1)
    ctx = torch.einsum('bhqk,bhkd->bqhd', attn, V).reshape(B, Nq, C)
    return q + ctx @ w_o
```

```python
import re

def regs_of(tok):
    tok = tok.strip()
    tok = tok.lstrip('-')
    if tok.startswith('abs(') or tok.startswith('|'):
        tok = tok.replace('abs(', '').replace(')', '').replace('|', '')
    m = re.fullmatch(r'([vas])\[(\d+):(\d+)\]', tok)
    if m:
        return [f'{m.group(1)}{i}' for i in range(int(m.group(2)), int(m.group(3))+1)]
    if re.fullmatch(r'[vas]\d+', tok):
        return [tok]
    if tok in ('vcc',): return ['vcc']
    if tok in ('exec',): return ['exec']
    if tok == 'm0': return ['m0']
    return []

TRANS = ('v_exp_f32', 'v_log_f32', 'v_rcp_f32', 'v_rsq_f32', 'v_sqrt_f32')

class I:
    __slots__ = ('text', 'op', 'R', 'W', 'kind', 'tag', 'prio', 'idx', 'extra')
    def __init__(self, text, R=(), W=(), tag=None, kind=None):
        self.text = text.strip()
        self.tag = tag
        self.extra = None
        t = self.text
        op = t.split()[0]
        self.op = op
        rest = t[len(op):].strip()
        ops = [x.strip() for x in rest.split(',')] if rest else []
        mods = ''
        if ops:
            last = ops[-1].split()
            ops[-1] = last[0] if last else ''
            mods = ' '.join(last[1:])
        r, w = [], []
        k = None
        if op.startswith('v_mfma'):
            k = 'mfma'; w += regs_of(ops[0]); r += regs_of(ops[1]) + regs_of(ops[2]) + regs_of(ops[3])
            self.extra = (regs_of(ops[0]), regs_of(ops[1]) + regs_of(ops[2]), regs_of(ops[3]))
        elif op.startswith('ds_read') or op.startswith('ds_bpermute'):
            k = 'dsr'; w += regs_of(ops[0])
            for o in ops[1:]: r += regs_of(o)
        elif op.startswith('ds_'):
            k = 'dsw'
            for o in ops: r += regs_of(o)
        elif op.startswith('buffer_load') or op.startswith('global_load'):
            if 'lds' in mods.split() or '_lds_' in op:
                k = 'dma'
                for o in ops: r += regs_of(o)
                r.append('m0')
            else:
                k = 'vld'; w += regs_of(ops[0])
                for o in ops[1:]: r += regs_of(o)
        elif op.startswith('buffer_store') or op.startswith('global_store') or op.startswith('global_atomic') or op.startswith('buffer_atomic'):
            k = 'vst'
            for o in ops: r += regs_of(o)
            if op.startswith('buffer_store'): self.extra = regs_of(ops[0])
            elif op.startswith('global_store'): self.extra = regs_of(ops[1])
            if 'atomic' in op and 'sc0' in mods.split():
                k = 'vld'; w += regs_of(ops[0])
        elif op.startswith('buffer_inv') or op.startswith('buffer_wbl2'):
            k = 'vst'
        elif op.startswith('v_cmp'):
            k = 'valu'; w += regs_of(ops[0])
            for o in ops[1:]: r += regs_of(o)
        elif op.startswith('v_permlane'):
            k = 'perm'; w += regs_of(ops[0]) + regs_of(ops[1]); r += regs_of(ops[0]) + regs_of(ops[1])
        elif op.startswith('v_'):
            k = 'trans' if op in TRANS else 'valu'
            w += regs_of(ops[0])
            for o in ops[1:]: r += regs_of(o)
            if op.startswith('v_fmac') or op.startswith('v_dot2c') or op.startswith('v_writelane'): r += regs_of(ops[0])
            if '_co_' in op:
                w += regs_of(ops[1]);
            if 'dpp' in op or 'row_' in mods or 'quad_perm' in mods:
                k = 'dpp'; r += regs_of(ops[0])
        elif op.startswith('s_'):
            k = 'salu'
            if op in ('s_waitcnt', 's_barrier', 's_nop', 's_endpgm', 's_branch', 's_sleep', 's_setprio'):
                k = 'ctl'
            elif op.startswith('s_cbranch'):
                k = 'ctl'
                r.append('scc' if 'scc' in op else ('vcc' if 'vcc' in op else 'exec'))
            elif op.startswith('s_cmp') or op.startswith('s_bitcmp'):
                w.append('scc')
                for o in ops: r += regs_of(o)
            elif op.startswith('s_load') or op.startswith('s_memrealtime') or op.startswith('s_memtime'):
                k = 'smem'; w += regs_of(ops[0])
                for o in ops[1:]: r += regs_of(o)
            else:
                w += regs_of(ops[0])
                for o in ops[1:]: r += regs_of(o)
                if not (op.startswith('s_mov') or op.startswith('s_mul') or op.startswith('s_cselect') or op.startswith('s_getpc') or op.startswith('s_getreg')):
                    w.append('scc')
                if op.startswith('s_cselect') or op.startswith('s_addc') or op.startswith('s_subb'):
                    r.append('scc')
                if 'saveexec' in op:
                    w.append('exec'); r.append('exec')
        elif op.endswith(':'):
            k = 'label'
        elif op in ('WAITV', 'WAITL', 'FENCE'):
            k = 'mark'
        else:
            k = 'other'
        if k in ('valu', 'trans', 'perm', 'dpp', 'mfma', 'dsr', 'dsw', 'dma', 'vld', 'vst'):
            r.append('exec')
        if k in ('dma', 'vld', 'vst'):
            r.append('VM'); w.append('VM')
        self.R = set(r) | set(R); self.W = set(w) | set(W)
        self.kind = kind or k
    def __repr__(self): return self.text

ISSUE = {'mfma': 8, 'trans': 8, 'perm': 8}
def issue_cost(i): return ISSUE.get(i.kind, 4)

DSLAT = 130
def dep_latency(p, c, reg, typ):
    if reg == 'VM': return 4
    if typ == 'RAW':
        if p.kind == 'dsr': return DSLAT
        if p.kind == 'dsw': return 60 if reg.startswith('L:') else 4
        if p.kind == 'vld': return 600
        if p.kind == 'mfma':
            if c.kind == 'mfma' and reg in c.extra[2] and c.extra[2] == p.extra[0]: return 16
            return 44
        if c.kind == 'mfma' and p.kind in ('valu', 'trans', 'perm', 'dpp'): return issue_cost(p)+8
        if p.kind == 'trans': return 12
        if c.kind in ('perm', 'dpp'): return issue_cost(p)+8
        if reg in ('vcc',) or reg.startswith('s'):
            if p.kind == 'valu' and c.kind in ('valu',): return 12
        return issue_cost(p)
    if typ == 'WAW':
        if p.kind == 'mfma' and c.kind != 'mfma': return 44
        if p.kind == 'dsr': return DSLAT
        return issue_cost(p)
    if p.kind == 'mfma' and c.kind in ('valu', 'trans', 'perm', 'dpp') and reg in p.extra[2]: return 20
    return issue_cost(p)

def schedule(insts, lookahead=None):
    n = len(insts)
    preds = [dict() for _ in range(n)]
    lastw = {}; readers = {}
    for j, c in enumerate(insts):
        for r in c.R:
            if r in lastw:
                p = lastw[r]; preds[j][p] = max(preds[j].get(p, 0), dep_latency(insts[p], c, r, 'RAW'))
        for r in c.W:
            if r in lastw:
                p = lastw[r]
                if p != j: preds[j][p] = max(preds[j].get(p, 0), dep_latency(insts[p], c, r, 'WAW'))
            for p in readers.get(r, ()):
                if p != j: preds[j][p] = max(preds[j].get(p, 0), dep_latency(insts[p], c, r, 'WAR'))
        for r in c.R: readers.setdefault(r, []).append(j)
        for r in c.W:
            lastw[r] = j; readers[r] = []
    succs = [[] for _ in range(n)]
    for j in range(n):
        for p, l in preds[j].items(): succs[p].append((j, l))
    cp = [0]*n
    for j in range(n-1, -1, -1):
        cp[j] = max([l + cp[s] for s, l in succs[j]] + [issue_cost(insts[j])])
        if getattr(insts[j], 'prio', None): cp[j] += insts[j].prio
    npred = [len(preds[j]) for j in range(n)]
    ready_t = [0]*n
    avail = [j for j in range(n) if npred[j] == 0]
    t = 0; mf_free = 0; out = []
    ds_free = 0
    last_mfma = False
    while avail:
        def start(j):
            s = max(t, ready_t[j])
            if insts[j].kind == 'mfma': s = max(s, mf_free)
            if insts[j].kind in ('dsr',): s = max(s, ds_free)
            return s
        best = min(avail, key=lambda j: (max(start(j)-t, 0) > 3, start(j) if start(j)-t > 3 else 0, -cp[j], j))
        s = start(best)
        i = insts[best]
        out.append(i); avail.remove(best)
        cost = issue_cost(i)
        if i.kind in ('salu', 'ctl', 'mark') and last_mfma: cost = 0
        t = s + cost
        if i.kind == 'mfma': mf_free = s + 16
        if i.kind == 'dsr': ds_free = s + (14 if 'b128' in i.op else 9 if 'tr_b16' in i.op else 4)
        last_mfma = (i.kind == 'mfma')
        for sj, l in succs[best]:
            ready_t[sj] = max(ready_t[sj], s + l)
            npred[sj] -= 1
            if npred[sj] == 0: avail.append(sj)
    assert len(out) == n
    return out, t

def insert_waits(insts):
    out = []
    ds = []
    vm = []
    for i in insts:
        needl = None; needv = None
        touch = i.R | i.W
        for k, d in enumerate(ds):
            if d & touch: needl = len(ds)-1-k
        for k, (d, tag) in enumerate(vm):
            if d & touch and not i.op.endswith('_d16_hi'): needv = len(vm)-1-k
        if i.op == 'WAITL':
            if ds: needl = 0
        if i.op == 'WAITV':
            tags = i.text.split()[1:]
            for k, (d, tag) in enumerate(vm):
                if tag in tags or 'ALL' in tags: needv = len(vm)-1-k
        if i.kind == 'smem' or i.op == 's_waitcnt':
            pass
        parts = []
        if needv is not None:
            parts.append(f'vmcnt({min(needv,63)})'); vm = vm[len(vm)-needv:] if needv else []
        if needl is not None:
            parts.append(f'lgkmcnt({min(needl,15)})'); ds = ds[len(ds)-needl:] if needl else []
        if parts: out.append(I('s_waitcnt ' + ' '.join(parts)))
        if i.kind == 'mark': continue
        if i.op == 's_waitcnt':
            m = re.search(r'vmcnt\((\d+)\)', i.text)
            if m: nn = int(m.group(1)); vm = vm[len(vm)-nn:] if nn and nn < len(vm) else ([] if nn == 0 else vm)
            m = re.search(r'lgkmcnt\((\d+)\)', i.text)
            if m: nn = int(m.group(1)); ds = ds[len(ds)-nn:] if nn and nn < len(ds) else ([] if nn == 0 else ds)
        out.append(i)
        if i.kind == 'dsr': ds.append({r for r in i.W if not r.startswith('L:')})
        elif i.kind == 'dsw': ds.append(set())
        elif i.kind == 'vld': vm.append(({r for r in i.W if r != 'VM'}, i.tag))
        elif i.kind in ('dma', 'vst'): vm.append((set(), i.tag))
    return out

VALUK = ('valu', 'trans', 'perm', 'dpp')
def insert_hazards(insts):
    out = []
    def states_since(pred):
        d = 0
        for p in reversed(out):
            if p.kind == 'label' and not p.text.startswith('C_'):
                return
            if p.kind == 'label': continue
            yield d, p
            d += (int(p.text.split()[1])+1) if p.op == 's_nop' else 1
            if d > 24: return
    for c in insts:
        need = 0
        if c.kind not in ('label', 'other'):
            for d, p in states_since(None):
                req = 0
                vw = {r for r in p.W if r[0] in 'va' and r not in ('vcc',) and r != 'VM'}
                if p.kind in VALUK:
                    if c.kind == 'mfma' and vw & c.R: req = max(req, 2)
                    if c.kind in ('perm', 'dpp') and vw & c.R: req = max(req, 2)
                    if c.op.startswith('v_readlane') or c.op.startswith('v_readfirstlane'):
                        if vw & c.R: req = max(req, 1)
                    if p.kind == 'trans' and c.kind in ('valu', 'perm', 'dpp') and vw & c.R: req = max(req, 1)
                    sw = {r for r in p.W if r[0] == 's' or r == 'vcc'} - {'scc'}
                    if sw & c.R:
                        if c.kind in VALUK: req = max(req, 2)
                        if c.kind in ('dma', 'vld', 'vst'): req = max(req, 5)
                        if c.kind in ('salu', 'ctl', 'smem'): req = max(req, 1)
                    if 'exec' in p.W:
                        req = max(req, 5)
                if p.kind == 'mfma':
                    D = set(p.extra[0])
                    if c.kind == 'mfma':
                        if D & set(c.extra[1]): req = max(req, 8)
                        if D & set(c.extra[2]) and c.extra[2] != p.extra[0]: req = max(req, 6)
                        if D & set(c.extra[0]) and c.extra[2] != p.extra[0]: req = max(req, 6)
                    elif c.kind in VALUK + ('dsr', 'dsw', 'dma', 'vld', 'vst'):
                        if D & (c.R | c.W): req = max(req, 8)
                    if c.kind in VALUK + ('dsr', 'vld') and set(p.extra[2]) & c.W: req = max(req, 3)
                if p.kind == 'salu' and 'm0' in p.W and c.kind == 'dma': req = max(req, 1)
                if p.kind == 'vst' and p.extra and len(p.extra) >= 3 and set(p.extra) & c.W: req = max(req, 2)
                if req - d > need: need = req - d
        while need > 0:
            k = min(need, 16)
            out.append(I(f's_nop {k-1}')); need -= k
        out.append(c)
    return out

def finalize(insts):
    return insert_hazards(insert_waits(insts))

def emit(insts):
    return '\n'.join(i.text for i in insts) + '\n'
```

```python
import sys, math
from asmlib import *

WS_A = 0
WS_VT = 65536
WS_XCH = 0x60000
WS_PART = 0x80000
WS_SIZE = WS_PART + 256*16384
STAMP_OFF = 128 << 20
SLOT = 24576
STAT = 147456; DUMMY = STAT+2048; BC = STAT+2048+4096
LOG2E = 1.4426950408889634
import struct
def f2u(x): return struct.unpack('<I', struct.pack('<f', x))[0]
THR = 10.0

class Prog:
    def __init__(self): self.L = []
    def __call__(self, t, **kw):
        r = []
        for line in t.split('\n'):
            if line.strip():
                i = I(line, **kw); self.L.append(i); r.append(i)
        return r[-1]
    def ext(self, l): self.L += l

def vr(b, n=1): return f'v{b}' if n == 1 else f'v[{b}:{b+n-1}]'
def ar(b, n=1): return f'a{b}' if n == 1 else f'a[{b}:{b+n-1}]'
def mfma(d, a, b, c): return f'v_mfma_f32_16x16x32_bf16 {d}, {a}, {b}, {c}'
def srd(p, s, lo, size):
    p(f's_mov_b32 s{s}, s{lo}\ns_mov_b32 s{s+1}, s{lo+1}\ns_mov_b32 s{s+2}, {size}\ns_mov_b32 s{s+3}, 0x20000')

def kd(name, vgpr, acc, sgpr=96):
    return f'''.amdhsa_kernel {name}
  .amdhsa_next_free_vgpr {vgpr}
  .amdhsa_next_free_sgpr {sgpr}
  .amdhsa_accum_offset {acc}
  .amdhsa_group_segment_fixed_size 0
  .amdhsa_kernarg_size 96
  .amdhsa_user_sgpr_count 2
  .amdhsa_user_sgpr_kernarg_segment_ptr 1
  .amdhsa_system_sgpr_workgroup_id_x 1
.end_amdhsa_kernel
'''
def head(name): return f'.globl {name}\n.p2align 8\n.type {name},@function\n{name}:\n'

def gen_k1():
    p = Prog()
    p('s_cmp_ge_u32 s2, 144\ns_cbranch_scc1 K1_end')
    p('s_load_dwordx2 s[4:5], s[0:1], 0')
    p('s_load_dwordx4 s[8:11], s[0:1], 32')
    p('s_load_dwordx2 s[6:7], s[0:1], 48')
    p('s_load_dwordx2 s[12:13], s[0:1], 64')
    p('s_load_dwordx2 s[14:15], s[0:1], 88')
    p('v_lshrrev_b32 v1, 6, v0\nv_and_b32 v2, 63, v0\nv_and_b32 v3, 15, v0\nv_bfe_u32 v4, v0, 4, 2')
    p('v_readfirstlane_b32 s3, v1')
    p('s_waitcnt lgkmcnt(0)')
    srd(p, 16, 4, 12288); srd(p, 20, 8, 294912); srd(p, 24, 10, 294912); srd(p, 28, 12, 294912)
    srd(p, 32, 14, WS_SIZE); srd(p, 36, 6, 294912)
    p('s_cmp_ge_u32 s2, 96\ns_cbranch_scc1 K1_vt')
    p('s_mul_i32 s40, s2, 171\ns_lshr_b32 s40, s40, 12')
    p('s_mul_i32 s41, s40, 24\ns_sub_u32 s41, s2, s41')
    p('v_mov_b32 v5, -1\nv_lshlrev_b32 v6, 2, v0\ns_lshl_b32 s42, s2, 10\ns_add_u32 s42, s42, %d' % WS_XCH)
    p('buffer_store_dword v5, v6, s[32:35], s42 offen')
    p('v_mul_u32_u24 v5, 192, v3\nv_lshl_add_u32 v5, v4, 4, v5')
    p('s_mul_i32 s42, s40, 73728\ns_mul_i32 s43, s41, 3072\ns_add_u32 s43, s43, s42')
    for ks in range(3): p(f'buffer_load_dwordx4 {vr(8+4*ks,4)}, v5, s[24:27], s43 offen offset:{64*ks}')
    p('s_mul_i32 s43, s3, 18432\ns_add_u32 s43, s43, s42')
    for t in range(6):
        for ks in range(3):
            p(f'buffer_load_dwordx4 {vr(20+12*t+4*ks,4)}, v5, s[20:23], s43 offen offset:{64*ks}')
        if t < 5: p('s_add_u32 s43, s43, 3072')
    p('v_mul_u32_u24 v6, 768, v3\nv_lshl_add_u32 v6, v4, 3, v6\ns_mul_i32 s43, s3, 192')
    for s in range(3):
        p(f'buffer_load_dwordx2 {vr(92+4*s,2)}, v6, s[16:19], s43 offen offset:{64*s}')
        p(f'buffer_load_dwordx2 {vr(94+4*s,2)}, v6, s[16:19], s43 offen offset:{64*s+32}')
    p('v_mul_u32_u24 v7, 3072, v4\nv_lshl_add_u32 v7, v3, 1, v7')
    p('s_mul_i32 s43, s3, 73728\ns_lshl_b32 s44, s41, 5\ns_add_u32 s43, s43, s44')
    for s in range(3):
        for u in range(2):
            for r in range(4):
                p(f'buffer_load_ushort v{140+8*s+4*u+r}, v7, s[28:31], s43 offen offset:{768*r}')
            p('s_add_u32 s43, s43, 12288')
    for t in range(6):
        for ks in range(3):
            p(mfma(vr(116+4*t,4), vr(20+12*t+4*ks,4), vr(8+4*ks,4), '0' if ks == 0 else vr(116+4*t,4)))
    for t in range(6):
        p(f'v_cvt_pk_bf16_f32 v{20+2*t}, v{116+4*t}, v{117+4*t}\nv_cvt_pk_bf16_f32 v{21+2*t}, v{118+4*t}, v{119+4*t}')
    for s in range(3):
        p(mfma(vr(32,4), vr(20+4*s,4), vr(92+4*s,4), '0' if s == 0 else vr(32,4)))
    for i in range(12): p(f'v_lshl_or_b32 v{104+i}, v{141+2*i}, 16, v{140+2*i}')
    for s in range(3):
        p(mfma(vr(36,4), vr(104+4*s,4), vr(92+4*s,4), '0' if s == 0 else vr(36,4)))
    p(f's_mov_b32 s44, {f2u(96**-0.5*LOG2E):#x}\ns_mov_b32 s45, {f2u(384**-0.5*LOG2E):#x}')
    for r in range(4):
        p(f'v_mul_f32 v{32+r}, s44, v{32+r}\nv_fma_f32 v{32+r}, s45, v{36+r}, v{32+r}')
    p('v_lshlrev_b32 v5, 4, v0\nds_write_b128 v5, v[32:35]')
    p('WAITL\ns_barrier')
    p('s_cmp_eq_u32 s3, 0\ns_cbranch_scc0 K1_end')
    for w in range(4): p(f'ds_read_b128 {vr(40+4*w,4)}, v5 offset:{1024*w}')
    for r in range(4):
        p(f'v_add_f32 v{40+r}, v{40+r}, v{44+r}\nv_add_f32 v{48+r}, v{48+r}, v{52+r}\nv_add_f32 v{40+r}, v{40+r}, v{48+r}')
    p('v_cvt_pk_bf16_f32 v40, v40, v41\nv_cvt_pk_bf16_f32 v41, v42, v43')
    p('v_lshrrev_b32 v6, 1, v4\nv_lshlrev_b32 v6, 8, v6\nv_lshl_add_u32 v6, v3, 4, v6\nv_and_b32 v7, 1, v4\nv_lshl_add_u32 v6, v7, 3, v6')
    p('s_mul_i32 s43, s40, 12288\ns_lshl_b32 s44, s41, 9\ns_add_u32 s43, s43, s44')
    p('buffer_store_dwordx2 v[40:41], v6, s[32:35], s43 offen')
    p('s_endpgm')
    p('K1_vt:')
    p('s_cmp_eq_u32 s3, 0\ns_cbranch_scc0 K1_end')
    p('s_sub_u32 s40, s2, 96\ns_mul_i32 s43, s40, 6144')
    p('v_lshlrev_b32 v5, 4, v2')
    for i in range(6): p(f'buffer_load_dwordx4 {vr(8+4*i,4)}, v5, s[36:39], s43 offen\ns_add_u32 s43, s43, 1024')
    for i in range(6): p(f'ds_write_b128 v5, {vr(8+4*i,4)} offset:{1024*i}')
    p('v_lshrrev_b32 v6, 2, v3\nv_lshl_add_u32 v6, v4, 2, v6\nv_mul_u32_u24 v6, 192, v6\nv_and_b32 v7, 3, v3\nv_lshl_add_u32 v6, v7, 3, v6')
    p('WAITL')
    for dt in range(6):
        for e in range(2): p(f'ds_read_b64_tr_b16 {vr(32+4*dt+2*e,2)}, v6 offset:{32*dt+3072*e}')
    p(f's_mul_i32 s43, s40, 6144\ns_add_u32 s43, s43, {WS_VT}')
    for dt in range(6): p(f'buffer_store_dwordx4 {vr(32+4*dt,4)}, v5, s[32:35], s43 offen\ns_add_u32 s43, s43, 1024')
    p('K1_end:\ns_endpgm')
    return finalize(p.L)

class RA:
    def __init__(self, start): self.n = start
    def __call__(self, k=1, al=1):
        self.n = (self.n+al-1)//al*al
        b = self.n; self.n += k; return b

def gen_k2(plan, stamps=False):
    p = Prog()
    v = RA(1)
    DX = v(6); Q = v(4); P = v(8); SW = v(); SR = v(); BW = v(); BR = v(); VL = v()
    NM = v(); LS = v(); CS = v(); SA = v()
    T = v(12, 4)
    SACC = [v(8, 4), v(8, 4)]; S2 = v(8, 4); S1 = v(8, 4); SLO = v(4, 4); YY = v(4, 4); Y1 = v(4, 4); Y = v(12, 4)
    PL = v(8, 4); PP = v(8, 4); PK = v(4, 4); RS = v(8, 4); MU = v(8, 4)
    VV = v(24, 4)
    U = 160
    assert v.n <= U, v.n
    DL = SACC[0]; LT = S2
    AF = [SLO, SLO+24]
    assert AF[1]+24 <= MU
    AA = 0; ONES = 48; XF = 52; NXF = 6; TR = 76; NTR = 8; VA = 108
    def vloc(ks):
        if ks < 6: return ('a', VA+24*ks)
        if ks == 6: return ('v', VV)
        if ks == 7: return ('a', 0)
        if ks == 8: return ('a', 24)
        if ks == 9: return ('a', XF)
        if ks == 10: return ('a', TR)
        return ('v', SACC[0])
    def blk(loc, i, n=4): return (ar if loc[0] == 'a' else vr)(loc[1]+i, n)

    nstamp = [0]
    def stamp(q=None):
        if stamps:
            k = nstamp[0]; nstamp[0] += 1
            (q or p)(f's_memrealtime s[{60+2*k}:{61+2*k}]')

    p('s_cmp_ge_u32 s2, 256\ns_cbranch_scc1 K2_end')
    stamp()
    p('s_load_dwordx4 s[4:7], s[0:1], 8')
    p('s_load_dwordx2 s[8:9], s[0:1], 24')
    p('s_load_dwordx2 s[10:11], s[0:1], 88')
    p('v_lshrrev_b32 v1, 6, v0\nv_and_b32 v0, 63, v0')
    p('v_readfirstlane_b32 s3, v1')
    p(f'v_lshlrev_b32 v{VL}, 4, v0')
    p('s_getpc_b64 s[40:41]\ns_and_b32 s40, s40, 0xffffff00')
    p('s_lshr_b32 s42, s2, 3\ns_and_b32 s43, s42, 7\ns_lshl_b32 s43, s43, 12\ns_lshl_b32 s44, s3, 10\ns_add_u32 s43, s43, s44')
    p(f'v_add_u32 v{T}, s43, v{VL}')
    p(f'global_load_dwordx4 {vr(U,4)}, v{T}, s[40:41]', tag='pre')
    p('s_and_b32 s45, s3, 1\ns_mul_i32 s46, s45, 9\ns_movk_i32 s47, 1366\ns_movk_i32 s48, 768')
    for i in range(6):
        t0, t1, t2 = T+1, T+2, T+3
        p(f'v_add_u32 v{t0}, {64*i}, v0' if i else f'v_mov_b32 v{t0}, v0')
        p(f'v_mul_u32_u24 v{t1}, s47, v{t0}\nv_lshrrev_b32 v{t1}, 16, v{t1}')
        p(f'v_mul_u32_u24 v{t2}, 48, v{t1}\nv_sub_u32 v{t0}, v{t0}, v{t2}')
        p(f'v_lshlrev_b32 v{t2}, 1, v{t1}\nv_xor_b32 v{t2}, s46, v{t2}\nv_xor_b32 v{t0}, v{t0}, v{t2}')
        p(f'v_lshlrev_b32 v{t0}, 4, v{t0}\nv_mad_u32_u24 v{t0}, v{t1}, s48, v{t0}')
        p(f'v_subrev_u32 v{DL+i}, {1024*(i%4)}, v{t0}' if i % 4 else f'v_mov_b32 v{DL+i}, v{t0}')
        p(f'v_mad_u32_u24 v{DX+i}, v{t1}, s48, v{DL+i}')
    p('s_waitcnt lgkmcnt(0)')
    srd(p, 12, 4, 50331648); srd(p, 16, 6, 12582912); srd(p, 20, 8, 294912); srd(p, 28, 10, WS_SIZE)
    p('s_mul_i32 s24, s3, 6144')
    p('s_mul_i32 s25, s2, 49152\ns_add_u32 s25, s25, s24')
    p('s_lshr_b32 s26, s2, 1\ns_mul_i32 s26, s26, 393216\ns_and_b32 s27, s2, 1\ns_mul_i32 s27, s27, 98304\ns_add_u32 s26, s26, s27')
    p('s_mul_i32 s27, s45, 12288\ns_add_u32 s26, s26, s27\ns_lshr_b32 s27, s3, 1\ns_mul_i32 s27, s27, 768\ns_add_u32 s26, s26, s27')
    p(f's_mul_i32 s27, s3, 73728\ns_add_u32 s27, s27, {WS_VT}')
    p('s_mul_i32 s43, s42, 9216\ns_mul_i32 s44, s3, 2304\ns_add_u32 s43, s43, s44')
    for i in range(3): p(f'buffer_load_dwordx3 {vr(U,3)}, v{VL}, s[20:23], s43 offen offset:{768*i}', tag='pre')

    def dma(q, kind, n, slot):
        srdn, base, off, fl, vo = {'F': (16, 's25', n*SLOT, ' nt', DL), 'L': (20, 's24', n*SLOT, '', DL),
                                   'X': (12, 's26', (n % 2)*196608 + (n//2)*SLOT, ' nt', DX)}[kind]
        tag = f'{kind}{n}'
        q(f's_add_u32 s49, {base}, {off}')
        q(f's_add_u32 m0, s24, {slot*SLOT}')
        for i in range(6):
            if i == 4: q(f's_add_u32 m0, s24, {slot*SLOT+4096}')
            q(f'buffer_load_dwordx4 v{vo+i}, s[{srdn}:{srdn+3}], s49 offen offset:{1024*(i%4)}{fl} lds', tag=tag)
    def loadA(q):
        q('s_mul_i32 s50, s3, 12288')
        for a_ in range(4):
            q(f's_xor_b32 s51, s3, {a_}\ns_lshl_b32 s51, s51, 10\ns_add_u32 s51, s51, s50')
            for G in range(3):
                if G: q('s_add_u32 s51, s51, 4096')
                q(f'buffer_load_dwordx4 {ar(AA+4*(3*a_+G),4)}, v{VL}, s[28:31], s51 offen', tag='A')
    def loadV(q, ks):
        loc = vloc(ks)
        q(f's_add_u32 s52, s27, {6144*ks}')
        for dt in range(6):
            if dt == 4: q('s_add_u32 s52, s52, 4096')
            q(f'buffer_load_dwordx4 {blk(loc,4*dt)}, v{VL}, s[28:31], s52 offen offset:{1024*(dt%4)}', tag=f'V{ks}')
    def issue(q, name, prio=None):
        n0 = len(q.L)
        for it in plan.get(name, []):
            if it[0] == 'A': loadA(q)
            elif it[0] == 'V': loadV(q, it[1])
            else: dma(q, *it)
        if prio:
            for i in q.L[n0:]: i.prio = prio
    slot_of = {}
    for name, its in plan.items():
        for it in its:
            if it[0] in 'FLX': slot_of[f'{it[0]}{it[1]}'] = it[2]
    LATSLOT = plan['lat_slots'][0][1:]

    issue(p, 'start')
    m_, g_, F_, t_ = T, T+1, T+2, T+3
    def fswz(dst, m):
        p(f'v_lshrrev_b32 v{t_}, 3, v{m}\nv_mul_u32_u24 v{t_}, 9, v{t_}\nv_and_b32 v{dst}, 7, v{m}\nv_lshlrev_b32 v{dst}, 1, v{dst}\nv_xor_b32 v{dst}, v{dst}, v{t_}')
    p(f'v_and_b32 v{m_}, 15, v0\nv_lshrrev_b32 v{g_}, 4, v0')
    fswz(F_, m_)
    p(f'v_xor_b32 v{t_}, v{g_}, v{F_}\nv_lshlrev_b32 v{t_}, 4, v{t_}\nv_mad_u32_u24 v{Q}, v{m_}, s48, v{t_}')
    for a_ in range(1, 4): p(f'v_xor_b32 v{Q+a_}, {64*a_}, v{Q}')
    p(f'v_and_b32 v{t_}, 1, v{g_}\nv_lshlrev_b32 v{t_}, 3, v{t_}\nv_mad_u32_u24 v{MU}, v{m_}, s48, v{t_}\nv_mov_b32 v{MU+1}, v{F_}\nv_lshrrev_b32 v{MU+2}, 1, v{g_}')
    p(f'v_lshrrev_b32 v{t_}, 2, v{m_}\nv_cmp_eq_u32 vcc, v{t_}, v{g_}')
    p(f's_lshl_b32 s50, s3, 3\ns_add_u32 s50, s50, {STAT}\ns_lshl_b32 s51, s3, 9\ns_add_u32 s51, s51, {DUMMY}')
    p(f'v_lshl_add_u32 v{SW}, v{m_}, 5, s50\nv_lshl_add_u32 v{t_}, v0, 3, s51\nv_cndmask_b32 v{SW}, v{t_}, v{SW}, vcc')
    p(f'v_and_b32 v{t_}, 31, v0\nv_lshlrev_b32 v{SR}, 5, v{t_}\nv_add_u32 v{SR}, {STAT}, v{SR}')
    p(f's_lshl_b32 s50, s3, 8\ns_add_u32 s50, s50, {BC}\nv_lshl_add_u32 v{BW}, v{t_}, 2, s50\nv_lshl_add_u32 v{BR}, v{g_}, 4, s50')
    p(f'v_and_b32 v{t_}, 3, v0')
    for j in range(1, 4): p(f'v_cmp_eq_u32 s[{30+2*j}:{31+2*j}], {j}, v{t_}')
    r_, b_ = T+4, T+5
    p(f'v_lshrrev_b32 v{r_}, 2, v{m_}\nv_lshl_add_u32 v{r_}, v{g_}, 2, v{r_}')
    p(f'v_bfe_u32 v{b_}, v0, 1, 1\nv_and_b32 v{T+6}, 1, v0\nv_lshlrev_b32 v{T+6}, 3, v{T+6}')
    fswz(F_, r_)
    p(f'v_xor_b32 v{t_}, v{b_}, v{F_}\nv_lshl_add_u32 v{t_}, v{t_}, 4, v{T+6}\nv_mad_u32_u24 v{P}, v{r_}, s48, v{t_}')
    for x in range(1, 8): p(f'v_xor_b32 v{P+x}, {32*x}, v{P}')
    p('s_mul_i32 s50, s3, 12')
    for e in range(2):
        p(f'v_lshrrev_b32 v{r_}, 2, v{m_}\nv_lshl_add_u32 v{r_}, v{g_}, 3, v{r_}')
        if e: p(f'v_add_u32 v{r_}, 4, v{r_}')
        p(f'v_and_b32 v{T+7}, 15, v{r_}')
        fswz(F_, T+7)
        p(f'v_mad_u32_u24 v{T+7}, v{r_}, s48, v{T+6}')
        for t in range(6):
            p(f'v_add_u32 v{t_}, s50, v{b_}' if t == 0 else f'v_add3_u32 v{t_}, s50, v{b_}, {2*t}')
            p(f'v_xor_b32 v{t_}, v{t_}, v{F_}\nv_lshl_add_u32 v{LT+2*t+e}, v{t_}, 4, v{T+7}')
    base = {'Q': 0, 'P': 0, 'LT': 0}
    def rebase(q, which, off, span):
        regs = {'Q': range(Q, Q+4), 'P': range(P, P+8), 'LT': range(LT, LT+12)}[which]
        if not (base[which] <= off and off+span <= base[which]+65536):
            nb = (off//(2*SLOT))*2*SLOT
            d = nb - base[which]
            for r in regs: q(f'v_add_u32 v{r}, {d & 0xffffffff:#x}, v{r}')
            base[which] = nb
        return off - base[which]
    total = 0
    def region(q, sched=True):
        nonlocal total
        if sched:
            o, t = schedule(q.L); total += t
            p.ext(o)
        else: p.ext(q.L)
    def bar(waits):
        p('WAITL')
        if waits: p('WAITV ' + ' '.join(waits))
        p('s_barrier')

    bar(['F0', 'F1']); stamp()
    q = Prog()
    for ks in range(12):
        for pt in range(4):
            o = rebase(q, 'Q', slot_of[f'F{pt//2}']*SLOT, SLOT)
            q(f'ds_read_b128 {ar(4*(4*ks+pt),4)}, v{Q+ks%4} offset:{o+12288*(pt%2)+256*(ks//4)}')
    q(f's_lshl_b32 s50, s3, 6')
    for a_ in range(4): q(f'v_xor_b32 v{Q+a_}, s50, v{Q+a_}')
    issue(q, 'pull')
    region(q, False)
    def lat_mfma(q, ks):
        for t in range(6):
            for pt in range(4):
                d = vr(U+4*(4*t+pt), 4)
                q(mfma(d, vr(AF[ks % 2]+4*t, 4), ar(4*(4*ks+pt), 4), '0' if ks == 0 else d))
    for ks in range(12):
        bar([f'L{ks}'])
        q = Prog()
        o = rebase(q, 'LT', slot_of[f'L{ks}']*SLOT, SLOT)
        for t in range(6):
            for e in range(2): q(f'ds_read_b64_tr_b16 {vr(AF[ks%2]+4*t+2*e,2)}, v{LT+2*t+e} offset:{o}').prio = 400
        if ks: lat_mfma(q, ks-1)
        issue(q, f'lat{ks}')
        region(q)
    bar([])
    q = Prog()
    lat_mfma(q, 11)
    q('s_mul_i32 s50, s3, 12')
    for t in range(6):
        q(f'v_add3_u32 v{LT+t}, s50, v{MU+2}, {2*t}\nv_xor_b32 v{LT+t}, v{LT+t}, v{MU+1}\nv_lshl_add_u32 v{LT+t}, v{LT+t}, 4, v{MU}')
    assert max(LATSLOT)*SLOT + SLOT <= 65536
    for t in range(6):
        for pt in range(4):
            d = U+4*(4*t+pt); tm = T+2*((4*t+pt) % 6)
            q(f'v_cvt_pk_bf16_f32 v{tm}, v{d}, v{d+1}\nv_cvt_pk_bf16_f32 v{tm+1}, v{d+2}, v{d+3}')
            q(f'ds_write_b64 v{LT+t}, {vr(tm,2)} offset:{LATSLOT[pt//2]*SLOT+12288*(pt%2)}')
    q(f's_mov_b32 s50, 0x3f803f80')
    for i in range(4): q(f'v_accvgpr_write_b32 a{ONES+i}, s50')
    for j in range(12): q(mfma(vr(PP,4), ar(ONES,4), ar(AA+4*j,4), '0' if j == 0 else vr(PP,4)))
    q(f'v_mov_b32 v{SA}, v{PP}')
    q(f'v_mov_b32 v{LS}, 0\nv_mov_b32 v{CS}, 0')
    q(f's_mov_b32 s53, {f2u(1/384):#x}\ns_mov_b32 s54, {f2u(1e-5):#x}\ns_mov_b32 s55, {f2u(THR):#x}\ns_mov_b32 s56, 0x00800080')
    issue(q, 'epi')
    region(q)

    xfc = [0]; trc = [0]
    def partA(q, k):
        if k % 2 == 0:
            pt = k//2
            o = rebase(q, 'Q', LATSLOT[pt//2]*SLOT, SLOT) + 12288*(pt % 2)
            j = 0
            for a_ in range(4):
                for G in range(3):
                    if a_ == 0: fr = vr(Y+4*G, 4)
                    else: fr = ar(XF+4*(xfc[0] % NXF), 4); xfc[0] += 1
                    q(f'ds_read_b128 {fr}, v{Q+a_} offset:{o+256*G}')
                    q(mfma(vr(SLO,4), fr, ar(AA+4*(3*a_+G),4), '0' if j == 0 else vr(SLO,4)))
                    if a_ == 0:
                        q(mfma(vr(YY,4), fr, fr, '0' if G == 0 else vr(YY,4)))
                        q(mfma(vr(Y1,4), fr, ar(ONES,4), '0' if G == 0 else vr(Y1,4)))
                    j += 1
            for i in range(12): q(f'v_add_u32 v{Y+i}, s56, v{Y+i}')
        o = rebase(q, 'Q', slot_of[f'X{k}']*SLOT, SLOT)
        sa = SACC[k % 2]
        for a_ in range(4):
            for G in range(3):
                for mt in range(2):
                    fr = ar(XF+4*(xfc[0] % NXF), 4); xfc[0] += 1
                    q(f'ds_read_b128 {fr}, v{Q+a_} offset:{o+256*G+12288*mt}')
                    d = vr(sa+4*mt, 4)
                    q(mfma(d, fr, ar(AA+4*(3*a_+G),4), vr(SLO,4) if (a_ == 0 and G == 0) else d))
                    if a_ == 0:
                        d2 = vr(S2+4*mt, 4); d1 = vr(S1+4*mt, 4)
                        q(mfma(d2, fr, fr, vr(YY,4) if G == 0 else d2))
                        q(mfma(d1, fr, ar(ONES,4), vr(Y1,4) if G == 0 else d1))
                        q(mfma(d2, fr, vr(Y+4*G,4), d2))
            if a_ == 0:
                for mt in range(2):
                    for (src, dst) in ((S2+4*mt, T+8+2*mt), (S1+4*mt, T+9+2*mt)):
                        q(f'v_cndmask_b32 v{dst}, v{src}, v{src+1}, s[32:33]\nv_cndmask_b32 v{dst}, v{dst}, v{src+2}, s[34:35]\nv_cndmask_b32 v{dst}, v{dst}, v{src+3}, s[36:37]')
                    q(f'ds_write_b64 v{SW}, {vr(T+8+2*mt,2)} offset:{1024*(k%2)+512*mt}')
    rare = Prog()
    def pv(q, off, breg, first=False):
        o = rebase(q, 'P', off, SLOT)
        for ct in range(24):
            fr = TR+4*(trc[0] % NTR); trc[0] += 1
            for e in range(2):
                q(f'ds_read_b64_tr_b16 {ar(fr+2*e,2)}, v{P+ct%8} offset:{o+256*(ct//8)+12288*e}')
            d = vr(U+4*ct, 4)
            q(mfma(d, ar(fr,4), breg, '0' if first else d))
    def partB(q, k):
        sa = SACC[k % 2]
        t0 = T
        q(f'ds_read_b128 {vr(t0,4)}, v{SR} offset:{1024*(k%2)}').prio = 300
        q(f'ds_read_b128 {vr(t0+4,4)}, v{SR} offset:{1024*(k%2)+16}').prio = 300
        q(f'v_add_f32 v{t0}, v{t0}, v{t0+2}\nv_add_f32 v{t0+1}, v{t0+1}, v{t0+3}\nv_add_f32 v{t0+4}, v{t0+4}, v{t0+6}\nv_add_f32 v{t0+5}, v{t0+5}, v{t0+7}')
        q(f'v_add_f32 v{t0}, v{t0}, v{t0+4}\nv_add_f32 v{t0+1}, v{t0+1}, v{t0+5}')
        q(f'v_mul_f32 v{t0+1}, s53, v{t0+1}')
        q(f'v_mul_f32 v{t0}, s53, v{t0}\nv_fma_f32 v{t0}, -v{t0+1}, v{t0+1}, v{t0}')
        q(f'v_max_f32 v{t0}, 0, v{t0}\nv_add_f32 v{t0}, s54, v{t0}\nv_rsq_f32 v{t0}, v{t0}\nv_mul_f32 v{t0+1}, v{t0+1}, v{t0}')
        q(f'ds_write2_b32 v{BW}, v{t0}, v{t0+1} offset0:0 offset1:32', W=['L:bc'])
        for mt in range(2):
            q(f'ds_read_b128 {vr(RS+4*mt,4)}, v{BR} offset:{64*mt}', R=['L:bc'])
            q(f'ds_read_b128 {vr(MU+4*mt,4)}, v{BR} offset:{128+64*mt}', R=['L:bc'])
        for i in range(8):
            if k == 0: q(f'v_mul_f32 v{PP+i}, v{MU+i}, v{SA}\nv_fma_f32 v{PP+i}, v{sa+i}, v{RS+i}, -v{PP+i}')
            else: q(f'v_fma_f32 v{PP+i}, -v{MU+i}, v{SA}, v{NM}\nv_fma_f32 v{PP+i}, v{sa+i}, v{RS+i}, v{PP+i}')
        mx = T+2
        q(f'v_max3_f32 v{mx}, v{PP}, v{PP+1}, v{PP+2}\nv_max3_f32 v{mx+1}, v{PP+3}, v{PP+4}, v{PP+5}\nv_max3_f32 v{mx}, v{mx}, v{PP+6}, v{PP+7}\nv_max_f32 v{mx}, v{mx}, v{mx+1}')
        def allmax(z):
            z(f'v_mov_b32 v{mx+1}, v{mx}\nv_permlane32_swap_b32 v{mx}, v{mx+1}\nv_max_f32 v{mx}, v{mx}, v{mx+1}')
            z(f'v_mov_b32 v{mx+1}, v{mx}\nv_permlane16_swap_b32 v{mx}, v{mx+1}\nv_max_f32 v{mx}, v{mx}, v{mx+1}')
        if k == 0:
            allmax(q)
            for i in range(8): q(f'v_sub_f32 v{PP+i}, v{PP+i}, v{mx}')
            q(f'v_sub_f32 v{NM}, 0, v{mx}')
        else:
            q(f'v_cmp_lt_f32 vcc, s55, v{mx}')
            live_pl = ([PL+i for i in range(4)] if k % 4 >= 1 else []) + ([PL+4+i for i in range(4)] if k % 4 == 3 else [])
            touched = [f'v{U+i}' for i in range(96)] + [f'v{PP+i}' for i in range(8)] + [f'v{x}' for x in (NM, LS, CS, mx, mx+1)] + [f'v{x}' for x in live_pl]
            br = q(f's_cbranch_vccnz RARE{k}', R=touched, W=touched)
            br.text += f'\nC_{k}:'
            rare(f'RARE{k}:\ns_nop 7')
            allmax(rare)
            rare(f'v_max_f32 v{mx}, 0, v{mx}')
            for i in range(8): rare(f'v_sub_f32 v{PP+i}, v{PP+i}, v{mx}')
            rare(f'v_sub_f32 v{NM}, v{NM}, v{mx}\nv_exp_f32 v{mx}, -v{mx}')
            for r in [U+i for i in range(96)] + [LS, CS] + live_pl: rare(f'v_mul_f32 v{r}, v{mx}, v{r}')
            rare(f's_nop 1\ns_branch C_{k}')
        for i in range(8): q(f'v_exp_f32 v{PP+i}, v{PP+i}')
        for i in range(8):
            q(f'v_add_f32 v{LS}, v{LS}, v{PP+i}')
            q(f'v_fmac_f32 v{CS}, v{PP+i}, v{MU+i}')
            q(f'v_mul_f32 v{RS+i}, v{PP+i}, v{RS+i}')
        for i in range(4): q(f'v_cvt_pk_bf16_f32 v{PK+i}, v{RS+2*i}, v{RS+2*i+1}')
        pl = PL+4*((k//2) % 2)
        for r in range(4):
            if k % 2 == 0: q(f'v_add_f32 v{pl+r}, v{RS+r}, v{RS+4+r}')
            else: q(f'v_add_f32 v{pl+r}, v{pl+r}, v{RS+r}\nv_add_f32 v{pl+r}, v{pl+r}, v{RS+4+r}')
        pv(q, slot_of[f'X{k}']*SLOT, vr(PK,4), first=(k == 0))
        if k % 4 == 3:
            for i in range(4): q(f'v_cvt_pk_bf16_f32 v{PP+i}, v{PL+2*i}, v{PL+2*i+1}')
            pv(q, LATSLOT[k//4]*SLOT, vr(PP,4))
    for k in range(-1, 8):
        last_split = plan.get('split_last', True)
        if k == 6 and last_split:
            bar([]); q = Prog(); partB(q, 6); issue(q, 'm6'); region(q)
            bar(['X7']); stamp(); q = Prog(); partA(q, 7); issue(q, 'm6b'); region(q)
            continue
        bar([f'X{k+1}'] if k < 7 else [])
        if k in (-1, 3): stamp()
        q = Prog()
        if k >= 0: partB(q, k)
        if k < 7: partA(q, k+1)
        issue(q, f'm{k}')
        region(q)
    stamp()
    q = Prog()
    for reg in (LS, CS):
        q(f'v_mov_b32 v{T}, v{reg}\nv_permlane32_swap_b32 v{reg}, v{T}\nv_add_f32 v{reg}, v{reg}, v{T}')
        q(f'v_mov_b32 v{T}, v{reg}\nv_permlane16_swap_b32 v{reg}, v{T}\nv_add_f32 v{reg}, v{reg}, v{T}')
    issue(q, 'proj')
    CT = S1
    assert CT+24 <= PL
    for s in range(12):
        b = (PL, PP, RS, MU)[s % 4]
        for i in range(8): q(f'v_sub_f32 v{U+8*s+i}, v{U+8*s+i}, v{CS}')
        for i in range(4): q(f'v_cvt_pk_bf16_f32 v{b+i}, v{U+8*s+2*i}, v{U+8*s+2*i+1}')
        for dt in range(6):
            d = vr(CT+4*dt, 4)
            q(mfma(d, blk(vloc(s), 4*dt), vr(b, 4), '0' if s == 0 else d))
    for i in range(12): q(f'v_cvt_pk_bf16_f32 v{U+i}, v{CT+2*i}, v{CT+2*i+1}')
    q(f'v_sub_f32 v{U+12}, 0, v{NM}\nv_mov_b32 v{U+13}, v{LS}\nv_mov_b32 v{U+14}, 0\nv_mov_b32 v{U+15}, 0')
    q(f'v_and_b32 v{T}, 15, v0\nv_lshlrev_b32 v{T}, 8, v{T}\nv_and_b32 v{T+1}, 48, v0\nv_add_u32 v{T}, v{T}, v{T+1}')
    q(f's_lshl_b32 s50, s2, 14\ns_lshl_b32 s51, s3, 12\ns_add_u32 s50, s50, s51\ns_add_u32 s50, s50, {WS_PART}')
    for j in range(4): q(f'buffer_store_dwordx4 {vr(U+4*j,4)}, v{T}, s[28:31], s50 offen offset:{64*j}')
    region(q)
    if stamps:
        p('WAITV ALL'); stamp()
        n = nstamp[0]
        p('s_waitcnt lgkmcnt(0)')
        p(f's_add_u32 s10, s10, {STAMP_OFF}\ns_addc_u32 s11, s11, 0')
        p(f's_mul_i32 s50, s2, {8*n}\nv_mov_b32 v1, s50')
        p('s_cmp_eq_u32 s3, 0\ns_cbranch_scc0 K2_end\ns_mov_b64 exec, 1')
        for i in range(n):
            p(f'v_mov_b32 v2, s{60+2*i}\nv_mov_b32 v3, s{61+2*i}\nglobal_store_dwordx2 v1, v[2:3], s[10:11] offset:{8*i}\ns_nop 1')
        print('stamps', n, file=sys.stderr)
    p('K2_end:\ns_endpgm')
    print('model cycles', total, file=sys.stderr)
    return finalize(p.L) + finalize(rare.L)

def gen_k3():
    p = Prog()
    p('s_cmp_ge_u32 s2, 64\ns_cbranch_scc1 K3_end')
    p('s_load_dwordx2 s[4:5], s[0:1], 0\ns_load_dwordx2 s[6:7], s[0:1], 56\ns_load_dwordx2 s[8:9], s[0:1], 72\ns_load_dwordx2 s[10:11], s[0:1], 88')
    p('v_lshrrev_b32 v1, 6, v0\nv_and_b32 v2, 63, v0\nv_readfirstlane_b32 s3, v1')
    p('s_lshr_b32 s40, s2, 2\ns_and_b32 s41, s2, 3')
    p('s_waitcnt lgkmcnt(0)')
    srd(p, 12, 4, 12288); srd(p, 16, 6, 294912); srd(p, 20, 8, 12288); srd(p, 24, 10, WS_SIZE)
    p('v_lshrrev_b32 v3, 4, v2\nv_lshlrev_b32 v3, 14, v3\nv_and_b32 v4, 15, v2\nv_lshl_add_u32 v3, v4, 4, v3')
    p(f's_lshl_b32 s42, s3, 20\ns_lshl_b32 s43, s41, 12\ns_add_u32 s42, s42, s43\ns_lshl_b32 s43, s40, 8\ns_add_u32 s42, s42, s43\ns_add_u32 s42, s42, {WS_PART}')
    D = 32
    for j in range(16):
        p(f'buffer_load_dwordx4 {vr(D+4*j,4)}, v3, s[24:27], s42 offen sc1\ns_add_u32 s42, s42, 0x10000')
    WO = 96
    p('v_mul_u32_u24 v5, 12, v2\ns_mul_i32 s42, s41, 73728\ns_mul_i32 s43, s3, 18432\ns_add_u32 s42, s42, s43')
    for i in range(24):
        p(f'buffer_load_dwordx3 {vr(WO+4*i,3)}, v5, s[16:19], s42 offen offset:{768*(i%4)}')
        if i % 4 == 3: p('s_add_u32 s42, s42, 3072')
    p('v_lshlrev_b32 v6, 2, v0\ns_mul_i32 s44, s40, 768\ns_mul_i32 s43, s41, 192\ns_add_u32 s44, s44, s43')
    p('buffer_load_dword v7, v6, s[12:15], s44 offen')
    M = 8
    for j in range(16): p(f'v_mov_b32_dpp v{M+j}, v{D+4*j} row_newbcast:12 row_mask:0xf bank_mask:0xf')
    p(f'v_max3_f32 v24, v{M}, v{M+1}, v{M+2}')
    for j in range(3, 15, 2): p(f'v_max3_f32 v24, v24, v{M+j}, v{M+j+1}')
    p(f'v_max_f32 v24, v24, v{M+15}')
    p('v_mov_b32 v25, v24\nv_permlane32_swap_b32 v24, v25\nv_max_f32 v24, v24, v25\nv_mov_b32 v25, v24\nv_permlane16_swap_b32 v24, v25\nv_max_f32 v24, v24, v25')
    p('v_lshlrev_b32 v25, 2, v1\nds_write_b32 v25, v24\nv_mov_b32 v26, 0\nWAITL\ns_barrier\nds_read_b128 v[28:31], v26')
    p('v_max3_f32 v24, v28, v29, v30\nv_max_f32 v24, v24, v31')
    A = 192
    for j in range(16):
        p(f'v_sub_f32 v{M+j}, v{M+j}, v24\nv_exp_f32 v{M+j}, v{M+j}')
        p(f'v_cvt_pk_bf16_f32 v26, v{M+j}, 0\nv_lshlrev_b32 v27, 16, v26')
        p(f'v_mov_b32_dpp v28, v{D+4*j+1} row_newbcast:12 row_mask:0xf bank_mask:0xf')
        p(f'v_mul_f32 v{A+8}, v27, v28' if j == 0 else f'v_fmac_f32 v{A+8}, v27, v28')
        for i in range(4):
            p(f'v_dot2_f32_bf16 v{A+2*i}, v{D+4*j+i}, v26, {"0" if j == 0 else f"v{A+2*i}"}')
            p(f'v_dot2_f32_bf16 v{A+2*i+1}, v{D+4*j+i}, v27, {"0" if j == 0 else f"v{A+2*i+1}"}')
    p('s_nop 2')
    for i in range(9):
        p(f'v_mov_b32 v25, v{A+i}\nv_permlane32_swap_b32 v{A+i}, v25\nv_add_f32 v{A+i}, v{A+i}, v25\nv_mov_b32 v25, v{A+i}\nv_permlane16_swap_b32 v{A+i}, v25\nv_add_f32 v{A+i}, v{A+i}, v25')
    p('v_mul_u32_u24 v25, 48, v4\nv_mov_b32 v26, 768\nv_mad_u32_u24 v26, v1, v26, v25')
    p(f'ds_write_b128 v26, {vr(A,4)} offset:64\nds_write_b128 v26, {vr(A+4,4)} offset:80\nds_write_b32 v26, v{A+8} offset:96')
    p('WAITL\ns_barrier')
    for z in range(4):
        p(f'ds_read_b128 {vr(D+12*z,4)}, v25 offset:{64+768*z}\nds_read_b128 {vr(D+12*z+4,4)}, v25 offset:{80+768*z}\nds_read_b32 v{D+12*z+8}, v25 offset:{96+768*z}')
    for i in range(9):
        p(f'v_add_f32 v{D+i}, v{D+i}, v{D+12+i}\nv_add_f32 v{D+24+i}, v{D+24+i}, v{D+36+i}\nv_add_f32 v{D+i}, v{D+i}, v{D+24+i}')
    p(f'v_rcp_f32 v{D+8}, v{D+8}')
    for i in range(8):
        p(f'v_mul_f32 v{D+i}, v{D+i}, v{D+8}\nv_cvt_pk_bf16_f32 v{D+i}, v{D+i}, 0')
    p('v_lshrrev_b32 v25, 2, v4\nv_lshlrev_b32 v25, 7, v25\nv_and_b32 v26, 3, v4\nv_lshl_add_u32 v25, v26, 4, v25\nv_lshl_add_u32 v25, v1, 10, v25')
    p(f'ds_write_b128 v25, {vr(D,4)} offset:4096\nds_write_b128 v25, {vr(D+4,4)} offset:4160', W=['L:c'])
    p('v_mov_b32 v26, 1120\nv_mul_u32_u24 v26, v1, v26')
    for i in range(6): p(f'ds_read_b128 {vr(D+12+4*i,4)}, v26 offset:{4096+16*i}')
    for i in range(24):
        c = D+12+i
        p(f'v_lshlrev_b32 v27, 16, v{c}')
        for u in range(3):
            p(f'v_dot2_f32_bf16 v{A+2*u}, v{WO+4*i+u}, v{c}, {"0" if i == 0 else f"v{A+2*u}"}')
            p(f'v_dot2_f32_bf16 v{A+2*u+1}, v{WO+4*i+u}, v27, {"0" if i == 0 else f"v{A+2*u+1}"}')
    p('s_nop 2')
    p('v_mul_u32_u24 v25, 24, v2\nv_mov_b32 v26, 1536\nv_mad_u32_u24 v25, v1, v26, v25')
    for u in range(3): p(f'ds_write_b64 v25, {vr(A+2*u,2)} offset:{8192+8*u}')
    p('WAITL\ns_barrier')
    p('v_cmp_gt_u32 vcc, 96, v0\ns_and_saveexec_b64 s[46:47], vcc\ns_cbranch_execz K3_end')
    p('v_lshlrev_b32 v25, 4, v0')
    for z in range(4): p(f'ds_read_b128 {vr(D+4*z,4)}, v25 offset:{8192+1536*z}')
    p('s_mov_b32 s45, 0x7fc00000\nv_mov_b32 v27, s45')
    for i in range(4):
        p(f'v_add_f32 v{D+i}, v{D+i}, v{D+4+i}\nv_add_f32 v{D+8+i}, v{D+8+i}, v{D+12+i}\nv_add_f32 v{D+i}, v{D+i}, v{D+8+i}')
        p(f'v_cmp_eq_u32 vcc, -1, v{D+i}\nv_cndmask_b32 v{D+i}, v{D+i}, v27, vcc')
    p(f's_mul_i32 s42, s2, 1536\ns_add_u32 s42, s42, {WS_XCH}')
    p(f'buffer_store_dwordx4 {vr(D,4)}, v25, s[24:27], s42 offen sc0 sc1')
    p('v_cmp_gt_u32 vcc, 48, v0\ns_and_saveexec_b64 s[46:47], vcc\ns_cbranch_execz K3_end')
    p(f'v_lshlrev_b32 v25, 3, v0\ns_mul_i32 s42, s40, 6144\ns_mul_i32 s43, s41, 384\ns_add_u32 s42, s42, s43\ns_add_u32 s42, s42, {WS_XCH}')
    p('s_add_u32 s43, s42, 3072')
    p('K3_poll:')
    p(f'buffer_load_dwordx2 v[40:41], v25, s[24:27], s42 offen sc1\nbuffer_load_dwordx2 v[42:43], v25, s[24:27], s42 offen offset:1536 sc1')
    p(f'buffer_load_dwordx2 v[44:45], v25, s[24:27], s43 offen sc1\nbuffer_load_dwordx2 v[46:47], v25, s[24:27], s43 offen offset:1536 sc1')
    p('v_max3_u32 v48, v40, v41, v42\nv_max3_u32 v48, v48, v43, v44\nv_max3_u32 v48, v48, v45, v46\nv_max_u32 v48, v48, v47')
    p('v_cmp_eq_u32 vcc, -1, v48\ns_cbranch_vccnz K3_poll')
    p('v_lshlrev_b32 v48, 16, v7\nv_and_b32 v49, 0xffff0000, v7')
    p('v_add_f32 v40, v40, v42\nv_add_f32 v44, v44, v46\nv_add_f32 v41, v41, v43\nv_add_f32 v45, v45, v47\nv_add_f32 v40, v40, v44\nv_add_f32 v41, v41, v45')
    p('v_add_f32 v40, v40, v48\nv_add_f32 v41, v41, v49\nv_cvt_pk_bf16_f32 v40, v40, v41')
    p('buffer_store_dword v40, v6, s[20:23], s44 offen')
    p('K3_end:\ns_endpgm')
    return finalize(p.L)

PLAN_G1 = {
    'lat_slots': [('S', 0, 1)],
    'start': [('F', 0, 0), ('F', 1, 1), ('L', 0, 2), ('L', 1, 3)],
    'pull': [('L', 2, 4)],
    **{f'lat{k}': [('L', k+3, 2+(k+3) % 4)] for k in range(9)},
    'lat9': [('A',), ('X', 0, 2)], 'lat10': [('X', 1, 3)], 'lat11': [],
    'epi': [('X', 2, 4)],
    'm-1': [('X', 3, 5)],
    'm1': [('X', 4, 2)], 'm2': [('X', 5, 3)], 'm3': [('X', 6, 4)],
    'm4': [('X', 7, 5), ('V', 0), ('V', 1)], 'm5': [('V', 2), ('V', 3), ('V', 4)], 'm6': [('V', 5), ('V', 6)],
    'm7': [('V', 7), ('V', 8), ('V', 9)], 'proj': [('V', 10), ('V', 11)],
}

def build(fn, plan=PLAN_G1, stamps=False):
    hdr = open('standalone__detection_seg_mask2former__vision.s.ref').read().split('\n')
    hdr = [l for l in hdr if l.startswith(';') and '@launch' not in l and 'Override launch' not in l and 'grid=ceil' not in l]
    s = '\n'.join(hdr) + '\n'
    s += '; @launch kernel=m2f_pro_kernel grid=(144,1,1) block=(256,1,1) lds=8192\n'
    s += '; @launch kernel=m2f_main_kernel grid=(256,1,1) block=(256,1,1) lds=163840\n'
    s += '; @launch kernel=m2f_fin_kernel grid=(64,1,1) block=(256,1,1) lds=16384\n'
    s += '.amdgcn_target "amdgcn-amd-amdhsa--gfx950"\n.text\n'
    s += head('m2f_pro_kernel') + emit(gen_k1())
    s += head('m2f_main_kernel') + emit(gen_k2(plan, stamps))
    s += head('m2f_fin_kernel') + emit(gen_k3())
    s += '.section .rodata,"a"\n.p2align 6\n' + kd('m2f_pro_kernel', 168, 168) + '.p2align 6\n' + kd('m2f_main_kernel', 512, 256) + '.p2align 6\n' + kd('m2f_fin_kernel', 208, 208)
    open(fn, 'w').write(s)

if __name__ == '__main__':
    build('standalone__detection_seg_mask2former__vision.s')
    build('k_st.s', stamps=True)
```

```python
import re

def regs_of(tok):
    tok = tok.strip()
    tok = tok.lstrip('-')
    if tok.startswith('abs(') or tok.startswith('|'):
        tok = tok.replace('abs(', '').replace(')', '').replace('|', '')
    m = re.fullmatch(r'([vas])\[(\d+):(\d+)\]', tok)
    if m:
        return [f'{m.group(1)}{i}' for i in range(int(m.group(2)), int(m.group(3))+1)]
    if re.fullmatch(r'[vas]\d+', tok):
        return [tok]
    if tok in ('vcc',): return ['vcc']
    if tok in ('exec',): return ['exec']
    if tok == 'm0': return ['m0']
    return []

TRANS = ('v_exp_f32', 'v_log_f32', 'v_rcp_f32', 'v_rsq_f32', 'v_sqrt_f32')

class I:
    __slots__ = ('text', 'op', 'R', 'W', 'kind', 'tag', 'prio', 'idx', 'extra')
    def __init__(self, text, R=(), W=(), tag=None, kind=None, private=False):
        self.text = text.strip()
        self.tag = tag
        self.extra = None
        t = self.text
        op = t.split()[0]
        self.op = op
        rest = t[len(op):].strip()
        ops = [x.strip() for x in rest.split(',')] if rest else []
        mods = ''
        if ops:
            last = ops[-1].split()
            ops[-1] = last[0] if last else ''
            mods = ' '.join(last[1:])
        r, w = [], []
        k = None
        if op.startswith('v_mfma'):
            k = 'mfma'; w += regs_of(ops[0]); r += regs_of(ops[1]) + regs_of(ops[2]) + regs_of(ops[3])
            self.extra = (regs_of(ops[0]), regs_of(ops[1]) + regs_of(ops[2]), regs_of(ops[3]))
        elif op.startswith('ds_read') or op.startswith('ds_bpermute'):
            k = 'dsr'; w += regs_of(ops[0])
            for o in ops[1:]: r += regs_of(o)
        elif op.startswith('ds_'):
            k = 'dsw'
            for o in ops: r += regs_of(o)
        elif op.startswith('buffer_load') or op.startswith('global_load'):
            if 'lds' in mods.split() or '_lds_' in op:
                k = 'dma'
                for o in ops: r += regs_of(o)
                r.append('m0')
            else:
                k = 'vld'; w += regs_of(ops[0])
                for o in ops[1:]: r += regs_of(o)
        elif op.startswith('buffer_store') or op.startswith('global_store') or op.startswith('global_atomic') or op.startswith('buffer_atomic'):
            k = 'vst'
            for o in ops: r += regs_of(o)
            if op.startswith('buffer_store'): self.extra = regs_of(ops[0])
            elif op.startswith('global_store'): self.extra = regs_of(ops[1])
            if 'atomic' in op and 'sc0' in mods.split():
                k = 'vld'; w += regs_of(ops[0]); r = [x for x in r if x not in w]
        elif op.startswith('buffer_inv') or op.startswith('buffer_wbl2'):
            k = 'vst'
        elif op.startswith('v_cmp'):
            k = 'valu'; w += regs_of(ops[0])
            for o in ops[1:]: r += regs_of(o)
        elif op.startswith('v_permlane'):
            k = 'perm'; w += regs_of(ops[0]) + regs_of(ops[1]); r += regs_of(ops[0]) + regs_of(ops[1])
        elif op.startswith('v_'):
            k = 'trans' if op in TRANS else 'valu'
            w += regs_of(ops[0])
            for o in ops[1:]: r += regs_of(o)
            if op.startswith('v_fmac') or op.startswith('v_dot2c') or op.startswith('v_writelane'): r += regs_of(ops[0])
            if '_co_' in op:
                w += regs_of(ops[1]);
            if 'dpp' in op or 'row_' in mods or 'quad_perm' in mods:
                k = 'dpp'; r += regs_of(ops[0])
        elif op.startswith('s_'):
            k = 'salu'
            if op in ('s_waitcnt', 's_barrier', 's_nop', 's_endpgm', 's_branch', 's_sleep', 's_setprio'):
                k = 'ctl'
            elif op.startswith('s_cbranch'):
                k = 'ctl'
                r.append('scc' if 'scc' in op else ('vcc' if 'vcc' in op else 'exec'))
            elif op.startswith('s_cmp') or op.startswith('s_bitcmp'):
                w.append('scc')
                for o in ops: r += regs_of(o)
            elif op.startswith('s_load') or op.startswith('s_memrealtime') or op.startswith('s_memtime'):
                k = 'smem'; w += regs_of(ops[0])
                for o in ops[1:]: r += regs_of(o)
            else:
                w += regs_of(ops[0])
                for o in ops[1:]: r += regs_of(o)
                if not (op.startswith('s_mov') or op.startswith('s_mul') or op.startswith('s_cselect') or op.startswith('s_getpc') or op.startswith('s_getreg')):
                    w.append('scc')
                if op.startswith('s_cselect') or op.startswith('s_addc') or op.startswith('s_subb'):
                    r.append('scc')
                if 'saveexec' in op:
                    w.append('exec'); r.append('exec')
        elif op.endswith(':'):
            k = 'label'
        elif op in ('WAITV', 'WAITL', 'FENCE'):
            k = 'mark'
        elif op == 'BAR':
            k = 'bar'; w.append('EPOCH'); r.append('VM'); w.append('VM')
        else:
            k = 'other'
        if k in ('valu', 'trans', 'perm', 'dpp', 'mfma', 'dsr', 'dsw', 'dma', 'vld', 'vst'):
            r.append('exec')
        if k in ('dma', 'vld', 'vst'):
            r.append('VM'); w.append('VM')
        if k in ('dsr', 'dsw', 'dma') and not private:
            r.append('EPOCH')
        self.R = set(r) | set(R); self.W = set(w) | set(W)
        self.kind = kind or k
    def __repr__(self): return self.text

ISSUE = {'mfma': 8, 'trans': 8, 'perm': 8}
def issue_cost(i): return ISSUE.get(i.kind, 4)

DSLAT = 130
VLDLAT = 700
DSB128 = 14
DSTR = 8
VMGAP = 64
def dep_latency(p, c, reg, typ):
    if reg == 'VM': return 4
    if typ == 'RAW':
        if p.kind == 'dsr': return DSLAT
        if p.kind == 'dsw': return 60 if reg.startswith('L:') else 4
        if p.kind == 'vld': return VLDLAT
        if p.kind == 'mfma':
            if c.kind == 'mfma' and reg in c.extra[2] and c.extra[2] == p.extra[0]: return 16
            return 44
        if c.kind == 'mfma' and p.kind in ('valu', 'trans', 'perm', 'dpp'): return issue_cost(p)+8
        if p.kind == 'trans': return 12
        if c.kind in ('perm', 'dpp'): return issue_cost(p)+8
        if reg in ('vcc',) or reg.startswith('s'):
            if p.kind == 'valu' and c.kind in ('valu',): return 12
        return issue_cost(p)
    if typ == 'WAW':
        if p.kind == 'mfma' and c.kind != 'mfma': return 44
        if p.kind == 'dsr': return DSLAT
        return issue_cost(p)
    if p.kind == 'mfma' and c.kind in ('valu', 'trans', 'perm', 'dpp') and reg in p.extra[2]: return 20
    return issue_cost(p)

DSBASE = 70
BARCOST = 40
def ds_service(i):
    if i.kind == 'dsr': return SVB if 'b128' in i.op else SVT
    return 28 if 'b128' in i.op else 12
def schedule(insts, verbose=False):
    n = len(insts)
    preds = [dict() for _ in range(n)]
    lastw = {}; readers = {}
    def add(j, p, lat, comp):
        o = preds[j].get(p, (0, False))
        preds[j][p] = (max(o[0], lat), o[1] or comp)
    for j, c in enumerate(insts):
        for r in c.R:
            if r in lastw:
                p = lastw[r]; pi = insts[p]
                if r == 'EPOCH': add(j, p, BARCOST, False)
                elif r == 'VM': add(j, p, VMGAP if (c.kind in ('dma', 'vld', 'vst') and pi.kind in ('dma', 'vld', 'vst')) else 4, False)
                else: add(j, p, dep_latency(pi, c, r, 'RAW'), pi.kind in ('dsr', 'dsw'))
        for r in c.W:
            if r in lastw:
                p = lastw[r]
                if p != j: add(j, p, 4 if r in ('VM', 'EPOCH') else dep_latency(insts[p], c, r, 'WAW'), insts[p].kind == 'dsr' and r not in ('VM', 'EPOCH'))
            for p in readers.get(r, ()):
                if p != j:
                    if r == 'EPOCH': add(j, p, DSLAT if insts[p].kind in ('dsr', 'dsw') else 4, insts[p].kind in ('dsr', 'dsw'))
                    else: add(j, p, dep_latency(insts[p], c, r, 'WAR'), False)
        for r in c.R: readers.setdefault(r, []).append(j)
        for r in c.W:
            lastw[r] = j; readers[r] = []
    succs = [[] for _ in range(n)]
    for j in range(n):
        for p, (l, comp) in preds[j].items(): succs[p].append((j, l, comp))
    cp = [0]*n
    for j in range(n-1, -1, -1):
        cp[j] = max([l + cp[s] for s, l, _ in succs[j]] + [issue_cost(insts[j])])
        if getattr(insts[j], 'prio', None): cp[j] += insts[j].prio
    npred = [len(preds[j]) for j in range(n)]
    ready_t = [0]*n
    avail = [j for j in range(n) if npred[j] == 0]
    t = 0; mf_free = 0; out = []
    lds_done = 0; vm_free = 0; valu_done = 0
    last_mfma = False
    marks = []
    while avail:
        def start(j):
            s = max(t, ready_t[j])
            k = insts[j].kind
            if k == 'mfma': s = max(s, mf_free)
            if k in ('dsr', 'dsw'): s = max(s, lds_done - DSBASE - QMAX)
            if k in ('dma', 'vld', 'vst'): s = max(s, vm_free)
            if k in ('dsr', 'dsw', 'dma', 'vld', 'vst'): s = max(s, valu_done)
            return s
        now = [j for j in avail if start(j) <= t + 3]
        if now:
            sal = [j for j in now if insts[j].kind in ('salu',)]
            mem = [j for j in now if insts[j].kind in ('dsr', 'dsw', 'dma', 'vld', 'vst')]
            if mem and MEMFIRST: best = max(mem, key=lambda j: (cp[j], -j));
            if mem and MEMFIRST and not (sal and last_mfma) and cp[best] + MEMB >= max(cp[j] for j in now): pass
            elif sal and last_mfma: best = max(sal, key=lambda j: (cp[j], -j))
            else: best = max(now, key=lambda j: (cp[j] + (MFBONUS if insts[j].kind == 'mfma' else 0), -j))
        else:
            best = min(avail, key=lambda j: (start(j), -cp[j], j))
        s = start(best)
        i = insts[best]
        out.append(i); avail.remove(best); i.idx = s
        cost = issue_cost(i)
        if i.kind in ('salu', 'ctl', 'mark') and last_mfma: cost = 0
        if i.kind == 'bar': cost = 12; marks.append(s)
        t = s + cost
        done = None
        if i.kind == 'mfma': mf_free = s + 16
        if i.kind in ('dsr', 'dsw'):
            lds_done = max(s + DSBASE, lds_done) + ds_service(i); done = lds_done
        if i.kind in ('dma', 'vld', 'vst'): vm_free = s + VMGAP
        if i.kind in ('valu', 'trans', 'perm', 'dpp'): valu_done = t + 8
        last_mfma = (i.kind == 'mfma')
        for sj, l, comp in succs[best]:
            ready_t[sj] = max(ready_t[sj], (done + 4) if (comp and done) else s + l)
            npred[sj] -= 1
            if npred[sj] == 0: avail.append(sj)
    assert len(out) == n
    if verbose:
        import sys; print('bar times', [b-a for a, b in zip([0]+marks, marks+[t])], 'total', t, file=sys.stderr)
    return out, t
QMAX = 30
SVB = 18
SVT = 10
MEMFIRST = True
MEMB = 10000
MFBONUS = 0

SAFE = 150
def insert_waits(insts):
    out = []
    ds = []
    vm = []
    t = 0; mf = 0
    for i in insts:
        needl = None; needv = None
        touch = i.R | i.W
        for k, d in enumerate(ds):
            if d[0] & touch: needl = len(ds)-1-k
        for k, (d, tag) in enumerate(vm):
            if d & (i.R if i.kind == 'vld' else touch): needv = len(vm)-1-k
        if i.op == 'WAITL':
            if ds: needl = 0
        if i.op == 'BAR':
            for k, d in enumerate(ds):
                if d[3]: needl = len(ds)-1-k
            tags = i.text.split()[1:]
            for k, (d, tag) in enumerate(vm):
                if tag in tags or 'ALL' in tags: needv = len(vm)-1-k
        if i.op == 'WAITV':
            tags = i.text.split()[1:]
            for k, (d, tag) in enumerate(vm):
                if tag in tags or 'ALL' in tags: needv = len(vm)-1-k
        if needl is not None and needv is None and i.kind not in ('mark', 'bar'):
            j = len(out)-1; nds = 0; steps = 0
            while j >= 0 and out[j].kind in ('valu', 'trans', 'dsr', 'dsw', 'dma', 'vld', 'salu') and steps < 3:
                if out[j].kind in ('dsr', 'dsw'): nds += 1
                j -= 1; steps += 1
            need_el = ds[len(ds)-1-needl]
            if j >= 0 and out[j].kind == 'mfma' and steps > 0 and needl - nds >= 0 and need_el[2] < j and t - 4*steps - need_el[1] >= SAFE - 30:
                k = len(ds)-1-needl
                while k+1 < len(ds)-nds and t - 4*steps - ds[k+1][1] >= SAFE: k += 1
                n2 = len(ds)-1-k
                out.insert(j+1, I(f's_waitcnt lgkmcnt({min(n2-nds,15)})'))
                ds = [(a, b, c+1 if c > j else c, e) for a, b, c, e in ds[k+1:]]
                needl = None
        if needl is not None:
            k = len(ds)-1-needl
            while k+1 < len(ds) and t - ds[k+1][1] >= SAFE: k += 1
            needl = len(ds)-1-k
            t = max(t, ds[k][1] + DSLAT - 30)
        parts = []
        if needv is not None:
            parts.append(f'vmcnt({min(needv,63)})'); vm = vm[len(vm)-needv:] if needv else []
        if needl is not None:
            parts.append(f'lgkmcnt({min(needl,15)})'); ds = ds[len(ds)-needl:] if needl else []
        if parts:
            if out and out[-1].op == 's_waitcnt' and getattr(out[-1], 'tag', None) == 'auto' and not any(x.split('(')[0] in out[-1].text for x in parts):
                out[-1] = I(out[-1].text + ' ' + ' '.join(parts), tag='auto')
            else:
                out.append(I('s_waitcnt ' + ' '.join(parts), tag='auto')); t += 4
        if i.kind == 'mark': continue
        if i.kind == 'bar':
            out.append(I('s_barrier')); t += 30
            if i.extra: out += i.extra
            continue
        if i.op == 's_waitcnt':
            m = re.search(r'vmcnt\((\d+)\)', i.text)
            if m: nn = int(m.group(1)); vm = vm[len(vm)-nn:] if nn and nn < len(vm) else ([] if nn == 0 else vm)
            m = re.search(r'lgkmcnt\((\d+)\)', i.text)
            if m: nn = int(m.group(1)); ds = ds[len(ds)-nn:] if nn and nn < len(ds) else ([] if nn == 0 else ds)
        out.append(i)
        if i.kind == 'mfma':
            t = max(t, mf); mf = t + 16
        if i.kind == 'dsr': ds.append(({r for r in i.W if not r.startswith('L:')}, t, len(out)-1, 'EPOCH' in i.R))
        elif i.kind == 'dsw': ds.append((set(), t, len(out)-1, 'EPOCH' in i.R))
        elif i.kind == 'vld': vm.append(({r for r in i.W if r != 'VM'}, i.tag))
        elif i.kind in ('dma', 'vst'): vm.append((set(), i.tag))
        t += issue_cost(i)
    return out

VALUK = ('valu', 'trans', 'perm', 'dpp')
def insert_hazards(insts):
    out = []
    def states_since(pred):
        d = 0
        for p in reversed(out):
            if p.kind == 'label' and not p.text.startswith('C_'):
                return
            if p.kind == 'label': continue
            yield d, p
            d += (int(p.text.split()[1])+1) if p.op == 's_nop' else 1
            if d > 24: return
    for c in insts:
        need = 0
        if c.kind not in ('label', 'other'):
            for d, p in states_since(None):
                req = 0
                vw = {r for r in p.W if r[0] in 'va' and r not in ('vcc',) and r != 'VM'}
                if p.kind in VALUK:
                    if c.kind == 'mfma' and vw & c.R: req = max(req, 2)
                    if c.kind in ('perm', 'dpp') and vw & c.R: req = max(req, 2)
                    if c.op.startswith('v_readlane') or c.op.startswith('v_readfirstlane'):
                        if vw & c.R: req = max(req, 1)
                    if p.kind == 'trans' and c.kind in ('valu', 'perm', 'dpp') and vw & c.R: req = max(req, 1)
                    sw = {r for r in p.W if r[0] == 's' or r == 'vcc'} - {'scc'}
                    if sw & c.R:
                        if c.kind in VALUK: req = max(req, 2)
                        if c.kind in ('dma', 'vld', 'vst'): req = max(req, 5)
                        if c.kind in ('salu', 'ctl', 'smem'): req = max(req, 1)
                    if 'exec' in p.W:
                        req = max(req, 5)
                if p.kind == 'mfma':
                    D = set(p.extra[0])
                    if c.kind == 'mfma':
                        if D & set(c.extra[1]): req = max(req, 8)
                        if D & set(c.extra[2]) and c.extra[2] != p.extra[0]: req = max(req, 6)
                        if D & set(c.extra[0]) and c.extra[2] != p.extra[0]: req = max(req, 6)
                    elif c.kind in VALUK + ('dsr', 'dsw', 'dma', 'vld', 'vst'):
                        if D & (c.R | c.W): req = max(req, 8)
                    if c.kind in VALUK + ('dsr', 'vld') and set(p.extra[2]) & c.W: req = max(req, 3)
                if p.kind == 'salu' and 'm0' in p.W and c.kind == 'dma': req = max(req, 1)
                if p.kind == 'vst' and p.extra and len(p.extra) >= 3 and set(p.extra) & c.W: req = max(req, 2)
                if req - d > need: need = req - d
        while need > 0:
            k = min(need, 16)
            out.append(I(f's_nop {k-1}')); need -= k
        out.append(c)
    return out

def finalize(insts):
    return insert_hazards(insert_waits(insts))

def emit(insts):
    return '\n'.join(i.text for i in insts) + '\n'
```

```python
import sys, math, struct
import asmlib
from asmlib import *

KN = 'standalone__detection_seg_mask2former__vision_kernel'
WS_A = 0
WS_EPOCH = 0xD000
WS_HF = 0x58000
WS_TF = 0x78000
WS_VT = 65536
WS_XCH = 0x60000
WS_PART = 0x80000
WS_SIZE = WS_PART + 256*16384
STAMP_OFF = 128 << 20
SLOT = 24576
STAT = 147456; DUMMY = STAT+2048; BC = STAT+2048+4096; SCR = BC+1024
LOG2E = 1.4426950408889634
def f2u(x): return struct.unpack('<I', struct.pack('<f', x))[0]
THR = 10.0
SPIN = 1 << 20
STAMPOP = 's_memrealtime'

HEADST = False
def SB(k): return [60, 62, 100, 66, 68, 70, 78, 82, 84, 86, 64, 72, 74, 76, 80, 88, 90, 92][k] if HEADST else 60+2*k
class Prog:
    def __init__(self): self.L = []
    def __call__(self, t, **kw):
        r = []
        for line in t.split('\n'):
            if line.strip():
                i = I(line, **kw); self.L.append(i); r.append(i)
        return r[-1]
    def ext(self, l): self.L += l

def vr(b, n=1): return f'v{b}' if n == 1 else f'v[{b}:{b+n-1}]'
def ar(b, n=1): return f'a{b}' if n == 1 else f'a[{b}:{b+n-1}]'
def mfma(d, a, b, c): return f'v_mfma_f32_16x16x32_bf16 {d}, {a}, {b}, {c}'
def srd(p, s, lo, size):
    p(f's_mov_b32 s{s}, s{lo}\ns_mov_b32 s{s+1}, s{lo+1}\ns_mov_b32 s{s+2}, {size}\ns_mov_b32 s{s+3}, 0x20000')
class RA:
    def __init__(self, start): self.n = start
    def __call__(self, k=1, al=1):
        self.n = (self.n+al-1)//al*al
        b = self.n; self.n += k; return b
def allred(z, op, a, t):
    z(f'v_mov_b32 v{t}, v{a}\nv_permlane32_swap_b32 v{a}, v{t}\n{op} v{a}, v{a}, v{t}')
    z(f'v_mov_b32 v{t}, v{a}\nv_permlane16_swap_b32 v{a}, v{t}\n{op} v{a}, v{a}, v{t}')

def gen(plan, stamps=False):
    v = RA(1)
    DX = v(6); Q = v(4); P = v(8); SW = v(); SR = v(); BW = v(); BR = v(); VL = v()
    NM = v(); LS = v(); SA = v()
    T = v(12, 4)
    SACC = [v(8, 4), v(8, 4)]; S2 = v(8, 4); S1 = v(8, 4); SLO = v(4, 4); YY = v(4, 4); Y1 = v(4, 4); Y = v(12, 4)
    PL = v(8, 4); PP = v(8, 4); PK = v(4, 4); RS = v(8, 4); MU = v(8, 4)
    VV = v(24, 4); PKL = v(4, 4)
    print('vgpr used', v.n, file=sys.stderr)
    U = 160
    assert v.n <= U, v.n
    DL = SACC[0]; LT = S2
    AF = [SLO, SLO+24]
    assert AF[1]+24 <= MU
    AA = 0; ONES = 48; XF = 52; NXF = 6; TR = 76; NTR = 8; VA = 108; BF = [TR, TR+16]; JUNK = 252
    def vloc(ks):
        if ks < 6: return ('a', VA+24*ks)
        if ks == 6: return ('v', VV)
        if ks == 7: return ('a', 0)
        if ks == 8: return ('a', 24)
        if ks == 9: return ('a', XF)
        if ks == 10: return ('a', TR)
        return ('v', SACC[0])
    def blk(loc, i, n=4): return (ar if loc[0] == 'a' else vr)(loc[1]+i, n)
    names = []
    def stampi(name):
        if stamps and (stamps is True or name in stamps):
            if name not in names: names.append(name)
            k = names.index(name); assert k < 20
            return [I(f'{STAMPOP} s[{SB(k)}:{SB(k)+1}]')]
        return []
    plans = plan; plan = plans[0]
    def dma(q, kind, n, slot):
        srdn, base, off, fl, vo = {'F': (16, 's25', n*SLOT, ' nt', DL), 'L': (20, 's24', n*SLOT, '', DL),
                                   'X': (12, 's26', (n % 2)*196608 + (n//2)*SLOT, ' nt', DX)}[kind]
        tag = f'{kind}{n}'
        q(f's_add_u32 s49, {base}, {off}')
        q(f's_add_u32 m0, s24, {slot*SLOT}')
        for i in range(6):
            if i == 4: q(f's_add_u32 m0, s24, {slot*SLOT+4096}')
            q(f'buffer_load_dwordx4 v{vo+i}, s[{srdn}:{srdn+3}], s49 offen offset:{1024*(i%4)}{fl} lds', tag=tag)
    def loadA(q):
        q('s_mul_i32 s50, s3, 12288')
        for a_ in range(4):
            q(f's_xor_b32 s51, s3, {a_}\ns_lshl_b32 s51, s51, 10\ns_add_u32 s51, s51, s50')
            for G in range(3):
                if G: q('s_add_u32 s51, s51, 4096')
                q(f'buffer_load_dwordx4 {ar(AA+4*(3*a_+G),4)}, v{VL}, s[28:31], s51 offen sc1', tag='A')
    def loadV(q, ks):
        loc = vloc(ks)
        q(f's_add_u32 s52, s27, {6144*ks}')
        for dt in range(6):
            if dt == 4: q('s_add_u32 s52, s52, 4096')
            q(f'buffer_load_dwordx4 {blk(loc,4*dt)}, v{VL}, s[28:31], s52 offen offset:{1024*(dt%4)} sc1', tag=f'V{ks}')
    slow = Prog()
    def issue(q, name, prio=None, plan=None, sfx=''):
        n0 = len(q.L)
        for it in plan.get(name, []):
            if it[0] == 'A': loadA(q)
            elif it[0] == 'V': loadV(q, it[1])
            elif it[0] == 'POLL': q(f'buffer_load_dword v{T}, v{NM}, s[28:31], 0 offen sc1')
            elif it[0] == 'CHECK':
                q(f'v_cmp_ne_u32 vcc, s38, v{T}')
                br = q(f's_cbranch_vccnz POLL{sfx}', R=['VM', f'v{T}'], W=['VM', f'v{T}', 's58', 'scc', 'vcc'])
                br.text += f'\nC_POLL{sfx}:'
                slow(f'POLL{sfx}:\ns_mov_b32 s58, {SPIN}\nPOLL1{sfx}:\ns_sleep 2\nbuffer_load_dword v{T}, v{NM}, s[28:31], 0 offen sc1\ns_sub_u32 s58, s58, 1\ns_cbranch_scc1 C_POLL{sfx}\ns_waitcnt vmcnt(0)\nv_cmp_ne_u32 vcc, s38, v{T}\ns_cbranch_vccnz POLL1{sfx}\ns_branch C_POLL{sfx}')
            elif it[0] == 'GO':
                q(f'v_mov_b32 v{LS}, 0\nv_mov_b32 v{T+1}, s38')
                q(f's_mov_b64 exec, 1\nbuffer_store_dword v{T+1}, v{LS}, s[28:31], s97 offen sc0 sc1\ns_mov_b64 exec, -1')
            elif it[0] == 'TOUCHV':
                q(f's_add_u32 s52, s43, {WS_VT}')
                for i in range(3): q(f'buffer_load_dwordx3 {ar(JUNK,3)}, v{VL}, s[28:31], s52 offen offset:{768*i} sc1', tag='pre')
            else: dma(q, *it)
        if prio:
            for i in q.L[n0:]: i.prio = prio

    p = Prog()
    p('s_getpc_b64 s[40:41]')
    p('s_load_dwordx16 s[64:79], s[0:1], 0\ns_load_dwordx8 s[80:87], s[0:1], 64')
    p(f's_lshr_b32 s42, s2, 3\ns_and_b32 s43, s42, {plan.get("codemask", 31)}\ns_lshl_b32 s43, s43, 12\ns_min_u32 s43, s43, CODE_LIM')
    p(f'v_lshl_add_u32 v{T}, v0, 4, s43')
    p(f'global_load_dwordx4 {ar(JUNK,4)}, v{T}, s[40:41]', tag='pre')
    p('s_cmp_ge_u32 s2, 256\ns_cbranch_scc1 K_end')
    p.ext(stampi('start'))
    p('v_lshrrev_b32 v1, 6, v0\nv_and_b32 v0, 63, v0')
    p('v_readfirstlane_b32 s3, v1')
    p(f'v_lshlrev_b32 v{VL}, 4, v0\nv_min_u32 v{NM}, 29, v0\nv_lshlrev_b32 v{NM}, 7, v{NM}')
    p('s_and_b32 s45, s3, 1\ns_mul_i32 s46, s45, 9\ns_movk_i32 s47, 1366\ns_movk_i32 s48, 768')
    for i in range(3):
        t0, t1, t2 = T+1, T+2, T+3
        p(f'v_add_u32 v{t0}, {64*i}, v0' if i else f'v_mov_b32 v{t0}, v0')
        p(f'v_mul_u32_u24 v{t1}, s47, v{t0}\nv_lshrrev_b32 v{t1}, 16, v{t1}')
        p(f'v_mul_u32_u24 v{t2}, 48, v{t1}\nv_sub_u32 v{t0}, v{t0}, v{t2}')
        p(f'v_lshlrev_b32 v{t2}, 1, v{t1}\nv_xor_b32 v{t2}, s46, v{t2}\nv_xor_b32 v{t0}, v{t0}, v{t2}')
        p(f'v_lshlrev_b32 v{t0}, 4, v{t0}\nv_mul_u32_u24 v{t1}, s48, v{t1}\nv_add_u32 v{t0}, v{t0}, v{t1}')
        p(f'v_subrev_u32 v{DL+i}, {1024*i}, v{t0}' if i else f'v_mov_b32 v{DL+i}, v{t0}')
        p(f'v_add_u32 v{DX+i}, v{t1}, v{DL+i}')
        p(f'v_xor_b32 v{t0}, 128, v{t0}\nv_add_u32 v{DL+i+3}, {3072-1024*((i+3)%4)}, v{t0}\nv_add3_u32 v{DX+i+3}, v{t1}, v{DL+i+3}, s48')
        p(f'v_add_u32 v{DX+i+3}, 2304, v{DX+i+3}')
    m_, g_, F_, t_ = T, T+1, T+2, T+3
    p(f'v_and_b32 v{m_}, 15, v0\nv_lshrrev_b32 v{g_}, 4, v0')
    p('s_lshr_b32 s57, s2, 4\ns_lshl_b32 s57, s57, 3\ns_and_b32 s44, s2, 7\ns_or_b32 s57, s57, s44')
    p('s_mul_i32 s24, s3, 6144')
    p('s_mul_i32 s25, s2, 49152\ns_add_u32 s25, s25, s24')
    p('s_lshr_b32 s26, s2, 1\ns_mul_i32 s26, s26, 393216\ns_and_b32 s27, s2, 1\ns_mul_i32 s27, s27, 98304\ns_add_u32 s26, s26, s27')
    p('s_mul_i32 s27, s45, 12288\ns_add_u32 s26, s26, s27\ns_lshr_b32 s27, s3, 1\ns_mul_i32 s27, s27, 768\ns_add_u32 s26, s26, s27')
    p(f's_mul_i32 s27, s3, 73728\ns_add_u32 s27, s27, {WS_VT}')
    p('s_mul_i32 s43, s42, 9216\ns_mul_i32 s44, s3, 2304\ns_add_u32 s43, s43, s44')
    p('s_waitcnt lgkmcnt(0)')
    srd(p, 12, 66, 50331648); srd(p, 16, 68, 12582912); srd(p, 20, 70, 294912); srd(p, 28, 86, WS_SIZE)
    p(f's_load_dword s38, s[86:87], {WS_EPOCH}')
    p(f's_lshl_b32 s50, s3, 12\ns_add_u32 s50, s50, {WS_HF}\nv_add_u32 v{NM}, s50, v{NM}')
    p.ext(stampi('karg'))
    for i in range(3): p(f'buffer_load_dwordx3 {ar(JUNK,3)}, v{VL}, s[20:23], s43 offen offset:{768*i}', tag='pre')
    p(f's_mov_b32 s97, {WS_SIZE}\ns_bitcmp1_b32 s2, 3\ns_cbranch_scc0 H_none')
    p('s_cmp_ge_u32 s57, 120\ns_cbranch_scc1 H_none2\ns_cmp_ge_u32 s57, 96\ns_cbranch_scc1 H_v')

    def late(p, n):
        for it in plan['start'][n:]: dma(p, *it)
    def setup(p, n=99):
        for it in plan['start'][:min(n, 2)]: dma(p, *it)
        setup2(p)
        for it in plan['start'][2:n]: dma(p, *it)
    def setup2(p):
        def fswz(dst, m):
            p(f'v_lshrrev_b32 v{t_}, 3, v{m}\nv_mul_u32_u24 v{t_}, 9, v{t_}\nv_and_b32 v{dst}, 7, v{m}\nv_lshlrev_b32 v{dst}, 1, v{dst}\nv_xor_b32 v{dst}, v{dst}, v{t_}')
        fswz(F_, m_)
        p(f'v_xor_b32 v{t_}, v{g_}, v{F_}\nv_lshlrev_b32 v{t_}, 4, v{t_}\nv_mad_u32_u24 v{Q}, v{m_}, s48, v{t_}')
        for a_ in range(1, 4): p(f'v_xor_b32 v{Q+a_}, {64*a_}, v{Q}')
        p(f'v_and_b32 v{t_}, 1, v{g_}\nv_lshlrev_b32 v{t_}, 3, v{t_}\nv_mad_u32_u24 v{MU}, v{m_}, s48, v{t_}\nv_mov_b32 v{MU+1}, v{F_}\nv_lshrrev_b32 v{MU+2}, 1, v{g_}')
        p(f'v_lshrrev_b32 v{t_}, 2, v{m_}\nv_cmp_eq_u32 vcc, v{t_}, v{g_}')
        p(f's_lshl_b32 s50, s3, 3\ns_add_u32 s50, s50, {STAT}\ns_lshl_b32 s51, s3, 9\ns_add_u32 s51, s51, {DUMMY}')
        p(f'v_lshl_add_u32 v{SW}, v{m_}, 5, s50\nv_lshl_add_u32 v{t_}, v0, 3, s51\nv_cndmask_b32 v{SW}, v{t_}, v{SW}, vcc')
        p(f'v_and_b32 v{t_}, 31, v0\nv_lshlrev_b32 v{SR}, 5, v{t_}\nv_add_u32 v{SR}, {STAT}, v{SR}')
        p(f's_lshl_b32 s50, s3, 8\ns_add_u32 s50, s50, {BC}\nv_lshl_add_u32 v{BW}, v{t_}, 2, s50\nv_lshl_add_u32 v{BR}, v{g_}, 4, s50')
        p(f'v_and_b32 v{t_}, 3, v0')
        for j in range(1, 4): p(f'v_cmp_eq_u32 s[{30+2*j}:{31+2*j}], {j}, v{t_}')
        r_, b_ = T+4, T+5
        p(f'v_lshrrev_b32 v{r_}, 2, v{m_}\nv_lshl_add_u32 v{r_}, v{g_}, 2, v{r_}')
        p(f'v_bfe_u32 v{b_}, v0, 1, 1\nv_and_b32 v{T+6}, 1, v0\nv_lshlrev_b32 v{T+6}, 3, v{T+6}')
        fswz(F_, r_)
        p(f'v_xor_b32 v{t_}, v{b_}, v{F_}\nv_lshl_add_u32 v{t_}, v{t_}, 4, v{T+6}\nv_mad_u32_u24 v{P}, v{r_}, s48, v{t_}')
        for x in range(1, 8): p(f'v_xor_b32 v{P+x}, {32*x}, v{P}')
        p('s_mul_i32 s50, s3, 12')
        for e in range(2):
            p(f'v_lshrrev_b32 v{r_}, 2, v{m_}\nv_lshl_add_u32 v{r_}, v{g_}, 3, v{r_}')
            if e: p(f'v_add_u32 v{r_}, 4, v{r_}')
            p(f'v_and_b32 v{T+7}, 15, v{r_}')
            fswz(F_, T+7)
            p(f'v_mad_u32_u24 v{T+7}, v{r_}, s48, v{T+6}')
            p(f'v_add_u32 v{T+7}, {2*SLOT}, v{T+7}')
            for t in range(6):
                p(f'v_add_u32 v{t_}, s50, v{b_}' if t == 0 else f'v_add3_u32 v{t_}, s50, v{b_}, {2*t}')
                p(f'v_xor_b32 v{t_}, v{t_}, v{F_}\nv_lshl_add_u32 v{LT+2*t+e}, v{t_}, 4, v{T+7}')
    head0 = finalize(p.L)
    p = Prog(); p('H_none:'); setup(p); h_none = finalize(p.L)
    plan = plans[1]
    p = Prog(); p('H_none2:'); setup(p); p('s_branch H_join'); h_none2 = finalize(p.L)
    p = Prog(); p('H_a:')
    srd(p, 4, 64, 12288); srd(p, 8, 72, 294912); srd(p, 52, 74, 294912); srd(p, 88, 80, 294912)
    p('s_bfe_u32 s40, s57, 0x20001\ns_and_b32 s41, s57, 1\ns_mul_i32 s41, s41, 12\ns_lshr_b32 s44, s57, 3\ns_add_u32 s41, s41, s44')
    p('s_mul_i32 s50, s44, 43\ns_lshr_b32 s50, s50, 7\ns_mul_i32 s50, s50, 3\ns_sub_u32 s44, s44, s50')
    for pp in range(3):
        p(f's_add_u32 s{92+pp}, s44, {pp}\ns_sub_u32 s50, s{92+pp}, 3\ns_cselect_b32 s{92+pp}, s{92+pp}, s50')
    X0 = U
    WM = X0+8; D1 = X0+32; WF = X0+56; MF = X0+68; D2 = X0+80
    LQ = STAT; LK = LQ+12288; LW = 3*SLOT
    p(f's_mul_i32 s44, s40, 73728\ns_mul_i32 s50, s41, 3072\ns_add_u32 s50, s50, s44\ns_min_u32 s51, s3, 2\ns_lshl_b32 s51, s51, 10\ns_add_u32 s50, s50, s51\ns_add_u32 m0, s51, {LK}')
    p(f'buffer_load_dwordx4 v{VL}, s[52:55], s50 offen lds', tag='tq')
    p(f's_mul_i32 s96, s3, 3072\ns_add_u32 s96, s96, {LQ}\ns_mov_b32 m0, s96\ns_mul_i32 s50, s3, 192\ns_movk_i32 s51, 5462')
    for i in range(3):
        p(f'v_add_u32 v{X0}, {64*i}, v0\nv_mul_u32_u24 v{X0+1}, s51, v{X0}\nv_lshrrev_b32 v{X0+1}, 16, v{X0+1}\nv_mul_u32_u24 v{X0+1}, 576, v{X0+1}\nv_add_u32 v{X0+2+i}, v{X0+1}, v{VL}')
        p(f'buffer_load_dwordx4 v{X0+2+i}, s[4:7], s50 offen offset:{1024*i} lds', tag='tq')
    def addrs_a(p):
        p(f'v_lshrrev_b32 v{X0+6}, 1, v{g_}\nv_lshlrev_b32 v{X0+6}, 8, v{X0+6}\nv_lshl_add_u32 v{X0+6}, v{m_}, 4, v{X0+6}\nv_and_b32 v{X0+7}, 1, v{g_}\nv_lshl_add_u32 v{X0+6}, v{X0+7}, 3, v{X0+6}')
        p(f'v_mul_u32_u24 v{X0+3}, 192, v{m_}\nv_lshl_add_u32 v{X0+3}, v{g_}, 4, v{X0+3}')
        p(f'v_mul_u32_u24 v{X0+4}, 192, v{m_}\nv_lshl_add_u32 v{X0+4}, v{g_}, 3, v{X0+4}\nv_add_u32 v{X0+95}, {LK}, v{X0+3}')
    p('s_mul_i32 s98, s3, 18432\ns_add_u32 s44, s44, s98')
    p(f'v_mul_u32_u24 v{X0+5}, 3072, v{g_}\nv_lshl_add_u32 v{X0+5}, v{m_}, 1, v{X0+5}')
    p('s_mul_i32 s95, s3, 73728\ns_lshl_b32 s50, s41, 5\ns_add_u32 s95, s95, s50')
    p.ext(stampi('a_q'))
    for pp in range(3):
        p(f's_mul_i32 s59, s{92+pp}, 6144\ns_add_u32 s50, s44, s59\ns_add_u32 s59, s59, s98\ns_add_u32 m0, s59, {LW}')
        for i in range(6):
            if i == 4: p(f's_add_u32 m0, s59, {LW+4096}\ns_add_u32 s50, s50, 4096')
            p(f'buffer_load_dwordx4 v{VL}, s[8:11], s50 offen offset:{1024*(i%4)} lds', tag='tw')
        p(f's_mul_i32 s50, s{92+pp}, 24576\ns_add_u32 s50, s50, s95')
        for u in range(2):
            for r in range(4): p(f'buffer_load_ushort v{WM+8*pp+4*u+r}, v{X0+5}, s[88:91], s50 offen offset:{768*r}')
            if u == 0: p('s_add_u32 s50, s50, 12288')
        if pp == 0:
            p.ext(stampi('a_w'))
            addrs_a(p); setup2(p)
    p(f'v_mov_b32 v{X0}, -1\nv_lshlrev_b32 v{X0+1}, 2, v0\ns_lshl_b32 s44, s57, 10\ns_lshl_b32 s50, s3, 8\ns_add_u32 s44, s44, s50\ns_add_u32 s44, s44, {WS_XCH}')
    p(f'buffer_store_dword v{X0}, v{X0+1}, s[28:31], s44 offen sc0 sc1', tag='clean')
    p.ext(stampi('a_iss'))
    for it in plan['start'][:2]: dma(p, *it)
    p.ext(stampi('a_set'))
    p('WAITV tq tw\ns_barrier')
    p.ext(stampi('a_bar'))
    p0 = p; p = Prog()
    for ks in range(3): p(f'ds_read_b128 {ar(4*ks,4)}, v{X0+95} offset:{64*ks}')
    p(f's_mul_i32 s51, s3, 18432\ns_add_u32 s51, s51, {LW}')
    for pp in range(3):
        p(f's_mul_i32 s50, s{92+pp}, 6144\ns_add_u32 s50, s50, s51\nv_add_u32 v{X0+88+pp}, s50, v{X0+3}')
        p(f's_lshl_b32 s50, s{92+pp}, 6\ns_add_u32 s50, s50, s96\nv_add_u32 v{X0+92+pp}, s50, v{X0+4}')
        for t in range(2):
            for ks in range(3): p(f'ds_read_b128 {ar(12+24*pp+12*t+4*ks,4)}, v{X0+88+pp} offset:{3072*t+64*ks}')
        p(f'ds_read_b64 {ar(84+4*pp,2)}, v{X0+92+pp}\nds_read_b64 {ar(86+4*pp,2)}, v{X0+92+pp} offset:32')
    for t in range(6):
        for ks in range(3): p(mfma(vr(D1+4*t,4), ar(12+12*t+4*ks,4), ar(4*ks,4), '0' if ks == 0 else vr(D1+4*t,4)))
    for i in range(12): p(f'v_lshl_or_b32 v{MF+i}, v{WM+1+2*i}, 16, v{WM+2*i}')
    for s in range(3): p(mfma(vr(D2+4,4), vr(MF+4*s,4), ar(84+4*s,4), '0' if s == 0 else vr(D2+4,4)))
    for t in range(6): p(f'v_cvt_pk_bf16_f32 v{WF+2*t}, v{D1+4*t}, v{D1+4*t+1}\nv_cvt_pk_bf16_f32 v{WF+2*t+1}, v{D1+4*t+2}, v{D1+4*t+3}')
    for s in range(3): p(mfma(vr(D2,4), vr(WF+4*s,4), ar(84+4*s,4), '0' if s == 0 else vr(D2,4)))
    p(f's_mov_b32 s50, {f2u(96**-0.5*LOG2E):#x}\ns_mov_b32 s51, {f2u(384**-0.5*LOG2E):#x}')
    p(f'v_add_u32 v{X0+3}, s96, v{VL}')
    for r in range(4): p(f'v_mul_f32 v{D2+r}, s50, v{D2+r}\nv_fma_f32 v{D2+r}, s51, v{D2+4+r}, v{D2+r}')
    p0.ext(schedule(p.L)[0]); p = p0
    p.ext(stampi('a_cmp'))
    p(f'ds_write_b128 v{X0+3}, {vr(D2,4)}')
    p('WAITL\ns_barrier')
    p('s_cmp_eq_u32 s3, 0\ns_cbranch_scc0 H_a2')
    for w in range(4): p(f'ds_read_b128 {vr(D1+4*w,4)}, v{X0+3} offset:{3072*w}')
    for r in range(4): p(f'v_add_f32 v{D1+r}, v{D1+r}, v{D1+4+r}\nv_add_f32 v{D1+8+r}, v{D1+8+r}, v{D1+12+r}\nv_add_f32 v{D1+r}, v{D1+r}, v{D1+8+r}')
    p(f'v_cvt_pk_bf16_f32 v{D1}, v{D1}, v{D1+1}\nv_cvt_pk_bf16_f32 v{D1+1}, v{D1+2}, v{D1+3}')
    p('s_mul_i32 s50, s40, 12288\ns_lshl_b32 s51, s41, 9\ns_add_u32 s50, s50, s51')
    p(f'buffer_store_dwordx2 {vr(D1,2)}, v{X0+6}, s[28:31], s50 offen sc0 sc1', tag='pub')
    p.ext(stampi('a_pub'))
    p(f's_lshl_b32 s97, s40, 12\ns_lshl_b32 s50, s41, 7\ns_add_u32 s97, s97, s50\ns_add_u32 s97, s97, {WS_HF}')
    p('H_a2:'); late(p, 2); p('s_branch H_join')
    h_a = finalize(p.L)
    p = Prog(); p('H_v:')
    srd(p, 8, 76, 294912)
    p('s_bfe_u32 s40, s57, 0x20001\ns_and_b32 s41, s57, 1\ns_mul_i32 s41, s41, 3\ns_lshr_b32 s44, s57, 3\ns_add_u32 s41, s41, s44\ns_sub_u32 s41, s41, 12')
    p(f'v_mul_u32_u24 v{X0+5}, 768, v{g_}\nv_lshl_add_u32 v{X0+5}, v{m_}, 1, v{X0+5}')
    p('s_mul_i32 s50, s40, 73728\ns_mul_i32 s51, s3, 18432\ns_add_u32 s50, s50, s51\ns_lshl_b32 s51, s41, 5\ns_add_u32 s50, s50, s51')
    for s in range(3):
        for u in range(2):
            for r in range(4): p(f'buffer_load_ushort v{WM+8*s+4*u+r}, v{X0+5}, s[8:11], s50 offen offset:{192*r}')
            p('s_add_u32 s50, s50, 3072')
    setup2(p)
    for it in plan['start'][:2]: dma(p, *it)
    for i in range(24): p(f'v_lshlrev_b32 v{WM+i}, 16, v{WM+i}')
    for i in range(0, 24, 4): p(f'v_add_f32 v{D1+i//2}, v{WM+i}, v{WM+i+1}\nv_add_f32 v{D1+i//2+1}, v{WM+i+2}, v{WM+i+3}')
    for i in range(1, 12): p(f'v_add_f32 v{D1}, v{D1}, v{D1+i}')
    allred(p, 'v_add_f32', D1, D1+1)
    p(f's_lshl_b32 s44, s3, 2\ns_add_u32 s44, s44, {SCR}\nv_and_b32 v{X0+3}, 15, v0\nv_lshlrev_b32 v{X0+3}, 4, v{X0+3}\nv_add_u32 v{X0+4}, s44, v{X0+3}\nv_add_u32 v{X0+3}, {SCR}, v{X0+3}')
    p(f'ds_write_b32 v{X0+4}, v{D1}\nWAITL\ns_barrier\nds_read_b128 {vr(D1+4,4)}, v{X0+3}')
    p(f's_mov_b32 s44, {f2u(1/384):#x}\nv_add_f32 v{D1+4}, v{D1+4}, v{D1+5}\nv_add_f32 v{D1+6}, v{D1+6}, v{D1+7}\nv_add_f32 v{D1+4}, v{D1+4}, v{D1+6}\nv_mul_f32 v{D1+4}, s44, v{D1+4}')
    for i in range(24): p(f'v_sub_f32 v{WM+i}, v{WM+i}, v{D1+4}')
    for i in range(12): p(f'v_cvt_pk_bf16_f32 v{WF+i}, v{WM+2*i}, v{WM+2*i+1}')
    p(f's_mul_i32 s50, s40, 73728\ns_mul_i32 s51, s3, 18432\ns_add_u32 s50, s50, s51\ns_lshl_b32 s51, s41, 10\ns_add_u32 s50, s50, s51\ns_add_u32 s50, s50, {WS_VT}')
    for s in range(3):
        p(f'buffer_store_dwordx4 {vr(WF+4*s,4)}, v{VL}, s[28:31], s50 offen sc0 sc1', tag='pub')
        if s < 2: p('s_add_u32 s50, s50, 6144')
    late(p, 2)
    p(f's_lshl_b32 s44, s40, 12\ns_lshl_b32 s50, s41, 7\ns_add_u32 s44, s44, s50\ns_add_u32 s44, s44, {WS_HF+24*128}\ns_cmp_eq_u32 s3, 0\ns_cselect_b32 s97, s44, s97\nWAITV pub\ns_branch H_join')
    h_v = finalize(p.L)

    issue0 = issue
    def mkbody(plan, sfx):
        slot_of = {}
        for name, its in plan.items():
            if not isinstance(its, list): continue
            for it in its:
                if it[0] in 'FLX': slot_of[f'{it[0]}{it[1]}'] = it[2]
        LATSLOT = plan['lat_slots']
        def issue(q, name, prio=None): issue0(q, name, prio, plan, sfx)
        q = Prog()
        pre = Prog()
        issue0(pre, 'start', None, plan, sfx)
        base = {'Q': 0, 'P': 0, 'LT': 2*SLOT}
        def rebase(which, off, span=SLOT):
            regs = {'Q': range(Q, Q+4), 'P': range(P, P+8), 'LT': range(LT, LT+12)}[which]
            if not (base[which] <= off and off+span <= base[which]+65536):
                nb = (off//(2*SLOT))*2*SLOT
                d = nb - base[which]
                for r in regs: q(f'v_add_u32 v{r}, {d & 0xffffffff:#x}, v{r}')
                base[which] = nb
            return off - base[which]
        def bar(waits, name):
            b = q('BAR ' + ' '.join(waits)); b.extra = stampi(name)
            if plan.get('dloop') and name == 'm1': b.extra = b.extra + [I('s_mov_b32 s58, 0')]
            if plan.get('dloop') and name == 'm2': b.extra = [I('C_DLOOP:')] + b.extra
            if plan.get('dloop') and name == 'm6': b.extra = [I('s_add_u32 s58, s58, 1'), I('s_cmp_lt_u32 s58, 3'), I('s_cbranch_scc1 C_DLOOP')] + b.extra
        DP = plan.get('dmaprio', 300)
        def lat_mfma(ks):
            for t in range(6):
                for pt in range(4):
                    d = vr(U+4*(4*t+pt), 4)
                    q(mfma(d, vr(AF[ks % 2]+4*t, 4), ar(BF[ks % 2]+4*pt, 4), '0' if ks == 0 else d))
        for ks in range(12):
            bar([f'L{ks}'] + (['F0', 'F1'] if ks == 0 else []), f'lat{ks}')
            issue(q, f'lat{ks}', DP)
            o = rebase('LT', slot_of[f'L{ks}']*SLOT)
            for pt in range(4):
                q(f'ds_read_b128 {ar(BF[ks%2]+4*pt,4)}, v{Q+ks%4} offset:{slot_of[f"F{pt//2}"]*SLOT+12288*(pt%2)+256*(ks//4)}')
            for t in range(6):
                for e in range(2): q(f'ds_read_b64_tr_b16 {vr(AF[ks%2]+4*t+2*e,2)}, v{LT+2*t+e} offset:{o}')
            lat_mfma(ks)
        bar([], 'epi')
        issue(q, 'epi', DP)
        q(f's_lshl_b32 s50, s3, 6')
        for a_ in range(4): q(f'v_xor_b32 v{Q+a_}, s50, v{Q+a_}')
        q('s_mul_i32 s50, s3, 12')
        for t in range(6):
            q(f'v_add3_u32 v{LT+t}, s50, v{MU+2}, {2*t}\nv_xor_b32 v{LT+t}, v{LT+t}, v{MU+1}\nv_lshl_add_u32 v{LT+t}, v{LT+t}, 4, v{MU}')
        for pt in range(4):
            for t in range(6):
                d = U+4*(4*t+pt); tm = T+2*((6*pt+t) % 6)
                q(f'v_cvt_pk_bf16_f32 v{tm}, v{d}, v{d+1}\nv_cvt_pk_bf16_f32 v{tm+1}, v{d+2}, v{d+3}')
                q(f'ds_write_b64 v{LT+t}, {vr(tm,2)} offset:{LATSLOT[pt//2]*SLOT+12288*(pt%2)}')
        q(f's_mov_b32 s50, 0x3f803f80')
        for i in range(4): q(f'v_accvgpr_write_b32 a{ONES+i}, s50')
        for j in range(12): q(mfma(vr(PP,4), ar(ONES,4), ar(AA+4*j,4), '0' if j == 0 else vr(PP,4)))
        q(f'v_mov_b32 v{SA}, v{PP}\nv_mov_b32 v{LS}, 0')
        q(f's_mov_b32 s53, {f2u(1/384):#x}\ns_mov_b32 s54, {f2u(1e-5):#x}\ns_mov_b32 s55, {f2u(THR):#x}\ns_mov_b32 s56, 0x00800080')
        xfc = [0]; trc = [0]
        def partA(k):
            if k % 2 == 0:
                pt = k//2
                o = rebase('Q', LATSLOT[pt//2]*SLOT) + 12288*(pt % 2)
                j = 0
                for a_ in range(4):
                    for G in range(3):
                        if a_ == 0: fr = vr(Y+4*G, 4)
                        else: fr = ar(XF+4*(xfc[0] % NXF), 4); xfc[0] += 1
                        q(f'ds_read_b128 {fr}, v{Q+a_} offset:{o+256*G}')
                        q(mfma(vr(SLO,4), fr, ar(AA+4*(3*a_+G),4), '0' if j == 0 else vr(SLO,4)))
                        if a_ == 0:
                            q(mfma(vr(YY,4), fr, fr, '0' if G == 0 else vr(YY,4)))
                            q(mfma(vr(Y1,4), fr, ar(ONES,4), '0' if G == 0 else vr(Y1,4)))
                        j += 1
                for i in range(12): q(f'v_add_u32 v{Y+i}, s56, v{Y+i}')
            o = rebase('Q', slot_of[f'X{k}']*SLOT)
            sa = SACC[k % 2]
            for a_ in range(4):
                for G in range(3):
                    for mt in range(2):
                        fr = ar(XF+4*(xfc[0] % NXF), 4); xfc[0] += 1
                        q(f'ds_read_b128 {fr}, v{Q+a_} offset:{o+256*G+12288*mt}')
                        d = vr(sa+4*mt, 4)
                        q(mfma(d, fr, ar(AA+4*(3*a_+G),4), vr(SLO,4) if (a_ == 0 and G == 0) else d))
                        if a_ == 0:
                            d2 = vr(S2+4*mt, 4); d1 = vr(S1+4*mt, 4)
                            q(mfma(d2, fr, fr, vr(YY,4) if G == 0 else d2))
                            q(mfma(d1, fr, ar(ONES,4), vr(Y1,4) if G == 0 else d1))
                            q(mfma(d2, fr, vr(Y+4*G,4), d2))
                if a_ == 0:
                    for mt in range(2):
                        for (src, dst) in ((S2+4*mt, T+8+2*mt), (S1+4*mt, T+9+2*mt)):
                            q(f'v_cndmask_b32 v{dst}, v{src}, v{src+1}, s[32:33]\nv_cndmask_b32 v{dst}, v{dst}, v{src+2}, s[34:35]\nv_cndmask_b32 v{dst}, v{dst}, v{src+3}, s[36:37]')
                        q(f'ds_write_b64 v{SW}, {vr(T+8+2*mt,2)} offset:{1024*(k%2)+512*mt}')
        def pv(off, breg, first=False):
            o = rebase('P', off)
            for ct in range(24):
                fr = TR+4*(trc[0] % NTR); trc[0] += 1
                for e in range(2):
                    q(f'ds_read_b64_tr_b16 {ar(fr+2*e,2)}, v{P+ct%8} offset:{o+256*(ct//8)+12288*e}')
                d = vr(U+4*ct, 4)
                q(mfma(d, ar(fr,4), breg, '0' if first else d))
        def partB(k):
            sa = SACC[k % 2]
            t0 = T
            q(f'ds_read_b128 {vr(t0,4)}, v{SR} offset:{1024*(k%2)}')
            q(f'ds_read_b128 {vr(t0+4,4)}, v{SR} offset:{1024*(k%2)+16}')
            q(f'v_add_f32 v{t0}, v{t0}, v{t0+2}\nv_add_f32 v{t0+1}, v{t0+1}, v{t0+3}\nv_add_f32 v{t0+4}, v{t0+4}, v{t0+6}\nv_add_f32 v{t0+5}, v{t0+5}, v{t0+7}')
            q(f'v_add_f32 v{t0}, v{t0}, v{t0+4}\nv_add_f32 v{t0+1}, v{t0+1}, v{t0+5}')
            q(f'v_mul_f32 v{t0+1}, s53, v{t0+1}')
            q(f'v_mul_f32 v{t0}, s53, v{t0}\nv_fma_f32 v{t0}, -v{t0+1}, v{t0+1}, v{t0}')
            q(f'v_max_f32 v{t0}, 0, v{t0}\nv_add_f32 v{t0}, s54, v{t0}\nv_rsq_f32 v{t0}, v{t0}\nv_mul_f32 v{t0+1}, v{t0+1}, v{t0}')
            q(f'ds_write2_b32 v{BW}, v{t0}, v{t0+1} offset0:0 offset1:32', W=['L:bc'], private=True)
            for mt in range(2):
                q(f'ds_read_b128 {vr(MU+4*mt,4)}, v{BR} offset:{128+64*mt}', R=['L:bc'], private=True)
                q(f'ds_read_b128 {vr(RS+4*mt,4)}, v{BR} offset:{64*mt}', R=['L:bc'], private=True)
            for i in range(8):
                if k == 0: q(f'v_mul_f32 v{PP+i}, v{MU+i}, v{SA}\nv_fma_f32 v{PP+i}, v{sa+i}, v{RS+i}, -v{PP+i}')
                else: q(f'v_fma_f32 v{PP+i}, -v{MU+i}, v{SA}, v{NM}\nv_fma_f32 v{PP+i}, v{sa+i}, v{RS+i}, v{PP+i}')
            mx = T+2
            q(f'v_max3_f32 v{mx}, v{PP}, v{PP+1}, v{PP+2}\nv_max3_f32 v{mx+1}, v{PP+3}, v{PP+4}, v{PP+5}\nv_max3_f32 v{mx}, v{mx}, v{PP+6}, v{PP+7}\nv_max_f32 v{mx}, v{mx}, v{mx+1}')
            if k == 0:
                allred(q, 'v_max_f32', mx, mx+1)
                for i in range(8): q(f'v_sub_f32 v{PP+i}, v{PP+i}, v{mx}')
                q(f'v_sub_f32 v{NM}, 0, v{mx}')
            else:
                q(f'v_cmp_lt_f32 vcc, s55, v{mx}')
                live_pl = ([PL+i for i in range(4)] if k % 4 >= 1 else []) + ([PL+4+i for i in range(4)] if k % 4 == 3 else [])
                touched = [f'v{U+i}' for i in range(96)] + [f'v{PP+i}' for i in range(8)] + [f'v{x}' for x in (NM, LS, mx, mx+1)] + [f'v{x}' for x in live_pl]
                br = q(f's_cbranch_vccnz RARE{k}{sfx}', R=touched, W=touched)
                br.text += f'\nC_{k}{sfx}:'
                slow(f'RARE{k}{sfx}:\ns_nop 7')
                allred(slow, 'v_max_f32', mx, mx+1)
                slow(f'v_max_f32 v{mx}, 0, v{mx}')
                for i in range(8): slow(f'v_sub_f32 v{PP+i}, v{PP+i}, v{mx}')
                slow(f'v_sub_f32 v{NM}, v{NM}, v{mx}\nv_exp_f32 v{mx}, -v{mx}')
                for r in [U+i for i in range(96)] + [LS] + live_pl: slow(f'v_mul_f32 v{r}, v{mx}, v{r}')
                slow(f's_nop 1\ns_branch C_{k}{sfx}')
            for i in range(8): q(f'v_exp_f32 v{PP+i}, v{PP+i}')
            for i in range(8): q(f'v_mul_f32 v{RS+i}, v{PP+i}, v{RS+i}')
            for i in range(4): q(f'v_cvt_pk_bf16_f32 v{PK+i}, v{RS+2*i}, v{RS+2*i+1}')
            for i in range(8): q(f'v_add_f32 v{LS}, v{LS}, v{PP+i}')
            pl = PL+4*((k//2) % 2)
            for r in range(4):
                if k % 2 == 0: q(f'v_add_f32 v{pl+r}, v{RS+r}, v{RS+4+r}')
                else: q(f'v_add_f32 v{pl+r}, v{pl+r}, v{RS+r}\nv_add_f32 v{pl+r}, v{pl+r}, v{RS+4+r}')
            pv(slot_of[f'X{k}']*SLOT, vr(PK,4), first=(k == 0))
            if k % 4 == 3:
                for i in range(4): q(f'v_cvt_pk_bf16_f32 v{PKL+i}, v{PL+2*i}, v{PL+2*i+1}')
                pv(LATSLOT[k//4]*SLOT, vr(PKL,4))
        for k in range(-1, 8):
            if k == 6 and plan.get('split_last', True):
                bar([], 'm6'); issue(q, 'm6', DP); partB(6)
                bar(['X7'], 'm6b'); issue(q, 'm6b', DP); partA(7)
                continue
            bar([f'X{k+1}'] if k < 7 else [], f'm{k}')
            issue(q, f'm{k}', DP)
            if k >= 0: partB(k)
            if k < 7: partA(k+1)
        issue(q, 'proj')
        allred(q, 'v_add_f32', LS, T)
        CT = S1
        for s in range(12):
            b = (PL, PP, RS, MU)[s % 4]
            for i in range(4): q(f'v_cvt_pk_bf16_f32 v{b+i}, v{U+8*s+2*i}, v{U+8*s+2*i+1}')
            for dt in range(6):
                d = vr(CT+4*dt, 4)
                q(mfma(d, blk(vloc(s), 4*dt), vr(b, 4), '0' if s == 0 else d))
        for i in range(12): q(f'v_cvt_pk_bf16_f32 v{U+i}, v{CT+2*i}, v{CT+2*i+1}')
        q(f'v_sub_f32 v{U+12}, 0, v{NM}\nv_mov_b32 v{U+13}, v{LS}\nv_mov_b32 v{U+14}, 0\nv_mov_b32 v{U+15}, 0')
        q(f'v_and_b32 v{T}, 15, v0\nv_lshlrev_b32 v{T}, 8, v{T}\nv_and_b32 v{T+1}, 48, v0\nv_add_u32 v{T}, v{T}, v{T+1}')
        q(f's_lshl_b32 s50, s2, 14\ns_lshl_b32 s51, s3, 12\ns_add_u32 s50, s50, s51\ns_add_u32 s50, s50, {WS_PART}')
        for j in range(4): q(f'buffer_store_dwordx4 {vr(U+4*j,4)}, v{T}, s[28:31], s50 offen offset:{64*j} sc0 sc1')
        body, tt = schedule(q.L, verbose=True)
        return pre, body

    pre1, body1 = mkbody(plans[0], 'a')
    pre2, body2 = mkbody(plans[1], 'b')
    p = Prog()
    p.ext(stampi('stored'))
    p('s_load_dwordx2 s[4:5], s[0:1], 0\ns_load_dwordx2 s[6:7], s[0:1], 56\ns_load_dwordx2 s[8:9], s[0:1], 72')
    p('WAITV ALL\ns_barrier')
    p.ext(stampi('drained'))
    p(f's_lshl_b32 s50, s2, 7\ns_add_u32 s50, s50, {WS_TF}\ns_cmp_eq_u32 s3, 0\ns_cselect_b32 s50, s50, {WS_SIZE}')
    p('v_mov_b32 v2, 0\nv_mov_b32 v3, s38\ns_mov_b64 exec, 1')
    p('buffer_store_dword v3, v2, s[28:31], s50 offen sc0 sc1\ns_mov_b64 exec, -1')
    pub = list(p.L)
    p('s_cmp_lt_u32 s57, 64\ns_cbranch_scc0 K_fin')
    p('s_lshr_b32 s40, s57, 2\ns_and_b32 s41, s57, 3')
    p('s_waitcnt lgkmcnt(0)')
    srd(p, 12, 4, 12288); srd(p, 16, 6, 294912); srd(p, 20, 8, 12288)
    p('v_mov_b32 v1, s3\nv_mov_b32 v2, v0\nv_lshl_add_u32 v0, v1, 6, v2')
    WO = 96; D = 32
    p('v_mul_u32_u24 v5, 12, v2\ns_mul_i32 s42, s41, 73728\ns_mul_i32 s43, s3, 18432\ns_add_u32 s42, s42, s43')
    for i in range(24):
        p(f'buffer_load_dwordx3 {vr(WO+4*i,3)}, v5, s[16:19], s42 offen offset:{768*(i%4)}')
        if i % 4 == 3: p('s_add_u32 s42, s42, 3072')
    p('v_lshlrev_b32 v6, 2, v0\ns_mul_i32 s44, s40, 768\ns_mul_i32 s43, s41, 192\ns_add_u32 s44, s44, s43')
    p('buffer_load_dword v7, v6, s[12:15], s44 offen')
    p('v_lshrrev_b32 v3, 4, v2\nv_lshlrev_b32 v3, 14, v3\nv_and_b32 v4, 15, v2\nv_lshl_add_u32 v3, v4, 4, v3')
    p(f's_mov_b32 s45, {WS_TF}\nv_lshlrev_b32 v9, 7, v0')
    p(f's_mov_b32 s58, {SPIN}\nT_poll:')
    p('buffer_load_dword v8, v9, s[28:31], s45 offen sc1\ns_sub_u32 s58, s58, 1\ns_cbranch_scc1 T_pd\ns_waitcnt vmcnt(0)\nv_cmp_ne_u32 vcc, s38, v8\ns_cbranch_vccnz T_poll\nT_pd:')
    p.ext(stampi('flags'))
    p(f's_lshl_b32 s42, s3, 20\ns_lshl_b32 s43, s41, 12\ns_add_u32 s42, s42, s43\ns_lshl_b32 s43, s40, 8\ns_add_u32 s42, s42, s43\ns_add_u32 s42, s42, {WS_PART}')
    for j in range(16):
        p(f'buffer_load_dwordx4 {vr(D+4*j,4)}, v3, s[28:31], s42 offen sc1\ns_add_u32 s42, s42, 0x10000')
    M = 8
    if stamps and 'rows' in stamps: p('s_waitcnt vmcnt(0)'); p.ext(stampi('rows'))
    for j in range(16): p(f'v_mov_b32_dpp v{M+j}, v{D+4*j} row_newbcast:12 row_mask:0xf bank_mask:0xf')
    p(f'v_max3_f32 v24, v{M}, v{M+1}, v{M+2}')
    for j in range(3, 15, 2): p(f'v_max3_f32 v24, v24, v{M+j}, v{M+j+1}')
    p(f'v_max_f32 v24, v24, v{M+15}')
    allred(p, 'v_max_f32', 24, 25)
    p('v_lshlrev_b32 v25, 2, v1\nds_write_b32 v25, v24\nv_mov_b32 v26, 0\nWAITL\ns_barrier\nds_read_b128 v[28:31], v26')
    p('v_max3_f32 v24, v28, v29, v30\nv_max_f32 v24, v24, v31')
    A = 192
    p.ext(stampi('mx'))
    for j in range(16):
        p(f'v_sub_f32 v{M+j}, v{M+j}, v24\nv_exp_f32 v{M+j}, v{M+j}')
        p(f'v_cvt_pk_bf16_f32 v26, v{M+j}, 0\nv_lshlrev_b32 v27, 16, v26')
        p(f'v_mov_b32_dpp v28, v{D+4*j+1} row_newbcast:12 row_mask:0xf bank_mask:0xf')
        p(f'v_mul_f32 v{A+8}, v27, v28' if j == 0 else f'v_fmac_f32 v{A+8}, v27, v28')
        for i in range(4):
            p(f'v_dot2_f32_bf16 v{A+2*i}, v{D+4*j+i}, v26, {"0" if j == 0 else f"v{A+2*i}"}')
            p(f'v_dot2_f32_bf16 v{A+2*i+1}, v{D+4*j+i}, v27, {"0" if j == 0 else f"v{A+2*i+1}"}')
    p('s_nop 2')
    p.ext(stampi('acc'))
    for i in range(9): allred(p, 'v_add_f32', A+i, 25)
    p('v_mul_u32_u24 v25, 48, v4\nv_mov_b32 v26, 768\nv_mad_u32_u24 v26, v1, v26, v25')
    p(f'ds_write_b128 v26, {vr(A,4)} offset:64\nds_write_b128 v26, {vr(A+4,4)} offset:80\nds_write_b32 v26, v{A+8} offset:96')
    p('WAITL\ns_barrier')
    for z in range(4):
        p(f'ds_read_b128 {vr(D+12*z,4)}, v25 offset:{64+768*z}\nds_read_b128 {vr(D+12*z+4,4)}, v25 offset:{80+768*z}\nds_read_b32 v{D+12*z+8}, v25 offset:{96+768*z}')
    for i in range(9):
        p(f'v_add_f32 v{D+i}, v{D+i}, v{D+12+i}\nv_add_f32 v{D+24+i}, v{D+24+i}, v{D+36+i}\nv_add_f32 v{D+i}, v{D+i}, v{D+24+i}')
    p(f'v_rcp_f32 v{D+8}, v{D+8}')
    for i in range(8):
        p(f'v_mul_f32 v{D+i}, v{D+i}, v{D+8}\nv_cvt_pk_bf16_f32 v{D+i}, v{D+i}, 0')
    p('v_lshrrev_b32 v25, 2, v4\nv_lshlrev_b32 v25, 7, v25\nv_and_b32 v26, 3, v4\nv_lshl_add_u32 v25, v26, 4, v25\nv_lshl_add_u32 v25, v1, 10, v25')
    p(f'ds_write_b128 v25, {vr(D,4)} offset:4096\nds_write_b128 v25, {vr(D+4,4)} offset:4160')
    p('v_mov_b32 v26, 1120\nv_mul_u32_u24 v26, v1, v26')
    for i in range(6): p(f'ds_read_b128 {vr(D+12+4*i,4)}, v26 offset:{4096+16*i}')
    p.ext(stampi('ctx'))
    for i in range(24):
        c = D+12+i
        p(f'v_lshlrev_b32 v27, 16, v{c}')
        for u in range(3):
            p(f'v_dot2_f32_bf16 v{A+2*u}, v{WO+4*i+u}, v{c}, {"0" if i == 0 else f"v{A+2*u}"}')
            p(f'v_dot2_f32_bf16 v{A+2*u+1}, v{WO+4*i+u}, v27, {"0" if i == 0 else f"v{A+2*u+1}"}')
    p('s_nop 2')
    p.ext(stampi('gemv'))
    p('v_mul_u32_u24 v25, 24, v2\nv_mov_b32 v26, 1536\nv_mad_u32_u24 v25, v1, v26, v25')
    for u in range(3): p(f'ds_write_b64 v25, {vr(A+2*u,2)} offset:{8192+8*u}')
    p('WAITL\ns_barrier')
    p('v_cmp_gt_u32 vcc, 96, v0\ns_and_saveexec_b64 s[46:47], vcc\ns_cbranch_execz K_fin')
    p('v_lshlrev_b32 v25, 4, v0')
    for z in range(4): p(f'ds_read_b128 {vr(D+4*z,4)}, v25 offset:{8192+1536*z}')
    p('s_mov_b32 s45, 0x7fc00000\nv_mov_b32 v27, s45')
    for i in range(4):
        p(f'v_add_f32 v{D+i}, v{D+i}, v{D+4+i}\nv_add_f32 v{D+8+i}, v{D+8+i}, v{D+12+i}\nv_add_f32 v{D+i}, v{D+i}, v{D+8+i}')
        p(f'v_cmp_eq_u32 vcc, -1, v{D+i}\nv_cndmask_b32 v{D+i}, v{D+i}, v27, vcc')
    p(f's_mul_i32 s42, s57, 1536\ns_add_u32 s42, s42, {WS_XCH}')
    p(f'buffer_store_dwordx4 {vr(D,4)}, v25, s[28:31], s42 offen sc0 sc1')
    p(f's_add_u32 s45, s57, s3\ns_mov_b32 s46, {WS_EPOCH}\ns_cmp_eq_u32 s45, 0\ns_cselect_b32 s45, s46, {WS_SIZE}\nv_mov_b32 v26, s38\nv_mov_b32 v28, 0')
    p(f'buffer_store_dword v26, v28, s[28:31], s45 offen')
    p.ext(stampi('xpub'))
    p('v_cmp_gt_u32 vcc, 48, v0\ns_and_saveexec_b64 s[46:47], vcc\ns_cbranch_execz K_fin')
    p(f'v_lshlrev_b32 v25, 3, v0\ns_mul_i32 s42, s40, 6144\ns_mul_i32 s43, s41, 384\ns_add_u32 s42, s42, s43\ns_add_u32 s42, s42, {WS_XCH}')
    p('s_add_u32 s43, s42, 3072')
    p(f's_mov_b32 s58, {SPIN}\nT_poll2:')
    p(f'buffer_load_dwordx2 v[40:41], v25, s[28:31], s42 offen sc1\nbuffer_load_dwordx2 v[42:43], v25, s[28:31], s42 offen offset:1536 sc1')
    p(f'buffer_load_dwordx2 v[44:45], v25, s[28:31], s43 offen sc1\nbuffer_load_dwordx2 v[46:47], v25, s[28:31], s43 offen offset:1536 sc1')
    p('v_max3_u32 v48, v40, v41, v42\nv_max3_u32 v48, v48, v43, v44\nv_max3_u32 v48, v48, v45, v46\nv_max_u32 v48, v48, v47')
    p('s_sub_u32 s58, s58, 1\ns_cbranch_scc1 T_pd2\nv_cmp_eq_u32 vcc, -1, v48\ns_cbranch_vccnz T_poll2\nT_pd2:')
    p('v_lshlrev_b32 v48, 16, v7\nv_and_b32 v49, 0xffff0000, v7')
    p('v_add_f32 v40, v40, v42\nv_add_f32 v44, v44, v46\nv_add_f32 v41, v41, v43\nv_add_f32 v45, v45, v47\nv_add_f32 v40, v40, v44\nv_add_f32 v41, v41, v45')
    p('v_add_f32 v40, v40, v48\nv_add_f32 v41, v41, v49\nv_cvt_pk_bf16_f32 v40, v40, v41')
    p('buffer_store_dword v40, v6, s[20:23], s44 offen')
    p('K_fin:')
    if stamps:
        p('s_waitcnt vmcnt(0)')
        p.ext(stampi('end'))
        n = 20 if plan.get('fine') else len(names)
        p('s_load_dwordx2 s[10:11], s[0:1], 88\ns_waitcnt lgkmcnt(0)')
        p(f's_add_u32 s10, s10, {STAMP_OFF}\ns_addc_u32 s11, s11, 0')
        p(f's_mul_i32 s50, s2, {8*n}\ns_mov_b64 exec, 1\nv_mov_b32 v1, s50')
        p(f's_cmp_eq_u32 s3, {plan.get("stwave", 0)}\ns_cbranch_scc0 K_end')
        for i in range(n):
            p(f'v_mov_b32 v2, s{SB(i)}\nv_mov_b32 v3, s{SB(i)+1}\nglobal_store_dwordx2 v1, v[2:3], s[10:11] offset:{8*i}\ns_nop 1')
        print('stamps', n, names, file=sys.stderr)
    p('K_end:\ns_endpgm')
    def fin(pre, lab, body, tail):
        m = finalize(pre.L + [I(lab), I('s_waitcnt lgkmcnt(0)'), I('s_add_u32 s38, s38, 1')] + body + tail)
        return m[[i.text for i in m].index(lab):]
    main = fin(pre1, 'H_join1:', body1, p.L)
    main2 = fin(pre2, 'H_join:', body2, [I(i.text) for i in pub] + [I('s_branch K_fin')])
    if plan.get('fine'):
        nb, step = plan['fine']
        bars = [k for k, i in enumerate(main) if i.op == 's_barrier']
        a, b = bars[nb], bars[nb+1]
        out = main[:a+1]; k = 1; info = []
        for j in range(a+1, b+1):
            if (j-a-1) % step == 0 and k < 18 or j == b:
                out.append(I(f's_memtime s[{60+2*k}:{61+2*k}]')); k += 1
                tt = [getattr(x, 'idx', None) for x in main[j:j+6]]
                info.append((j-a-1, next((x for x in tt if x is not None), None)))
            out.append(main[j])
        main = out + [I(f's_memtime s[{60+2*k}:{61+2*k}]')] + main[b+1:]
        print('fine', info, file=sys.stderr)
    return head0 + h_a + h_v + h_none2 + h_none + main + main2 + finalize(slow.L) + [I('CODE_END:')]

BASE = {
    'lat_slots': (0, 1),
    'start': [('F', 0, 0), ('F', 1, 1), ('L', 0, 2), ('L', 1, 3)],
    **{f'lat{k}': [('L', k+3, 2+(k+3) % 4)] for k in range(9)},
    'm1': [('X', 4, 2)], 'm2': [('X', 5, 3)], 'm3': [('X', 6, 4)],
    'm4': [('X', 7, 5), ('V', 0), ('V', 1)], 'm5': [('V', 2), ('V', 3), ('V', 4)], 'm6': [('V', 5), ('V', 6)],
    'm7': [('V', 7), ('V', 8), ('V', 9)], 'proj': [('V', 10), ('V', 11)],
}
P1 = {**BASE, 'lat0': [('L', 2, 4), ('L', 3, 5)],
      'lat9': [('X', 0, 2)], 'lat10': [('X', 1, 3)], 'lat11': [('POLL',)], 'epi': [('CHECK',), ('A',), ('X', 2, 4)], 'm-1': [('TOUCHV',), ('X', 3, 5)]}
P2 = {**BASE, 'lat0': [('GO',), ('L', 2, 4), ('L', 3, 5)],
      'lat7': [('L', 10, 4), ('POLL',)], 'lat9': [('CHECK',), ('A',)], 'lat10': [('X', 0, 2)], 'lat11': [('X', 1, 3)], 'epi': [('TOUCHV',)],
      'm-1': [('X', 2, 4)], 'm0': [('X', 3, 5)]}
PLAN = (P1, P2)

def build(fn, plan=PLAN, stamps=False):
    hdr = open('standalone__detection_seg_mask2former__vision.s.ref').read().split('\n')
    hdr = [l for l in hdr if l.startswith(';') and '@launch' not in l and 'Override launch' not in l and 'grid=ceil' not in l]
    s = '\n'.join(hdr) + '\n'
    s += '; @launch grid=(256,1,1) block=(256,1,1) lds=163840\n'
    s += '.amdgcn_target "amdgcn-amd-amdhsa--gfx950"\n.text\n'
    s += f'.globl {KN}\n.p2align 8\n.type {KN},@function\n{KN}:\n'
    s += emit(gen(plan, stamps)).replace('CODE_LIM', f'CODE_END-{KN}-4096-64')
    s += f'''.section .rodata,"a"
.p2align 6
.amdhsa_kernel {KN}
  .amdhsa_next_free_vgpr 512
  .amdhsa_next_free_sgpr 102
  .amdhsa_accum_offset 256
  .amdhsa_group_segment_fixed_size 0
  .amdhsa_kernarg_size 96
  .amdhsa_user_sgpr_count 2
  .amdhsa_user_sgpr_kernarg_segment_ptr 1
  .amdhsa_system_sgpr_workgroup_id_x 1
.end_amdhsa_kernel
'''
    open(fn, 'w').write(s)

ST = ['start', 'a_iss', 'a_cmp', 'lat0', 'lat10', 'epi', 'm-1', 'm2', 'm4', 'm7', 'stored', 'drained', 'flags', 'rows', 'mx', 'acc', 'ctx', 'gemv', 'xpub', 'end']
if __name__ == '__main__':
    build('standalone__detection_seg_mask2former__vision.s')
    build('k_st.s', stamps=ST)
```

```python
import sys, math, struct
import asmlib
from asmlib import *

KN = 'standalone__detection_seg_mask2former__vision_kernel'
WS_A = 0
WS_EPOCH = 0xD000
WS_HF = 0x58000
WS_TF = 0x78000
WS_VT = 65536
WS_XCH = 0x60000
WS_PART = 0x80000
WS_SIZE = WS_PART + 256*16384
STAMP_OFF = 128 << 20
SLOT = 24576
STAT = 147456; DUMMY = STAT+2048; BC = STAT+2048+4096; SCR = BC+1024
LOG2E = 1.4426950408889634
def f2u(x): return struct.unpack('<I', struct.pack('<f', x))[0]
THR = 10.0
SPIN = 1 << 20
STAMPOP = 's_memrealtime'

HEADST = False
DBGST = False
def SB(k): return [60, 62, 100, 66, 68, 70, 78, 82, 84, 86, 64, 72, 74, 76, 80, 88, 90, 92][k] if HEADST else 60+2*k
class Prog:
    def __init__(self): self.L = []
    def __call__(self, t, **kw):
        r = []
        for line in t.split('\n'):
            if line.strip():
                i = I(line, **kw); self.L.append(i); r.append(i)
        return r[-1]
    def ext(self, l): self.L += l

def vr(b, n=1): return f'v{b}' if n == 1 else f'v[{b}:{b+n-1}]'
def ar(b, n=1): return f'a{b}' if n == 1 else f'a[{b}:{b+n-1}]'
def mfma(d, a, b, c): return f'v_mfma_f32_16x16x32_bf16 {d}, {a}, {b}, {c}'
def srd(p, s, lo, size):
    p(f's_mov_b32 s{s}, s{lo}\ns_mov_b32 s{s+1}, s{lo+1}\ns_mov_b32 s{s+2}, {size}\ns_mov_b32 s{s+3}, 0x20000')
class RA:
    def __init__(self, start): self.n = start
    def __call__(self, k=1, al=1):
        self.n = (self.n+al-1)//al*al
        b = self.n; self.n += k; return b
def allred(z, op, a, t):
    z(f'v_mov_b32 v{t}, v{a}\nv_permlane32_swap_b32 v{a}, v{t}\n{op} v{a}, v{a}, v{t}')
    z(f'v_mov_b32 v{t}, v{a}\nv_permlane16_swap_b32 v{a}, v{t}\n{op} v{a}, v{a}, v{t}')

def gen(plan, stamps=False):
    v = RA(1)
    DX = v(6); Q = v(4); P = v(8); SW = v(); SR = v(); BW = v(); BR = v(); VL = v()
    NM = v(); LS = v(); SA = v()
    T = v(12, 4)
    SACC = [v(8, 4), v(8, 4)]; S2 = v(8, 4); S1 = v(8, 4); SLO = v(4, 4); YY = v(4, 4); Y1 = v(4, 4); Y = v(12, 4)
    PL = v(8, 4); PP = v(8, 4); PK = v(4, 4); RS = v(8, 4); MU = v(8, 4)
    VV = v(24, 4); PKL = v(4, 4)
    print('vgpr used', v.n, file=sys.stderr)
    U = 160
    assert v.n <= U, v.n
    DL = SACC[0]; LT = S2
    AF = [SLO, SLO+24]
    assert AF[1]+24 <= MU
    AA = 0; ONES = 48; XF = 52; NXF = 6; TR = 76; NTR = 8; VA = 108; BF = [TR, TR+16]; JUNK = 252
    def vloc(ks):
        if ks < 6: return ('a', VA+24*ks)
        if ks == 6: return ('v', VV)
        if ks == 7: return ('a', 0)
        if ks == 8: return ('a', 24)
        if ks == 9: return ('a', XF)
        if ks == 10: return ('a', TR)
        return ('v', SACC[0])
    def blk(loc, i, n=4): return (ar if loc[0] == 'a' else vr)(loc[1]+i, n)
    names = []
    def stampi(name):
        if stamps and (stamps is True or name in stamps):
            if name not in names: names.append(name)
            k = names.index(name); assert k < 20
            return [I(f'{STAMPOP} s[{SB(k)}:{SB(k)+1}]')]
        return []
    plans = plan; plan = plans[0]
    def dma(q, kind, n, slot):
        srdn, base, off, fl, vo = {'F': (16, 's25', n*SLOT, ' nt', DL), 'L': (20, 's24', n*SLOT, '', DL),
                                   'X': (12, 's26', (n % 2)*196608 + (n//2)*SLOT, ' nt', DX)}[kind]
        tag = f'{kind}{n}'
        q(f's_add_u32 s49, {base}, {off}')
        q(f's_add_u32 m0, s24, {slot*SLOT}')
        for i in range(6):
            if i == 4: q(f's_add_u32 m0, s24, {slot*SLOT+4096}')
            q(f'buffer_load_dwordx4 v{vo+i}, s[{srdn}:{srdn+3}], s49 offen offset:{1024*(i%4)}{fl} lds', tag=tag)
    def loadA(q):
        q('s_mul_i32 s50, s3, 12288')
        for a_ in range(4):
            q(f's_xor_b32 s51, s3, {a_}\ns_lshl_b32 s51, s51, 10\ns_add_u32 s51, s51, s50')
            for G in range(3):
                if G: q('s_add_u32 s51, s51, 4096')
                q(f'buffer_load_dwordx4 {ar(AA+4*(3*a_+G),4)}, v{VL}, s[28:31], s51 offen sc1', tag='A')
    def loadV(q, ks):
        loc = vloc(ks)
        q(f's_add_u32 s52, s27, {6144*ks}')
        for dt in range(6):
            if dt == 4: q('s_add_u32 s52, s52, 4096')
            q(f'buffer_load_dwordx4 {blk(loc,4*dt)}, v{VL}, s[28:31], s52 offen offset:{1024*(dt%4)} sc1', tag=f'V{ks}')
    slow = Prog()
    def issue(q, name, prio=None, plan=None, sfx=''):
        n0 = len(q.L)
        for it in plan.get(name, []):
            if it[0] == 'A': loadA(q)
            elif it[0] == 'V': loadV(q, it[1])
            elif it[0] == 'POLL': q(f'buffer_load_dword v{T}, v{NM}, s[28:31], 0 offen sc1')
            elif it[0] == 'CHECK':
                q(f'v_cmp_ne_u32 vcc, s38, v{T}')
                br = q(f's_cbranch_vccnz POLL{sfx}', R=['VM', f'v{T}'], W=['VM', f'v{T}', 's58', 'scc', 'vcc'])
                br.text += f'\nC_POLL{sfx}:'
                slow(f'POLL{sfx}:\ns_mov_b32 s58, {SPIN}\nPOLL1{sfx}:\ns_sleep 2\nbuffer_load_dword v{T}, v{NM}, s[28:31], 0 offen sc1\ns_sub_u32 s58, s58, 1\ns_cbranch_scc1 C_POLL{sfx}\ns_waitcnt vmcnt(0)\nv_cmp_ne_u32 vcc, s38, v{T}\ns_cbranch_vccnz POLL1{sfx}\ns_branch C_POLL{sfx}')
            elif it[0] == 'GO':
                q(f'v_mov_b32 v{LS}, 0\nv_mov_b32 v{T+1}, s38')
                q(f's_mov_b64 exec, 1\nbuffer_store_dword v{T+1}, v{LS}, s[28:31], s97 offen sc0 sc1\ns_mov_b64 exec, -1')
            elif it[0] == 'TOUCHV':
                q(f's_add_u32 s52, s43, {WS_VT}')
                for i in range(3): q(f'buffer_load_dwordx3 {ar(JUNK,3)}, v{VL}, s[28:31], s52 offen offset:{768*i} sc1', tag='pre')
            else: dma(q, *it)
        if prio:
            for i in q.L[n0:]: i.prio = prio

    p = Prog()
    p('s_getpc_b64 s[40:41]')
    p('s_load_dwordx16 s[64:79], s[0:1], 0\ns_load_dwordx8 s[80:87], s[0:1], 64')
    p(f's_lshr_b32 s42, s2, 3\ns_and_b32 s43, s42, {plan.get("codemask", 31)}\ns_lshl_b32 s43, s43, 12\ns_min_u32 s43, s43, CODE_LIM')
    p(f'v_lshl_add_u32 v{T}, v0, 4, s43')
    p(f'global_load_dwordx4 {ar(JUNK,4)}, v{T}, s[40:41]', tag='pre')
    p('s_cmp_ge_u32 s2, 256\ns_cbranch_scc1 K_end')
    p.ext(stampi('start'))
    p('v_lshrrev_b32 v1, 6, v0\nv_and_b32 v0, 63, v0')
    p('v_readfirstlane_b32 s3, v1')
    p(f'v_lshlrev_b32 v{VL}, 4, v0\nv_min_u32 v{NM}, 29, v0\nv_lshlrev_b32 v{NM}, 7, v{NM}')
    p('s_and_b32 s45, s3, 1\ns_mul_i32 s46, s45, 9\ns_movk_i32 s47, 1366\ns_movk_i32 s48, 768')
    for i in range(3):
        t0, t1, t2 = T+1, T+2, T+3
        p(f'v_add_u32 v{t0}, {64*i}, v0' if i else f'v_mov_b32 v{t0}, v0')
        p(f'v_mul_u32_u24 v{t1}, s47, v{t0}\nv_lshrrev_b32 v{t1}, 16, v{t1}')
        p(f'v_mul_u32_u24 v{t2}, 48, v{t1}\nv_sub_u32 v{t0}, v{t0}, v{t2}')
        p(f'v_lshlrev_b32 v{t2}, 1, v{t1}\nv_xor_b32 v{t2}, s46, v{t2}\nv_xor_b32 v{t0}, v{t0}, v{t2}')
        p(f'v_lshlrev_b32 v{t0}, 4, v{t0}\nv_mul_u32_u24 v{t1}, s48, v{t1}\nv_add_u32 v{t0}, v{t0}, v{t1}')
        p(f'v_subrev_u32 v{DL+i}, {1024*i}, v{t0}' if i else f'v_mov_b32 v{DL+i}, v{t0}')
        p(f'v_add_u32 v{DX+i}, v{t1}, v{DL+i}')
        p(f'v_xor_b32 v{t0}, 128, v{t0}\nv_add_u32 v{DL+i+3}, {3072-1024*((i+3)%4)}, v{t0}\nv_add3_u32 v{DX+i+3}, v{t1}, v{DL+i+3}, s48')
        p(f'v_add_u32 v{DX+i+3}, 2304, v{DX+i+3}')
    m_, g_, F_, t_ = T, T+1, T+2, T+3
    p(f'v_and_b32 v{m_}, 15, v0\nv_lshrrev_b32 v{g_}, 4, v0')
    p('s_lshr_b32 s57, s2, 4\ns_lshl_b32 s57, s57, 3\ns_and_b32 s44, s2, 7\ns_or_b32 s57, s57, s44')
    p('s_mul_i32 s24, s3, 6144')
    p('s_mul_i32 s25, s2, 49152\ns_add_u32 s25, s25, s24')
    p('s_lshr_b32 s26, s2, 1\ns_mul_i32 s26, s26, 393216\ns_and_b32 s27, s2, 1\ns_mul_i32 s27, s27, 98304\ns_add_u32 s26, s26, s27')
    p('s_mul_i32 s27, s45, 12288\ns_add_u32 s26, s26, s27\ns_lshr_b32 s27, s3, 1\ns_mul_i32 s27, s27, 768\ns_add_u32 s26, s26, s27')
    p(f's_mul_i32 s27, s3, 73728\ns_add_u32 s27, s27, {WS_VT}')
    p('s_mul_i32 s43, s42, 9216\ns_mul_i32 s44, s3, 2304\ns_add_u32 s43, s43, s44')
    p('s_waitcnt lgkmcnt(0)')
    srd(p, 12, 66, 50331648); srd(p, 16, 68, 12582912); srd(p, 20, 70, 294912); srd(p, 28, 86, WS_SIZE)
    p(f's_load_dword s38, s[86:87], {WS_EPOCH}')
    p(f's_lshl_b32 s50, s3, 12\ns_add_u32 s50, s50, {WS_HF}\nv_add_u32 v{NM}, s50, v{NM}')
    p.ext(stampi('karg'))
    for i in range(3): p(f'buffer_load_dwordx3 {ar(JUNK,3)}, v{VL}, s[20:23], s43 offen offset:{768*i}', tag='pre')
    p(f's_mov_b32 s97, {WS_SIZE}\ns_bitcmp1_b32 s2, 3\ns_cbranch_scc0 H_none')
    p('s_cmp_ge_u32 s57, 120\ns_cbranch_scc1 H_none2\ns_cmp_ge_u32 s57, 96\ns_cbranch_scc1 H_v')

    def late(p, n):
        for it in plan['start'][n:]: dma(p, *it)
    def setup(p, n=99):
        for it in plan['start'][:min(n, 2)]: dma(p, *it)
        setup2(p)
        for it in plan['start'][2:n]: dma(p, *it)
    def setup2(p):
        def fswz(dst, m):
            p(f'v_lshrrev_b32 v{t_}, 3, v{m}\nv_mul_u32_u24 v{t_}, 9, v{t_}\nv_and_b32 v{dst}, 7, v{m}\nv_lshlrev_b32 v{dst}, 1, v{dst}\nv_xor_b32 v{dst}, v{dst}, v{t_}')
        fswz(F_, m_)
        p(f'v_xor_b32 v{t_}, v{g_}, v{F_}\nv_lshlrev_b32 v{t_}, 4, v{t_}\nv_mad_u32_u24 v{Q}, v{m_}, s48, v{t_}')
        for a_ in range(1, 4): p(f'v_xor_b32 v{Q+a_}, {64*a_}, v{Q}')
        p(f'v_and_b32 v{t_}, 1, v{g_}\nv_lshlrev_b32 v{t_}, 3, v{t_}\nv_mad_u32_u24 v{MU}, v{m_}, s48, v{t_}\nv_mov_b32 v{MU+1}, v{F_}\nv_lshrrev_b32 v{MU+2}, 1, v{g_}')
        p(f'v_lshrrev_b32 v{t_}, 2, v{m_}\nv_cmp_eq_u32 vcc, v{t_}, v{g_}')
        p(f's_lshl_b32 s50, s3, 3\ns_add_u32 s50, s50, {STAT}\ns_lshl_b32 s51, s3, 9\ns_add_u32 s51, s51, {DUMMY}')
        p(f'v_lshl_add_u32 v{SW}, v{m_}, 5, s50\nv_lshl_add_u32 v{t_}, v0, 3, s51\nv_cndmask_b32 v{SW}, v{t_}, v{SW}, vcc')
        p(f'v_and_b32 v{t_}, 31, v0\nv_lshlrev_b32 v{SR}, 5, v{t_}\nv_add_u32 v{SR}, {STAT}, v{SR}')
        p(f's_lshl_b32 s50, s3, 8\ns_add_u32 s50, s50, {BC}\nv_lshl_add_u32 v{BW}, v{t_}, 2, s50\nv_lshl_add_u32 v{BR}, v{g_}, 4, s50')
        p(f'v_and_b32 v{t_}, 3, v0')
        for j in range(1, 4): p(f'v_cmp_eq_u32 s[{30+2*j}:{31+2*j}], {j}, v{t_}')
        r_, b_ = T+4, T+5
        p(f'v_lshrrev_b32 v{r_}, 2, v{m_}\nv_lshl_add_u32 v{r_}, v{g_}, 2, v{r_}')
        p(f'v_bfe_u32 v{b_}, v0, 1, 1\nv_and_b32 v{T+6}, 1, v0\nv_lshlrev_b32 v{T+6}, 3, v{T+6}')
        fswz(F_, r_)
        p(f'v_xor_b32 v{t_}, v{b_}, v{F_}\nv_lshl_add_u32 v{t_}, v{t_}, 4, v{T+6}\nv_mad_u32_u24 v{P}, v{r_}, s48, v{t_}')
        for x in range(1, 8): p(f'v_xor_b32 v{P+x}, {32*x}, v{P}')
        p('s_mul_i32 s50, s3, 12')
        for e in range(2):
            p(f'v_lshrrev_b32 v{r_}, 2, v{m_}\nv_lshl_add_u32 v{r_}, v{g_}, 3, v{r_}')
            if e: p(f'v_add_u32 v{r_}, 4, v{r_}')
            p(f'v_and_b32 v{T+7}, 15, v{r_}')
            fswz(F_, T+7)
            p(f'v_mad_u32_u24 v{T+7}, v{r_}, s48, v{T+6}')
            p(f'v_add_u32 v{T+7}, {2*SLOT}, v{T+7}')
            for t in range(6):
                p(f'v_add_u32 v{t_}, s50, v{b_}' if t == 0 else f'v_add3_u32 v{t_}, s50, v{b_}, {2*t}')
                p(f'v_xor_b32 v{t_}, v{t_}, v{F_}\nv_lshl_add_u32 v{LT+2*t+e}, v{t_}, 4, v{T+7}')
    head0 = finalize(p.L)
    p = Prog(); p('H_none:'); setup(p); h_none = finalize(p.L)
    plan = plans[1]
    p = Prog(); p('H_none2:'); setup(p); p('s_branch H_join'); h_none2 = finalize(p.L)
    p = Prog(); p('H_a:')
    srd(p, 4, 64, 12288); srd(p, 8, 72, 294912); srd(p, 52, 74, 294912); srd(p, 88, 80, 294912)
    p('s_bfe_u32 s40, s57, 0x20001\ns_and_b32 s41, s57, 1\ns_mul_i32 s41, s41, 12\ns_lshr_b32 s44, s57, 3\ns_add_u32 s41, s41, s44')
    p('s_mul_i32 s50, s44, 43\ns_lshr_b32 s50, s50, 7\ns_mul_i32 s50, s50, 3\ns_sub_u32 s44, s44, s50')
    for pp in range(3):
        p(f's_add_u32 s{92+pp}, s44, {pp}\ns_sub_u32 s50, s{92+pp}, 3\ns_cselect_b32 s{92+pp}, s{92+pp}, s50')
    X0 = U
    WM = X0+8; D1 = X0+32; WF = X0+56; MF = X0+68; D2 = X0+80
    LQ = STAT; LK = LQ+12288; LW = 3*SLOT
    p(f's_mul_i32 s44, s40, 73728\ns_mul_i32 s50, s41, 3072\ns_add_u32 s50, s50, s44\ns_min_u32 s51, s3, 2\ns_lshl_b32 s51, s51, 10\ns_add_u32 s50, s50, s51\ns_add_u32 m0, s51, {LK}')
    p(f'buffer_load_dwordx4 v{VL}, s[52:55], s50 offen lds', tag='tq')
    p(f's_mul_i32 s96, s3, 3072\ns_add_u32 s96, s96, {LQ}\ns_mov_b32 m0, s96\ns_mul_i32 s50, s3, 192\ns_movk_i32 s51, 5462')
    for i in range(3):
        p(f'v_add_u32 v{X0}, {64*i}, v0\nv_mul_u32_u24 v{X0+1}, s51, v{X0}\nv_lshrrev_b32 v{X0+1}, 16, v{X0+1}\nv_mul_u32_u24 v{X0+1}, 576, v{X0+1}\nv_add_u32 v{X0+2+i}, v{X0+1}, v{VL}')
        p(f'buffer_load_dwordx4 v{X0+2+i}, s[4:7], s50 offen offset:{1024*i} lds', tag='tq')
    def addrs_a(p):
        p(f'v_lshrrev_b32 v{X0+6}, 1, v{g_}\nv_lshlrev_b32 v{X0+6}, 8, v{X0+6}\nv_lshl_add_u32 v{X0+6}, v{m_}, 4, v{X0+6}\nv_and_b32 v{X0+7}, 1, v{g_}\nv_lshl_add_u32 v{X0+6}, v{X0+7}, 3, v{X0+6}')
        p(f'v_mul_u32_u24 v{X0+3}, 192, v{m_}\nv_lshl_add_u32 v{X0+3}, v{g_}, 4, v{X0+3}')
        p(f'v_mul_u32_u24 v{X0+4}, 192, v{m_}\nv_lshl_add_u32 v{X0+4}, v{g_}, 3, v{X0+4}\nv_add_u32 v{X0+95}, {LK}, v{X0+3}')
    p('s_mul_i32 s98, s3, 18432\ns_add_u32 s44, s44, s98')
    p(f'v_mul_u32_u24 v{X0+5}, 3072, v{g_}\nv_lshl_add_u32 v{X0+5}, v{m_}, 1, v{X0+5}')
    p('s_mul_i32 s95, s3, 73728\ns_lshl_b32 s50, s41, 5\ns_add_u32 s95, s95, s50')
    p.ext(stampi('a_q'))
    for pp in range(3):
        p(f's_mul_i32 s59, s{92+pp}, 6144\ns_add_u32 s50, s44, s59\ns_add_u32 s59, s59, s98\ns_add_u32 m0, s59, {LW}')
        for i in range(6):
            if i == 4: p(f's_add_u32 m0, s59, {LW+4096}\ns_add_u32 s50, s50, 4096')
            p(f'buffer_load_dwordx4 v{VL}, s[8:11], s50 offen offset:{1024*(i%4)} lds', tag='tw')
        p(f's_mul_i32 s50, s{92+pp}, 24576\ns_add_u32 s50, s50, s95')
        for u in range(2):
            for r in range(4): p(f'buffer_load_ushort v{WM+8*pp+4*u+r}, v{X0+5}, s[88:91], s50 offen offset:{768*r}')
            if u == 0: p('s_add_u32 s50, s50, 12288')
        if pp == 0:
            p.ext(stampi('a_w'))
            addrs_a(p); setup2(p)
    p(f'v_mov_b32 v{X0}, -1\nv_lshlrev_b32 v{X0+1}, 2, v0\ns_lshl_b32 s44, s57, 10\ns_lshl_b32 s50, s3, 8\ns_add_u32 s44, s44, s50\ns_add_u32 s44, s44, {WS_XCH}')
    p(f'buffer_store_dword v{X0}, v{X0+1}, s[28:31], s44 offen sc0 sc1', tag='clean')
    p.ext(stampi('a_iss'))
    for it in plan['start'][:2]: dma(p, *it)
    p.ext(stampi('a_set'))
    p('WAITV tq tw\ns_barrier')
    p.ext(stampi('a_bar'))
    p0 = p; p = Prog()
    for ks in range(3): p(f'ds_read_b128 {ar(4*ks,4)}, v{X0+95} offset:{64*ks}')
    p(f's_mul_i32 s51, s3, 18432\ns_add_u32 s51, s51, {LW}')
    for pp in range(3):
        p(f's_mul_i32 s50, s{92+pp}, 6144\ns_add_u32 s50, s50, s51\nv_add_u32 v{X0+88+pp}, s50, v{X0+3}')
        p(f's_lshl_b32 s50, s{92+pp}, 6\ns_add_u32 s50, s50, s96\nv_add_u32 v{X0+92+pp}, s50, v{X0+4}')
        for t in range(2):
            for ks in range(3): p(f'ds_read_b128 {ar(12+24*pp+12*t+4*ks,4)}, v{X0+88+pp} offset:{3072*t+64*ks}')
        p(f'ds_read_b64 {ar(84+4*pp,2)}, v{X0+92+pp}\nds_read_b64 {ar(86+4*pp,2)}, v{X0+92+pp} offset:32')
    for t in range(6):
        for ks in range(3): p(mfma(vr(D1+4*t,4), ar(12+12*t+4*ks,4), ar(4*ks,4), '0' if ks == 0 else vr(D1+4*t,4)))
    for i in range(12): p(f'v_lshl_or_b32 v{MF+i}, v{WM+1+2*i}, 16, v{WM+2*i}')
    for s in range(3): p(mfma(vr(D2+4,4), vr(MF+4*s,4), ar(84+4*s,4), '0' if s == 0 else vr(D2+4,4)))
    for t in range(6): p(f'v_cvt_pk_bf16_f32 v{WF+2*t}, v{D1+4*t}, v{D1+4*t+1}\nv_cvt_pk_bf16_f32 v{WF+2*t+1}, v{D1+4*t+2}, v{D1+4*t+3}')
    for s in range(3): p(mfma(vr(D2,4), vr(WF+4*s,4), ar(84+4*s,4), '0' if s == 0 else vr(D2,4)))
    p(f's_mov_b32 s50, {f2u(96**-0.5*LOG2E):#x}\ns_mov_b32 s51, {f2u(384**-0.5*LOG2E):#x}')
    p(f'v_add_u32 v{X0+3}, s96, v{VL}')
    for r in range(4): p(f'v_mul_f32 v{D2+r}, s50, v{D2+r}\nv_fma_f32 v{D2+r}, s51, v{D2+4+r}, v{D2+r}')
    p0.ext(schedule(p.L)[0]); p = p0
    p.ext(stampi('a_cmp'))
    p(f'ds_write_b128 v{X0+3}, {vr(D2,4)}')
    p('WAITL\ns_barrier')
    p('s_cmp_eq_u32 s3, 0\ns_cbranch_scc0 H_a2')
    for w in range(4): p(f'ds_read_b128 {vr(D1+4*w,4)}, v{X0+3} offset:{3072*w}')
    for r in range(4): p(f'v_add_f32 v{D1+r}, v{D1+r}, v{D1+4+r}\nv_add_f32 v{D1+8+r}, v{D1+8+r}, v{D1+12+r}\nv_add_f32 v{D1+r}, v{D1+r}, v{D1+8+r}')
    p(f'v_cvt_pk_bf16_f32 v{D1}, v{D1}, v{D1+1}\nv_cvt_pk_bf16_f32 v{D1+1}, v{D1+2}, v{D1+3}')
    p('s_mul_i32 s50, s40, 12288\ns_lshl_b32 s51, s41, 9\ns_add_u32 s50, s50, s51')
    p(f'buffer_store_dwordx2 {vr(D1,2)}, v{X0+6}, s[28:31], s50 offen sc0 sc1', tag='pub')
    p.ext(stampi('a_pub'))
    p(f's_lshl_b32 s97, s40, 12\ns_lshl_b32 s50, s41, 7\ns_add_u32 s97, s97, s50\ns_add_u32 s97, s97, {WS_HF}')
    p('H_a2:'); late(p, 2); p('s_branch H_join')
    h_a = finalize(p.L)
    p = Prog(); p('H_v:')
    srd(p, 8, 76, 294912)
    p('s_bfe_u32 s40, s57, 0x20001\ns_and_b32 s41, s57, 1\ns_mul_i32 s41, s41, 3\ns_lshr_b32 s44, s57, 3\ns_add_u32 s41, s41, s44\ns_sub_u32 s41, s41, 12')
    p(f'v_mul_u32_u24 v{X0+5}, 768, v{g_}\nv_lshl_add_u32 v{X0+5}, v{m_}, 1, v{X0+5}')
    p('s_mul_i32 s50, s40, 73728\ns_mul_i32 s51, s3, 18432\ns_add_u32 s50, s50, s51\ns_lshl_b32 s51, s41, 5\ns_add_u32 s50, s50, s51')
    for s in range(3):
        for u in range(2):
            for r in range(4): p(f'buffer_load_ushort v{WM+8*s+4*u+r}, v{X0+5}, s[8:11], s50 offen offset:{192*r}')
            p('s_add_u32 s50, s50, 3072')
    setup2(p)
    for it in plan['start'][:2]: dma(p, *it)
    for i in range(24): p(f'v_lshlrev_b32 v{WM+i}, 16, v{WM+i}')
    for i in range(0, 24, 4): p(f'v_add_f32 v{D1+i//2}, v{WM+i}, v{WM+i+1}\nv_add_f32 v{D1+i//2+1}, v{WM+i+2}, v{WM+i+3}')
    for i in range(1, 12): p(f'v_add_f32 v{D1}, v{D1}, v{D1+i}')
    allred(p, 'v_add_f32', D1, D1+1)
    p(f's_lshl_b32 s44, s3, 2\ns_add_u32 s44, s44, {SCR}\nv_and_b32 v{X0+3}, 15, v0\nv_lshlrev_b32 v{X0+3}, 4, v{X0+3}\nv_add_u32 v{X0+4}, s44, v{X0+3}\nv_add_u32 v{X0+3}, {SCR}, v{X0+3}')
    p(f'ds_write_b32 v{X0+4}, v{D1}\nWAITL\ns_barrier\nds_read_b128 {vr(D1+4,4)}, v{X0+3}')
    p(f's_mov_b32 s44, {f2u(1/384):#x}\nv_add_f32 v{D1+4}, v{D1+4}, v{D1+5}\nv_add_f32 v{D1+6}, v{D1+6}, v{D1+7}\nv_add_f32 v{D1+4}, v{D1+4}, v{D1+6}\nv_mul_f32 v{D1+4}, s44, v{D1+4}')
    for i in range(24): p(f'v_sub_f32 v{WM+i}, v{WM+i}, v{D1+4}')
    for i in range(12): p(f'v_cvt_pk_bf16_f32 v{WF+i}, v{WM+2*i}, v{WM+2*i+1}')
    p(f's_mul_i32 s50, s40, 73728\ns_mul_i32 s51, s3, 18432\ns_add_u32 s50, s50, s51\ns_lshl_b32 s51, s41, 10\ns_add_u32 s50, s50, s51\ns_add_u32 s50, s50, {WS_VT}')
    for s in range(3):
        p(f'buffer_store_dwordx4 {vr(WF+4*s,4)}, v{VL}, s[28:31], s50 offen sc0 sc1', tag='pub')
        if s < 2: p('s_add_u32 s50, s50, 6144')
    late(p, 2)
    p(f's_lshl_b32 s44, s40, 12\ns_lshl_b32 s50, s41, 7\ns_add_u32 s44, s44, s50\ns_add_u32 s44, s44, {WS_HF+24*128}\ns_cmp_eq_u32 s3, 0\ns_cselect_b32 s97, s44, s97\nWAITV pub\ns_branch H_join')
    h_v = finalize(p.L)

    issue0 = issue
    def mkbody(plan, sfx):
        slot_of = {}
        for name, its in plan.items():
            if not isinstance(its, list): continue
            for it in its:
                if it[0] in 'FLX': slot_of[f'{it[0]}{it[1]}'] = it[2]
        LATSLOT = plan['lat_slots']
        def issue(q, name, prio=None): issue0(q, name, prio, plan, sfx)
        q = Prog()
        pre = Prog()
        issue0(pre, 'start', None, plan, sfx)
        base = {'Q': 0, 'P': 0, 'LT': 2*SLOT}
        def rebase(which, off, span=SLOT):
            regs = {'Q': range(Q, Q+4), 'P': range(P, P+8), 'LT': range(LT, LT+12)}[which]
            if not (base[which] <= off and off+span <= base[which]+65536):
                nb = (off//(2*SLOT))*2*SLOT
                d = nb - base[which]
                for r in regs: q(f'v_add_u32 v{r}, {d & 0xffffffff:#x}, v{r}')
                base[which] = nb
            return off - base[which]
        def bar(waits, name):
            b = q('BAR ' + ' '.join(waits)); b.extra = stampi(name)
            if plan.get('dloop') and name == 'm1': b.extra = b.extra + [I('s_mov_b32 s58, 0')]
            if plan.get('dloop') and name == 'm2': b.extra = [I('C_DLOOP:')] + b.extra
            if plan.get('dloop') and name == 'm6': b.extra = [I('s_add_u32 s58, s58, 1'), I('s_cmp_lt_u32 s58, 3'), I('s_cbranch_scc1 C_DLOOP')] + b.extra
        DP = plan.get('dmaprio', 300)
        def lat_mfma(ks):
            for t in range(6):
                for pt in range(4):
                    d = vr(U+4*(4*t+pt), 4)
                    q(mfma(d, vr(AF[ks % 2]+4*t, 4), ar(BF[ks % 2]+4*pt, 4), '0' if ks == 0 else d))
        for ks in range(12):
            bar([f'L{ks}'] + (['F0', 'F1'] if ks == 0 else []), f'lat{ks}')
            issue(q, f'lat{ks}', DP)
            o = rebase('LT', slot_of[f'L{ks}']*SLOT)
            for pt in range(4):
                q(f'ds_read_b128 {ar(BF[ks%2]+4*pt,4)}, v{Q+ks%4} offset:{slot_of[f"F{pt//2}"]*SLOT+12288*(pt%2)+256*(ks//4)}')
            for t in range(6):
                for e in range(2): q(f'ds_read_b64_tr_b16 {vr(AF[ks%2]+4*t+2*e,2)}, v{LT+2*t+e} offset:{o}')
            lat_mfma(ks)
        bar([], 'epi')
        issue(q, 'epi', DP)
        q(f's_lshl_b32 s50, s3, 6')
        for a_ in range(4): q(f'v_xor_b32 v{Q+a_}, s50, v{Q+a_}')
        q('s_mul_i32 s50, s3, 12')
        for t in range(6):
            q(f'v_add3_u32 v{LT+t}, s50, v{MU+2}, {2*t}\nv_xor_b32 v{LT+t}, v{LT+t}, v{MU+1}\nv_lshl_add_u32 v{LT+t}, v{LT+t}, 4, v{MU}')
        for pt in range(4):
            for t in range(6):
                d = U+4*(4*t+pt); tm = T+2*((6*pt+t) % 6)
                q(f'v_cvt_pk_bf16_f32 v{tm}, v{d}, v{d+1}\nv_cvt_pk_bf16_f32 v{tm+1}, v{d+2}, v{d+3}')
                q(f'ds_write_b64 v{LT+t}, {vr(tm,2)} offset:{LATSLOT[pt//2]*SLOT+12288*(pt%2)}')
        q(f's_mov_b32 s50, 0x3f803f80')
        for i in range(4): q(f'v_accvgpr_write_b32 a{ONES+i}, s50')
        for j in range(12): q(mfma(vr(PP,4), ar(ONES,4), ar(AA+4*j,4), '0' if j == 0 else vr(PP,4)))
        q(f'v_mov_b32 v{SA}, v{PP}\nv_mov_b32 v{LS}, 0')
        q(f's_mov_b32 s53, {f2u(1/384):#x}\ns_mov_b32 s54, {f2u(1e-5):#x}\ns_mov_b32 s55, {f2u(THR):#x}\ns_mov_b32 s56, 0x00800080')
        xfc = [0]; trc = [0]
        def partA(k):
            if k % 2 == 0:
                pt = k//2
                o = rebase('Q', LATSLOT[pt//2]*SLOT) + 12288*(pt % 2)
                j = 0
                for a_ in range(4):
                    for G in range(3):
                        if a_ == 0: fr = vr(Y+4*G, 4)
                        else: fr = ar(XF+4*(xfc[0] % NXF), 4); xfc[0] += 1
                        q(f'ds_read_b128 {fr}, v{Q+a_} offset:{o+256*G}')
                        q(mfma(vr(SLO,4), fr, ar(AA+4*(3*a_+G),4), '0' if j == 0 else vr(SLO,4)))
                        if a_ == 0:
                            q(mfma(vr(YY,4), fr, fr, '0' if G == 0 else vr(YY,4)))
                            q(mfma(vr(Y1,4), fr, ar(ONES,4), '0' if G == 0 else vr(Y1,4)))
                        j += 1
                for i in range(12): q(f'v_add_u32 v{Y+i}, s56, v{Y+i}')
            o = rebase('Q', slot_of[f'X{k}']*SLOT)
            sa = SACC[k % 2]
            for a_ in range(4):
                for G in range(3):
                    for mt in range(2):
                        fr = ar(XF+4*(xfc[0] % NXF), 4); xfc[0] += 1
                        q(f'ds_read_b128 {fr}, v{Q+a_} offset:{o+256*G+12288*mt}')
                        d = vr(sa+4*mt, 4)
                        q(mfma(d, fr, ar(AA+4*(3*a_+G),4), vr(SLO,4) if (a_ == 0 and G == 0) else d))
                        if a_ == 0:
                            d2 = vr(S2+4*mt, 4); d1 = vr(S1+4*mt, 4)
                            q(mfma(d2, fr, fr, vr(YY,4) if G == 0 else d2))
                            q(mfma(d1, fr, ar(ONES,4), vr(Y1,4) if G == 0 else d1))
                            q(mfma(d2, fr, vr(Y+4*G,4), d2))
                if a_ == 0:
                    for mt in range(2):
                        for (src, dst) in ((S2+4*mt, T+8+2*mt), (S1+4*mt, T+9+2*mt)):
                            q(f'v_cndmask_b32 v{dst}, v{src}, v{src+1}, s[32:33]\nv_cndmask_b32 v{dst}, v{dst}, v{src+2}, s[34:35]\nv_cndmask_b32 v{dst}, v{dst}, v{src+3}, s[36:37]')
                        q(f'ds_write_b64 v{SW}, {vr(T+8+2*mt,2)} offset:{1024*(k%2)+512*mt}')
        def pv(off, breg, first=False):
            o = rebase('P', off)
            for ct in range(24):
                fr = TR+4*(trc[0] % NTR); trc[0] += 1
                for e in range(2):
                    q(f'ds_read_b64_tr_b16 {ar(fr+2*e,2)}, v{P+ct%8} offset:{o+256*(ct//8)+12288*e}')
                d = vr(U+4*ct, 4)
                q(mfma(d, ar(fr,4), breg, '0' if first else d))
        def partB(k):
            sa = SACC[k % 2]
            t0 = T
            q(f'ds_read_b128 {vr(t0,4)}, v{SR} offset:{1024*(k%2)}')
            q(f'ds_read_b128 {vr(t0+4,4)}, v{SR} offset:{1024*(k%2)+16}')
            q(f'v_add_f32 v{t0}, v{t0}, v{t0+2}\nv_add_f32 v{t0+1}, v{t0+1}, v{t0+3}\nv_add_f32 v{t0+4}, v{t0+4}, v{t0+6}\nv_add_f32 v{t0+5}, v{t0+5}, v{t0+7}')
            q(f'v_add_f32 v{t0}, v{t0}, v{t0+4}\nv_add_f32 v{t0+1}, v{t0+1}, v{t0+5}')
            q(f'v_mul_f32 v{t0+1}, s53, v{t0+1}')
            q(f'v_mul_f32 v{t0}, s53, v{t0}\nv_fma_f32 v{t0}, -v{t0+1}, v{t0+1}, v{t0}')
            q(f'v_max_f32 v{t0}, 0, v{t0}\nv_add_f32 v{t0}, s54, v{t0}\nv_rsq_f32 v{t0}, v{t0}\nv_mul_f32 v{t0+1}, v{t0+1}, v{t0}')
            q(f'ds_write2_b32 v{BW}, v{t0}, v{t0+1} offset0:0 offset1:32', W=['L:bc'], private=True)
            for mt in range(2):
                q(f'ds_read_b128 {vr(MU+4*mt,4)}, v{BR} offset:{128+64*mt}', R=['L:bc'], private=True)
                q(f'ds_read_b128 {vr(RS+4*mt,4)}, v{BR} offset:{64*mt}', R=['L:bc'], private=True)
            for i in range(8):
                if k == 0: q(f'v_mul_f32 v{PP+i}, v{MU+i}, v{SA}\nv_fma_f32 v{PP+i}, v{sa+i}, v{RS+i}, -v{PP+i}')
                else: q(f'v_fma_f32 v{PP+i}, -v{MU+i}, v{SA}, v{NM}\nv_fma_f32 v{PP+i}, v{sa+i}, v{RS+i}, v{PP+i}')
            mx = T+2
            q(f'v_max3_f32 v{mx}, v{PP}, v{PP+1}, v{PP+2}\nv_max3_f32 v{mx+1}, v{PP+3}, v{PP+4}, v{PP+5}\nv_max3_f32 v{mx}, v{mx}, v{PP+6}, v{PP+7}\nv_max_f32 v{mx}, v{mx}, v{mx+1}')
            if k == 0:
                allred(q, 'v_max_f32', mx, mx+1)
                for i in range(8): q(f'v_sub_f32 v{PP+i}, v{PP+i}, v{mx}')
                q(f'v_sub_f32 v{NM}, 0, v{mx}')
            else:
                q(f'v_cmp_lt_f32 vcc, s55, v{mx}')
                live_pl = ([PL+i for i in range(4)] if k % 4 >= 1 else []) + ([PL+4+i for i in range(4)] if k % 4 == 3 else [])
                touched = [f'v{U+i}' for i in range(96)] + [f'v{PP+i}' for i in range(8)] + [f'v{x}' for x in (NM, LS, mx, mx+1)] + [f'v{x}' for x in live_pl]
                br = q(f's_cbranch_vccnz RARE{k}{sfx}', R=touched, W=touched)
                br.text += f'\nC_{k}{sfx}:'
                slow(f'RARE{k}{sfx}:\ns_nop 7')
                allred(slow, 'v_max_f32', mx, mx+1)
                slow(f'v_max_f32 v{mx}, 0, v{mx}')
                for i in range(8): slow(f'v_sub_f32 v{PP+i}, v{PP+i}, v{mx}')
                slow(f'v_sub_f32 v{NM}, v{NM}, v{mx}\nv_exp_f32 v{mx}, -v{mx}')
                for r in [U+i for i in range(96)] + [LS] + live_pl: slow(f'v_mul_f32 v{r}, v{mx}, v{r}')
                slow(f's_nop 1\ns_branch C_{k}{sfx}')
            for i in range(8): q(f'v_exp_f32 v{PP+i}, v{PP+i}')
            for i in range(8): q(f'v_mul_f32 v{RS+i}, v{PP+i}, v{RS+i}')
            for i in range(4): q(f'v_cvt_pk_bf16_f32 v{PK+i}, v{RS+2*i}, v{RS+2*i+1}')
            for i in range(8): q(f'v_add_f32 v{LS}, v{LS}, v{PP+i}')
            pl = PL+4*((k//2) % 2)
            for r in range(4):
                if k % 2 == 0: q(f'v_add_f32 v{pl+r}, v{RS+r}, v{RS+4+r}')
                else: q(f'v_add_f32 v{pl+r}, v{pl+r}, v{RS+r}\nv_add_f32 v{pl+r}, v{pl+r}, v{RS+4+r}')
            pv(slot_of[f'X{k}']*SLOT, vr(PK,4), first=(k == 0))
            if k % 4 == 3:
                for i in range(4): q(f'v_cvt_pk_bf16_f32 v{PKL+i}, v{PL+2*i}, v{PL+2*i+1}')
                pv(LATSLOT[k//4]*SLOT, vr(PKL,4))
        for k in range(-1, 8):
            if k == 6 and plan.get('split_last', True):
                bar([], 'm6'); issue(q, 'm6', DP); partB(6)
                bar(['X7'], 'm6b'); issue(q, 'm6b', DP); partA(7)
                continue
            bar([f'X{k+1}'] if k < 7 else [], f'm{k}')
            issue(q, f'm{k}', DP)
            if k >= 0: partB(k)
            if k < 7: partA(k+1)
        issue(q, 'proj')
        allred(q, 'v_add_f32', LS, T)
        CT = S1
        for s in range(12):
            b = (PL, PP, RS, MU)[s % 4]
            for i in range(4): q(f'v_cvt_pk_bf16_f32 v{b+i}, v{U+8*s+2*i}, v{U+8*s+2*i+1}')
            for dt in range(6):
                d = vr(CT+4*dt, 4)
                q(mfma(d, blk(vloc(s), 4*dt), vr(b, 4), '0' if s == 0 else d))
        for i in range(12): q(f'v_cvt_pk_bf16_f32 v{U+i}, v{CT+2*i}, v{CT+2*i+1}')
        q(f'v_sub_f32 v{U+12}, 0, v{NM}\nv_mov_b32 v{U+13}, v{LS}\nv_mov_b32 v{U+14}, 0\nv_mov_b32 v{U+15}, 0')
        q(f'v_and_b32 v{T}, 15, v0\nv_lshlrev_b32 v{T}, 8, v{T}\nv_and_b32 v{T+1}, 48, v0\nv_add_u32 v{T}, v{T}, v{T+1}')
        q(f's_lshl_b32 s50, s2, 14\ns_lshl_b32 s51, s3, 12\ns_add_u32 s50, s50, s51\ns_add_u32 s50, s50, {WS_PART}')
        for j in range(4): q(f'buffer_store_dwordx4 {vr(U+4*j,4)}, v{T}, s[28:31], s50 offen offset:{64*j} sc0 sc1')
        body, tt = schedule(q.L, verbose=True)
        return pre, body

    pre1, body1 = mkbody(plans[0], 'a')
    pre2, body2 = mkbody(plans[1], 'b')
    p = Prog()
    p.ext(stampi('stored'))
    p('s_load_dwordx2 s[4:5], s[0:1], 0\ns_load_dwordx2 s[6:7], s[0:1], 56\ns_load_dwordx2 s[8:9], s[0:1], 72')
    p('WAITV ALL\ns_barrier')
    p.ext(stampi('drained'))
    p(f's_lshl_b32 s50, s2, 7\ns_add_u32 s50, s50, {WS_TF}\ns_cmp_eq_u32 s3, 0\ns_cselect_b32 s50, s50, {WS_SIZE}')
    p('v_mov_b32 v2, 0\nv_mov_b32 v3, s38\ns_mov_b64 exec, 1')
    p('buffer_store_dword v3, v2, s[28:31], s50 offen sc0 sc1\ns_mov_b64 exec, -1')
    pub = list(p.L)
    p('s_cmp_lt_u32 s57, 64\ns_cbranch_scc0 K_fin')
    p('s_lshr_b32 s40, s57, 2\ns_and_b32 s41, s57, 3')
    p('s_waitcnt lgkmcnt(0)')
    srd(p, 12, 4, 12288); srd(p, 16, 6, 294912); srd(p, 20, 8, 12288)
    p('v_mov_b32 v1, s3\nv_mov_b32 v2, v0\nv_lshl_add_u32 v0, v1, 6, v2')
    WO = 96; D = 32
    p('v_mul_u32_u24 v5, 12, v2\ns_mul_i32 s42, s41, 73728\ns_mul_i32 s43, s3, 18432\ns_add_u32 s42, s42, s43')
    for i in range(24):
        p(f'buffer_load_dwordx3 {vr(WO+4*i,3)}, v5, s[16:19], s42 offen offset:{768*(i%4)}')
        if i % 4 == 3: p('s_add_u32 s42, s42, 3072')
    p('v_lshlrev_b32 v6, 2, v0\ns_mul_i32 s44, s40, 768\ns_mul_i32 s43, s41, 192\ns_add_u32 s44, s44, s43')
    p('buffer_load_dword v7, v6, s[12:15], s44 offen')
    p('v_lshrrev_b32 v3, 4, v2\nv_lshlrev_b32 v3, 14, v3\nv_and_b32 v4, 15, v2\nv_lshl_add_u32 v3, v4, 4, v3')
    p(f's_mov_b32 s45, {WS_TF}\nv_lshlrev_b32 v9, 7, v0')
    p(f's_mov_b32 s58, {SPIN}\nT_poll:')
    p('buffer_load_dword v8, v9, s[28:31], s45 offen sc1\ns_sub_u32 s58, s58, 1\ns_cbranch_scc1 T_pd\ns_waitcnt vmcnt(0)\nv_cmp_ne_u32 vcc, s38, v8\ns_cbranch_vccnz T_poll\nT_pd:')
    p.ext(stampi('flags'))
    p(f's_lshl_b32 s42, s3, 20\ns_lshl_b32 s43, s41, 12\ns_add_u32 s42, s42, s43\ns_lshl_b32 s43, s40, 8\ns_add_u32 s42, s42, s43\ns_add_u32 s42, s42, {WS_PART}')
    for j in range(16):
        p(f'buffer_load_dwordx4 {vr(D+4*j,4)}, v3, s[28:31], s42 offen sc1\ns_add_u32 s42, s42, 0x10000')
    M = 8
    if stamps and 'rows' in stamps: p('s_waitcnt vmcnt(0)'); p.ext(stampi('rows'))
    for j in range(16): p(f'v_mov_b32_dpp v{M+j}, v{D+4*j} row_newbcast:12 row_mask:0xf bank_mask:0xf')
    p(f'v_max3_f32 v24, v{M}, v{M+1}, v{M+2}')
    for j in range(3, 15, 2): p(f'v_max3_f32 v24, v24, v{M+j}, v{M+j+1}')
    p(f'v_max_f32 v24, v24, v{M+15}')
    allred(p, 'v_max_f32', 24, 25)
    p('v_lshlrev_b32 v25, 2, v1\nds_write_b32 v25, v24\nv_mov_b32 v26, 0\nWAITL\ns_barrier\nds_read_b128 v[28:31], v26')
    p('v_max3_f32 v24, v28, v29, v30\nv_max_f32 v24, v24, v31')
    A = 192
    p.ext(stampi('mx'))
    for j in range(16):
        p(f'v_sub_f32 v{M+j}, v{M+j}, v24\nv_exp_f32 v{M+j}, v{M+j}')
        p(f'v_cvt_pk_bf16_f32 v26, v{M+j}, 0\nv_lshlrev_b32 v27, 16, v26')
        p(f'v_mov_b32_dpp v28, v{D+4*j+1} row_newbcast:12 row_mask:0xf bank_mask:0xf')
        p(f'v_mul_f32 v{A+8}, v27, v28' if j == 0 else f'v_fmac_f32 v{A+8}, v27, v28')
        for i in range(4):
            p(f'v_dot2_f32_bf16 v{A+2*i}, v{D+4*j+i}, v26, {"0" if j == 0 else f"v{A+2*i}"}')
            p(f'v_dot2_f32_bf16 v{A+2*i+1}, v{D+4*j+i}, v27, {"0" if j == 0 else f"v{A+2*i+1}"}')
    p('s_nop 2')
    p.ext(stampi('acc'))
    for i in range(9): allred(p, 'v_add_f32', A+i, 25)
    p('v_mul_u32_u24 v25, 48, v4\nv_mov_b32 v26, 768\nv_mad_u32_u24 v26, v1, v26, v25')
    p(f'ds_write_b128 v26, {vr(A,4)} offset:64\nds_write_b128 v26, {vr(A+4,4)} offset:80\nds_write_b32 v26, v{A+8} offset:96')
    p('WAITL\ns_barrier')
    for z in range(4):
        p(f'ds_read_b128 {vr(D+12*z,4)}, v25 offset:{64+768*z}\nds_read_b128 {vr(D+12*z+4,4)}, v25 offset:{80+768*z}\nds_read_b32 v{D+12*z+8}, v25 offset:{96+768*z}')
    for i in range(9):
        p(f'v_add_f32 v{D+i}, v{D+i}, v{D+12+i}\nv_add_f32 v{D+24+i}, v{D+24+i}, v{D+36+i}\nv_add_f32 v{D+i}, v{D+i}, v{D+24+i}')
    p(f'v_rcp_f32 v{D+8}, v{D+8}')
    for i in range(8):
        p(f'v_mul_f32 v{D+i}, v{D+i}, v{D+8}\nv_cvt_pk_bf16_f32 v{D+i}, v{D+i}, 0')
    p('v_lshrrev_b32 v25, 2, v4\nv_lshlrev_b32 v25, 7, v25\nv_and_b32 v26, 3, v4\nv_lshl_add_u32 v25, v26, 4, v25\nv_lshl_add_u32 v25, v1, 10, v25')
    p(f'ds_write_b128 v25, {vr(D,4)} offset:4096\nds_write_b128 v25, {vr(D+4,4)} offset:4160')
    p('v_mov_b32 v26, 1120\nv_mul_u32_u24 v26, v1, v26')
    for i in range(6): p(f'ds_read_b128 {vr(D+12+4*i,4)}, v26 offset:{4096+16*i}')
    p.ext(stampi('ctx'))
    for i in range(24):
        c = D+12+i
        p(f'v_lshlrev_b32 v27, 16, v{c}')
        for u in range(3):
            p(f'v_dot2_f32_bf16 v{A+2*u}, v{WO+4*i+u}, v{c}, {"0" if i == 0 else f"v{A+2*u}"}')
            p(f'v_dot2_f32_bf16 v{A+2*u+1}, v{WO+4*i+u}, v27, {"0" if i == 0 else f"v{A+2*u+1}"}')
    p('s_nop 2')
    p.ext(stampi('gemv'))
    p('v_mul_u32_u24 v25, 24, v2\nv_mov_b32 v26, 1536\nv_mad_u32_u24 v25, v1, v26, v25')
    for u in range(3): p(f'ds_write_b64 v25, {vr(A+2*u,2)} offset:{8192+8*u}')
    p('WAITL\ns_barrier')
    p('v_cmp_gt_u32 vcc, 96, v0\ns_and_saveexec_b64 s[46:47], vcc\ns_cbranch_execz K_fin')
    p('v_lshlrev_b32 v25, 4, v0')
    for z in range(4): p(f'ds_read_b128 {vr(D+4*z,4)}, v25 offset:{8192+1536*z}')
    p('s_mov_b32 s45, 0x7fc00000\nv_mov_b32 v27, s45')
    for i in range(4):
        p(f'v_add_f32 v{D+i}, v{D+i}, v{D+4+i}\nv_add_f32 v{D+8+i}, v{D+8+i}, v{D+12+i}\nv_add_f32 v{D+i}, v{D+i}, v{D+8+i}')
        p(f'v_cmp_eq_u32 vcc, -1, v{D+i}\nv_cndmask_b32 v{D+i}, v{D+i}, v27, vcc')
    p(f's_mul_i32 s42, s57, 1536\ns_add_u32 s42, s42, {WS_XCH}')
    p(f'buffer_store_dwordx4 {vr(D,4)}, v25, s[28:31], s42 offen sc0 sc1')
    p(f's_add_u32 s45, s57, s3\ns_mov_b32 s46, {WS_EPOCH}\ns_cmp_eq_u32 s45, 0\ns_cselect_b32 s45, s46, {WS_SIZE}\nv_mov_b32 v26, s38\nv_mov_b32 v28, 0')
    p(f'buffer_store_dword v26, v28, s[28:31], s45 offen')
    p.ext(stampi('xpub'))
    p('v_cmp_gt_u32 vcc, 48, v0\ns_and_saveexec_b64 s[46:47], vcc\ns_cbranch_execz K_fin')
    p(f'v_lshlrev_b32 v25, 3, v0\ns_mul_i32 s42, s40, 6144\ns_mul_i32 s43, s41, 384\ns_add_u32 s42, s42, s43\ns_add_u32 s42, s42, {WS_XCH}')
    p('s_add_u32 s43, s42, 3072')
    p(f's_mov_b32 s58, {SPIN}\nT_poll2:')
    p(f'buffer_load_dwordx2 v[40:41], v25, s[28:31], s42 offen sc1\nbuffer_load_dwordx2 v[42:43], v25, s[28:31], s42 offen offset:1536 sc1')
    p(f'buffer_load_dwordx2 v[44:45], v25, s[28:31], s43 offen sc1\nbuffer_load_dwordx2 v[46:47], v25, s[28:31], s43 offen offset:1536 sc1')
    p('v_max3_u32 v48, v40, v41, v42\nv_max3_u32 v48, v48, v43, v44\nv_max3_u32 v48, v48, v45, v46\nv_max_u32 v48, v48, v47')
    p('s_sub_u32 s58, s58, 1\ns_cbranch_scc1 T_pd2\nv_cmp_eq_u32 vcc, -1, v48\ns_cbranch_vccnz T_poll2\nT_pd2:')
    p('v_lshlrev_b32 v48, 16, v7\nv_and_b32 v49, 0xffff0000, v7')
    p('v_add_f32 v40, v40, v42\nv_add_f32 v44, v44, v46\nv_add_f32 v41, v41, v43\nv_add_f32 v45, v45, v47\nv_add_f32 v40, v40, v44\nv_add_f32 v41, v41, v45')
    p('v_add_f32 v40, v40, v48\nv_add_f32 v41, v41, v49\nv_cvt_pk_bf16_f32 v40, v40, v41')
    p('buffer_store_dword v40, v6, s[20:23], s44 offen')
    p('K_fin:')
    if stamps:
        p('s_waitcnt vmcnt(0)')
        p.ext(stampi('end'))
        n = 20 if plan.get('fine') else len(names)
        if DBGST:
            p('s_load_dwordx2 s[10:11], s[0:1], 80\ns_waitcnt lgkmcnt(0)')
            p('s_mov_b64 exec, 1\nv_mov_b32 v1, 0\ns_cmp_eq_u32 s3, 0\ns_cbranch_scc0 K_end')
            p(f's_not_b32 s50, s{SB(0)}\nv_mov_b32 v2, s50\nglobal_atomic_umax v1, v2, s[10:11]\ns_nop 1')
            for i in range(n):
                p(f'v_mov_b32 v2, s{SB(i)}\nglobal_atomic_umax v1, v2, s[10:11] offset:{4*i+4}\ns_nop 1')
        else:
            p('s_load_dwordx2 s[10:11], s[0:1], 88\ns_waitcnt lgkmcnt(0)')
            p(f's_add_u32 s10, s10, {STAMP_OFF}\ns_addc_u32 s11, s11, 0')
            p(f's_mul_i32 s50, s2, {8*n}\ns_mov_b64 exec, 1\nv_mov_b32 v1, s50')
            p(f's_cmp_eq_u32 s3, {plan.get("stwave", 0)}\ns_cbranch_scc0 K_end')
            for i in range(n):
                p(f'v_mov_b32 v2, s{SB(i)}\nv_mov_b32 v3, s{SB(i)+1}\nglobal_store_dwordx2 v1, v[2:3], s[10:11] offset:{8*i}\ns_nop 1')
        print('stamps', n, names, file=sys.stderr)
    p('K_end:\ns_endpgm')
    def fin(pre, lab, body, tail):
        m = finalize(pre.L + [I(lab), I('s_waitcnt lgkmcnt(0)'), I('s_add_u32 s38, s38, 1')] + body + tail)
        return m[[i.text for i in m].index(lab):]
    main = fin(pre1, 'H_join1:', body1, p.L)
    main2 = fin(pre2, 'H_join:', body2, [I(i.text) for i in pub] + [I('s_branch K_fin')])
    if plan.get('fine'):
        nb, step = plan['fine']
        bars = [k for k, i in enumerate(main) if i.op == 's_barrier']
        a, b = bars[nb], bars[nb+1]
        out = main[:a+1]; k = 1; info = []
        for j in range(a+1, b+1):
            if (j-a-1) % step == 0 and k < 18 or j == b:
                out.append(I(f's_memtime s[{60+2*k}:{61+2*k}]')); k += 1
                tt = [getattr(x, 'idx', None) for x in main[j:j+6]]
                info.append((j-a-1, next((x for x in tt if x is not None), None)))
            out.append(main[j])
        main = out + [I(f's_memtime s[{60+2*k}:{61+2*k}]')] + main[b+1:]
        print('fine', info, file=sys.stderr)
    return head0 + h_a + h_v + h_none2 + h_none + main + main2 + finalize(slow.L) + [I('CODE_END:')]

BASE = {
    'lat_slots': (0, 1),
    'start': [('F', 0, 0), ('F', 1, 1), ('L', 0, 2), ('L', 1, 3)],
    **{f'lat{k}': [('L', k+3, 2+(k+3) % 4)] for k in range(9)},
    'm1': [('X', 4, 2)], 'm2': [('X', 5, 3)], 'm3': [('X', 6, 4)],
    'm4': [('X', 7, 5), ('V', 0), ('V', 1)], 'm5': [('V', 2), ('V', 3), ('V', 4)], 'm6': [('V', 5), ('V', 6)],
    'm7': [('V', 7), ('V', 8), ('V', 9)], 'proj': [('V', 10), ('V', 11)],
}
P1 = {**BASE, 'lat0': [('L', 2, 4), ('L', 3, 5)],
      'lat9': [('X', 0, 2)], 'lat10': [('X', 1, 3)], 'lat11': [('POLL',)], 'epi': [('CHECK',), ('A',), ('X', 2, 4)], 'm-1': [('TOUCHV',), ('X', 3, 5)]}
P2 = {**BASE, 'lat0': [('GO',), ('L', 2, 4), ('L', 3, 5)],
      'lat7': [('L', 10, 4), ('POLL',)], 'lat9': [('CHECK',), ('A',)], 'lat10': [('X', 0, 2)], 'lat11': [('X', 1, 3)], 'epi': [('TOUCHV',)],
      'm-1': [('X', 2, 4)], 'm0': [('X', 3, 5)]}
PLAN = (P1, P2)

def build(fn, plan=PLAN, stamps=False):
    hdr = open('standalone__detection_seg_mask2former__vision.s.ref').read().split('\n')
    hdr = [l for l in hdr if l.startswith(';') and '@launch' not in l and 'Override launch' not in l and 'grid=ceil' not in l]
    s = '\n'.join(hdr) + '\n'
    s += '; @launch grid=(256,1,1) block=(256,1,1) lds=163840\n'
    s += '.amdgcn_target "amdgcn-amd-amdhsa--gfx950"\n.text\n'
    s += f'.globl {KN}\n.p2align 8\n.type {KN},@function\n{KN}:\n'
    s += emit(gen(plan, stamps)).replace('CODE_LIM', f'CODE_END-{KN}-4096-64')
    s += f'''.section .rodata,"a"
.p2align 6
.amdhsa_kernel {KN}
  .amdhsa_next_free_vgpr 512
  .amdhsa_next_free_sgpr 102
  .amdhsa_accum_offset 256
  .amdhsa_group_segment_fixed_size 0
  .amdhsa_kernarg_size 96
  .amdhsa_user_sgpr_count 2
  .amdhsa_user_sgpr_kernarg_segment_ptr 1
  .amdhsa_system_sgpr_workgroup_id_x 1
.end_amdhsa_kernel
'''
    open(fn, 'w').write(s)

ST = ['start', 'a_iss', 'a_cmp', 'lat0', 'lat10', 'epi', 'm-1', 'm2', 'm4', 'm7', 'stored', 'drained', 'flags', 'rows', 'mx', 'acc', 'ctx', 'gemv', 'xpub', 'end']
if __name__ == '__main__':
    build('standalone__detection_seg_mask2former__vision.s')
    build('k_st.s', stamps=ST)
```

```python
import re

def regs_of(tok):
    tok = tok.strip()
    tok = tok.lstrip('-')
    if tok.startswith('abs(') or tok.startswith('|'):
        tok = tok.replace('abs(', '').replace(')', '').replace('|', '')
    m = re.fullmatch(r'([vas])\[(\d+):(\d+)\]', tok)
    if m:
        return [f'{m.group(1)}{i}' for i in range(int(m.group(2)), int(m.group(3))+1)]
    if re.fullmatch(r'[vas]\d+', tok):
        return [tok]
    if tok in ('vcc',): return ['vcc']
    if tok in ('exec',): return ['exec']
    if tok == 'm0': return ['m0']
    return []

TRANS = ('v_exp_f32', 'v_log_f32', 'v_rcp_f32', 'v_rsq_f32', 'v_sqrt_f32')

class I:
    __slots__ = ('text', 'op', 'R', 'W', 'kind', 'tag', 'prio', 'idx', 'extra')
    def __init__(self, text, R=(), W=(), tag=None, kind=None, private=False):
        self.text = text.strip()
        self.tag = tag
        self.extra = None
        t = self.text
        op = t.split()[0]
        self.op = op
        rest = t[len(op):].strip()
        rest = re.sub(r'quad_perm:\[[0-9,]*\]', 'quad_perm', rest)
        ops = [x.strip() for x in rest.split(',')] if rest else []
        mods = ''
        if ops:
            last = ops[-1].split()
            ops[-1] = last[0] if last else ''
            mods = ' '.join(last[1:])
        r, w = [], []
        k = None
        if op.startswith('v_mfma'):
            k = 'mfma'; w += regs_of(ops[0]); r += regs_of(ops[1]) + regs_of(ops[2]) + regs_of(ops[3])
            self.extra = (regs_of(ops[0]), regs_of(ops[1]) + regs_of(ops[2]), regs_of(ops[3]))
        elif op.startswith('ds_read') or op.startswith('ds_bpermute'):
            k = 'dsr'; w += regs_of(ops[0])
            for o in ops[1:]: r += regs_of(o)
        elif op.startswith('ds_'):
            k = 'dsw'
            for o in ops: r += regs_of(o)
        elif op.startswith('buffer_load') or op.startswith('global_load'):
            if 'lds' in mods.split() or '_lds_' in op:
                k = 'dma'
                for o in ops: r += regs_of(o)
                r.append('m0')
            else:
                k = 'vld'; w += regs_of(ops[0])
                for o in ops[1:]: r += regs_of(o)
        elif op.startswith('buffer_store') or op.startswith('global_store') or op.startswith('global_atomic') or op.startswith('buffer_atomic'):
            k = 'vst'
            for o in ops: r += regs_of(o)
            if op.startswith('buffer_store'): self.extra = regs_of(ops[0])
            elif op.startswith('global_store'): self.extra = regs_of(ops[1])
            if 'atomic' in op and 'sc0' in mods.split():
                k = 'vld'; w += regs_of(ops[0]); r = [x for x in r if x not in w]
        elif op.startswith('buffer_inv') or op.startswith('buffer_wbl2'):
            k = 'vst'
        elif op.startswith('v_cmp'):
            k = 'valu'; w += regs_of(ops[0])
            for o in ops[1:]: r += regs_of(o)
        elif op.startswith('v_permlane'):
            k = 'perm'; w += regs_of(ops[0]) + regs_of(ops[1]); r += regs_of(ops[0]) + regs_of(ops[1])
        elif op.startswith('v_'):
            k = 'trans' if op in TRANS else 'valu'
            w += regs_of(ops[0])
            for o in ops[1:]: r += regs_of(o)
            if op.startswith('v_fmac') or op.startswith('v_dot2c') or op.startswith('v_writelane'): r += regs_of(ops[0])
            if '_co_' in op:
                w += regs_of(ops[1]);
            if 'dpp' in op or 'row_' in mods or 'quad_perm' in mods:
                k = 'dpp'; r += regs_of(ops[0])
        elif op.startswith('s_'):
            k = 'salu'
            if op in ('s_waitcnt', 's_barrier', 's_nop', 's_endpgm', 's_branch', 's_sleep', 's_setprio'):
                k = 'ctl'
            elif op.startswith('s_cbranch'):
                k = 'ctl'
                r.append('scc' if 'scc' in op else ('vcc' if 'vcc' in op else 'exec'))
            elif op.startswith('s_cmp') or op.startswith('s_bitcmp'):
                w.append('scc')
                for o in ops: r += regs_of(o)
            elif op.startswith('s_load') or op.startswith('s_memrealtime') or op.startswith('s_memtime'):
                k = 'smem'; w += regs_of(ops[0])
                for o in ops[1:]: r += regs_of(o)
            else:
                w += regs_of(ops[0])
                for o in ops[1:]: r += regs_of(o)
                if not (op.startswith('s_mov') or op.startswith('s_mul') or op.startswith('s_cselect') or op.startswith('s_getpc') or op.startswith('s_getreg')):
                    w.append('scc')
                if op.startswith('s_cselect') or op.startswith('s_addc') or op.startswith('s_subb'):
                    r.append('scc')
                if 'saveexec' in op:
                    w.append('exec'); r.append('exec')
        elif op.endswith(':'):
            k = 'label'
        elif op in ('WAITV', 'WAITL', 'FENCE'):
            k = 'mark'
        elif op == 'GHOST':
            k = 'ghost'; r.append('VM'); w.append('VM')
        elif op == 'BAR':
            k = 'bar'; w.append('EPOCH'); r.append('VM'); w.append('VM')
        else:
            k = 'other'
        if k in ('valu', 'trans', 'perm', 'dpp', 'mfma', 'dsr', 'dsw', 'dma', 'vld', 'vst'):
            r.append('exec')
        if k in ('dma', 'vld', 'vst'):
            r.append('VM'); w.append('VM')
        if k in ('dsr', 'dsw', 'dma') and not private:
            r.append('EPOCH')
        self.R = set(r) | set(R); self.W = set(w) | set(W)
        self.kind = kind or k
    def __repr__(self): return self.text

ISSUE = {'mfma': 8, 'trans': 8, 'perm': 8}
def issue_cost(i): return ISSUE.get(i.kind, 4)

DSLAT = 130
VLDLAT = 700
DSB128 = 14
DSTR = 8
VMGAP = 64
def dep_latency(p, c, reg, typ):
    if reg == 'VM': return 4
    if typ == 'RAW':
        if p.kind == 'dsr': return DSLAT
        if p.kind == 'dsw': return 60 if reg.startswith('L:') else 4
        if p.kind == 'vld': return VLDLAT
        if p.kind == 'mfma':
            if c.kind == 'mfma' and reg in c.extra[2] and c.extra[2] == p.extra[0]: return 16
            return 44
        if c.kind == 'mfma' and p.kind in ('valu', 'trans', 'perm', 'dpp'): return issue_cost(p)+8
        if p.kind == 'trans': return 12
        if c.kind in ('perm', 'dpp'): return issue_cost(p)+8
        if reg in ('vcc',) or reg.startswith('s'):
            if p.kind == 'valu' and c.kind in ('valu',): return 12
        return issue_cost(p)
    if typ == 'WAW':
        if p.kind == 'mfma' and c.kind != 'mfma': return 44
        if p.kind == 'dsr': return DSLAT
        return issue_cost(p)
    if p.kind == 'mfma' and c.kind in ('valu', 'trans', 'perm', 'dpp') and reg in p.extra[2]: return 20
    return issue_cost(p)

DSBASE = 50
BARCOST = 40
def ds_service(i):
    if i.kind == 'dsr': return SVB if 'b128' in i.op else 2*SVB if 'read2_b64' in i.op else SVT
    return SVW if 'b128' in i.op else 25 if ('b64' in i.op or 'write2' in i.op) else 16
def schedule(insts, verbose=False):
    n = len(insts)
    preds = [dict() for _ in range(n)]
    lastw = {}; readers = {}
    def add(j, p, lat, comp):
        o = preds[j].get(p, (0, False))
        preds[j][p] = (max(o[0], lat), o[1] or comp)
    for j, c in enumerate(insts):
        for r in c.R:
            if r in lastw:
                p = lastw[r]; pi = insts[p]
                if r == 'EPOCH': add(j, p, BARCOST, False)
                elif r == 'VM': add(j, p, VMGAP if (c.kind in ('dma', 'vld', 'vst') and pi.kind in ('dma', 'vld', 'vst')) else 4, False)
                else: add(j, p, dep_latency(pi, c, r, 'RAW'), pi.kind in ('dsr', 'dsw'))
        for r in c.W:
            if r in lastw:
                p = lastw[r]
                if p != j: add(j, p, 4 if r in ('VM', 'EPOCH') else dep_latency(insts[p], c, r, 'WAW'), insts[p].kind == 'dsr' and r not in ('VM', 'EPOCH'))
            for p in readers.get(r, ()):
                if p != j:
                    if r == 'EPOCH': add(j, p, DSLAT if insts[p].kind in ('dsr', 'dsw') else 4, insts[p].kind in ('dsr', 'dsw'))
                    else: add(j, p, dep_latency(insts[p], c, r, 'WAR'), False)
        for r in c.R: readers.setdefault(r, []).append(j)
        for r in c.W:
            lastw[r] = j; readers[r] = []
    succs = [[] for _ in range(n)]
    for j in range(n):
        for p, (l, comp) in preds[j].items(): succs[p].append((j, l, comp))
    cp = [0]*n
    for j in range(n-1, -1, -1):
        cp[j] = max([l + cp[s] for s, l, _ in succs[j]] + [issue_cost(insts[j])])
        if getattr(insts[j], 'prio', None): cp[j] += insts[j].prio
    npred = [len(preds[j]) for j in range(n)]
    ready_t = [0]*n
    avail = [j for j in range(n) if npred[j] == 0]
    t = 0; mf_free = 0; out = []
    lds_done = 0; vm_free = 0; valu_done = 0
    last_mfma = False
    marks = []
    while avail:
        def start(j):
            s = max(t, ready_t[j])
            k = insts[j].kind
            if k == 'mfma': s = max(s, mf_free)
            if k in ('dsr', 'dsw'): s = max(s, lds_done - DSBASE - QMAX)
            if k in ('dma', 'vld', 'vst'): s = max(s, vm_free)
            if k in ('dsr', 'dsw', 'dma', 'vld', 'vst'): s = max(s, valu_done)
            return s
        now = [j for j in avail if start(j) <= t + 3]
        if now:
            sal = [j for j in now if insts[j].kind in ('salu', 'ctl')]
            mem = [j for j in now if insts[j].kind in ('dsr', 'dsw', 'dma', 'vld', 'vst')]
            if mem and MEMFIRST: best = max(mem, key=lambda j: (cp[j], -j));
            if mem and MEMFIRST and not (sal and last_mfma) and cp[best] + MEMB >= max(cp[j] for j in now): pass
            elif sal and last_mfma: best = max(sal, key=lambda j: (cp[j], -j))
            else: best = max(now, key=lambda j: (cp[j] + (MFBONUS if insts[j].kind == 'mfma' else 0), -j))
        else:
            best = min(avail, key=lambda j: (start(j), -cp[j], j))
        s = start(best)
        i = insts[best]
        out.append(i); avail.remove(best); i.idx = s
        cost = issue_cost(i)
        if i.kind in ('salu', 'ctl', 'mark') and last_mfma: cost = 0
        if i.kind == 'ghost': cost = 0
        if i.op.startswith('s_cbranch'): cost = 6 if last_mfma else BRC
        if i.kind == 'bar': cost = 12; marks.append(s)
        t = s + cost
        done = None
        if i.kind == 'mfma': mf_free = s + 16
        if i.kind in ('dsr', 'dsw'):
            lds_done = max(s + DSBASE, lds_done) + ds_service(i); done = lds_done
        if i.kind in ('dma', 'vld', 'vst'): vm_free = s + VMGAP
        if i.kind in ('valu', 'trans', 'perm', 'dpp'): valu_done = t + 8
        last_mfma = (i.kind == 'mfma')
        for sj, l, comp in succs[best]:
            ready_t[sj] = max(ready_t[sj], (done + 4) if (comp and done) else s + l)
            npred[sj] -= 1
            if npred[sj] == 0: avail.append(sj)
    assert len(out) == n
    if verbose:
        import sys; print('bar times', [b-a for a, b in zip([0]+marks, marks+[t])], 'total', t, file=sys.stderr)
    return out, t
QMAX = 10
SVW = 62
BRC = 15
SVB = 18
SVT = 10
MEMFIRST = True
MEMB = 10000
MFBONUS = 0

SAFE = 150
def insert_waits(insts):
    out = []
    ds = []
    vm = []
    t = 0; mf = 0; ghosts = {}; allvm = []
    for i in insts:
        needl = None; needv = None
        touch = i.R | i.W
        for k, d in enumerate(ds):
            if d[0] & touch: needl = len(ds)-1-k
        for k, (d, tag) in enumerate(vm):
            if d & (i.R if i.kind == 'vld' else touch): needv = len(vm)-1-k
        if i.op == 'WAITL':
            if ds: needl = 0
        if i.op == 'BAR':
            for k, d in enumerate(ds):
                if d[3]: needl = len(ds)-1-k
            tags = i.text.split()[1:]
            for k, (d, tag) in enumerate(vm):
                if tag in tags or 'ALL' in tags: needv = len(vm)-1-k
            for tg in tags:
                if tg in ghosts:
                    n = len(allvm) - ghosts.pop(tg)
                    if n <= len(vm) or True: needv = n if needv is None else min(needv, n); forced = True
        if i.op == 'WAITV':
            tags = i.text.split()[1:]
            for k, (d, tag) in enumerate(vm):
                if tag in tags or 'ALL' in tags: needv = len(vm)-1-k
        if needl is not None and needv is None and i.kind not in ('mark', 'bar'):
            j = len(out)-1; nds = 0; steps = 0
            while j >= 0 and out[j].kind in ('valu', 'trans', 'dsr', 'dsw', 'dma', 'vld', 'salu') and steps < 3:
                if out[j].kind in ('dsr', 'dsw'): nds += 1
                j -= 1; steps += 1
            need_el = ds[len(ds)-1-needl]
            if j >= 0 and out[j].kind == 'mfma' and steps > 0 and needl - nds >= 0 and need_el[2] < j and t - 4*steps - need_el[1] >= SAFE - 30:
                k = len(ds)-1-needl
                while k+1 < len(ds)-nds and t - 4*steps - ds[k+1][1] >= SAFE: k += 1
                n2 = len(ds)-1-k
                out.insert(j+1, I(f's_waitcnt lgkmcnt({min(n2-nds,15)})'))
                ds = [(a, b, c+1 if c > j else c, e) for a, b, c, e in ds[k+1:]]
                needl = None
        if needl is not None:
            k = len(ds)-1-needl
            while k+1 < len(ds) and t - ds[k+1][1] >= SAFE: k += 1
            needl = len(ds)-1-k
            t = max(t, ds[k][1] + DSLAT - 30)
        parts = []
        if needv is not None:
            parts.append(f'vmcnt({min(needv,63)})'); vm = (vm[max(len(vm)-needv, 0):] if needv else [])
        if needl is not None:
            parts.append(f'lgkmcnt({min(needl,15)})'); ds = ds[len(ds)-needl:] if needl else []
        if parts:
            if out and out[-1].op == 's_waitcnt' and getattr(out[-1], 'tag', None) == 'auto' and not any(x.split('(')[0] in out[-1].text for x in parts):
                out[-1] = I(out[-1].text + ' ' + ' '.join(parts), tag='auto')
            else:
                out.append(I('s_waitcnt ' + ' '.join(parts), tag='auto')); t += 4
        if i.kind == 'mark': continue
        if i.kind == 'ghost':
            ghosts[i.tag] = len(allvm); continue
        if i.kind == 'bar':
            if i.tag: out += i.tag
            out.append(I('s_barrier')); t += 30
            if i.extra: out += i.extra
            continue
        if i.op == 's_waitcnt':
            m = re.search(r'vmcnt\((\d+)\)', i.text)
            if m: nn = int(m.group(1)); vm = vm[len(vm)-nn:] if nn and nn < len(vm) else ([] if nn == 0 else vm)
            m = re.search(r'lgkmcnt\((\d+)\)', i.text)
            if m: nn = int(m.group(1)); ds = ds[len(ds)-nn:] if nn and nn < len(ds) else ([] if nn == 0 else ds)
        out.append(i)
        if i.kind == 'mfma':
            t = max(t, mf); mf = t + 16
        if i.kind == 'dsr': ds.append(({r for r in i.W if not r.startswith('L:')}, t, len(out)-1, 'EPOCH' in i.R))
        elif i.kind == 'dsw': ds.append((set(), t, len(out)-1, 'EPOCH' in i.R))
        elif i.kind == 'vld': vm.append(({r for r in i.W if r != 'VM'}, i.tag)); allvm.append(1)
        elif i.kind in ('dma', 'vst'): vm.append((set(), i.tag)); allvm.append(1)
        t += issue_cost(i)
    return out

VALUK = ('valu', 'trans', 'perm', 'dpp')
def insert_hazards(insts):
    out = []
    def states_since(pred):
        d = 0
        for p in reversed(out):
            if p.kind == 'label' and not p.text.startswith('C_'):
                return
            if p.kind == 'label': continue
            yield d, p
            d += (int(p.text.split()[1])+1) if p.op == 's_nop' else 1
            if d > 24: return
    for c in insts:
        need = 0
        if c.kind not in ('label', 'other'):
            for d, p in states_since(None):
                req = 0
                vw = {r for r in p.W if r[0] in 'va' and r not in ('vcc',) and r != 'VM'}
                if p.kind in VALUK:
                    if c.kind == 'mfma' and vw & c.R: req = max(req, 2)
                    if c.kind in ('perm', 'dpp') and vw & c.R: req = max(req, 2)
                    if c.op.startswith('v_readlane') or c.op.startswith('v_readfirstlane'):
                        if vw & c.R: req = max(req, 1)
                    if p.kind == 'trans' and c.kind in ('valu', 'perm', 'dpp') and vw & c.R: req = max(req, 1)
                    sw = {r for r in p.W if r[0] == 's' or r == 'vcc'} - {'scc'}
                    if sw & c.R:
                        if c.kind in VALUK: req = max(req, 2)
                        if c.kind in ('dma', 'vld', 'vst'): req = max(req, 5)
                        if c.kind in ('salu', 'ctl', 'smem'): req = max(req, 1)
                    if 'exec' in p.W:
                        req = max(req, 5)
                if p.kind == 'mfma':
                    D = set(p.extra[0])
                    if c.kind == 'mfma':
                        if D & set(c.extra[1]): req = max(req, 8)
                        if D & set(c.extra[2]) and c.extra[2] != p.extra[0]: req = max(req, 6)
                        if D & set(c.extra[0]) and c.extra[2] != p.extra[0]: req = max(req, 6)
                    elif c.kind in VALUK + ('dsr', 'dsw', 'dma', 'vld', 'vst'):
                        if D & (c.R | c.W): req = max(req, 8)
                    if c.kind in VALUK + ('dsr', 'vld') and set(p.extra[2]) & c.W: req = max(req, 3)
                if p.kind == 'salu' and 'm0' in p.W and c.kind == 'dma': req = max(req, 1)
                if p.kind == 'vst' and p.extra and len(p.extra) >= 3 and set(p.extra) & c.W: req = max(req, 2)
                if req - d > need: need = req - d
        while need > 0:
            k = min(need, 16)
            out.append(I(f's_nop {k-1}')); need -= k
        out.append(c)
    return out

def finalize(insts):
    return insert_hazards(insert_waits(insts))

def emit(insts):
    return '\n'.join(i.text for i in insts) + '\n'
```

```python
import sys, math, struct
import asmlib
from asmlib import *

KN = 'standalone__detection_seg_mask2former__vision_kernel'
WS_A = 0
WS_EPOCH = 0xD000
WS_HF = 0x58000
WS_TF = 0x78000
WS_VT = 65536
WS_XCH = 0x60000
WS_PART = 0x80000
WS_ML = WS_PART + 256*16384
WS_SIZE = WS_ML + 256*1024
STAMP_OFF = 128 << 20
SLOT = 24576
STAT = 147456; PXB = STAT+2560; PLB = PXB+8192; XA = PLB+4096; FLG = XA+1024; SCR = STAT
LOG2E = 1.4426950408889634
def f2u(x): return struct.unpack('<I', struct.pack('<f', x))[0]
THR = 2.0**30
SPIN = 1 << 20
STAMPOP = 's_memrealtime'

HEADST = False
DBGST = False
def SB(k): return [60, 62, 100, 66, 68, 70, 78, 82, 84, 86, 64, 72, 74, 76, 80, 88, 90, 92][k] if HEADST else 60+2*k
class Prog:
    def __init__(self): self.L = []
    def __call__(self, t, **kw):
        r = []
        for line in t.split('\n'):
            if line.strip():
                i = I(line, **kw); self.L.append(i); r.append(i)
        return r[-1]
    def ext(self, l): self.L += l

def vr(b, n=1): return f'v{b}' if n == 1 else f'v[{b}:{b+n-1}]'
def ar(b, n=1): return f'a{b}' if n == 1 else f'a[{b}:{b+n-1}]'
def mfma(d, a, b, c): return f'v_mfma_f32_16x16x32_bf16 {d}, {a}, {b}, {c}'
def srd(p, s, lo, size):
    p(f's_mov_b32 s{s}, s{lo}\ns_mov_b32 s{s+1}, s{lo+1}\ns_mov_b32 s{s+2}, {size}\ns_mov_b32 s{s+3}, 0x20000')
class RA:
    def __init__(self, start): self.n = start
    def __call__(self, k=1, al=1):
        self.n = (self.n+al-1)//al*al
        b = self.n; self.n += k; return b
def allred(z, op, a, t):
    z(f'v_mov_b32 v{t}, v{a}\nv_permlane32_swap_b32 v{a}, v{t}\n{op} v{a}, v{a}, v{t}')
    z(f'v_mov_b32 v{t}, v{a}\nv_permlane16_swap_b32 v{a}, v{t}\n{op} v{a}, v{a}, v{t}')

def gen(plan, stamps=False):
    v = RA(1)
    DX = v(6); Q = v(4); P = v(6); SW = v(); SR = v(); PX = v(4); FL = v(); VL = v()
    NM = v(); LS = v(); SA = v(); AL = v()
    T = v(12, 4)
    SACC = [v(8, 4), v(8, 4)]; S2 = v(8, 4); S1 = v(8, 4); PRO = [v(24, 4), v(24, 4)]
    PL = v(8, 4); PE = v(8, 4); RS = v(8, 4); PK = v(4, 4); PKL = v(4, 4)
    print('vgpr used', v.n, file=sys.stderr)
    U = 160
    assert v.n <= U, v.n
    DL = SACC[0]; LT = S2; MU = PL
    AF = PRO
    AA = 0; ONES = 48; XF = 52; NXF = 6; TR = 76; NTR = 6; PF = 100; LTF = 116; VA = 164; BF = [XF, XF+16]; JUNK = 252
    CT = S2
    VLOC = [('a', VA), ('a', VA+24), ('a', VA+48), ('a', LTF), None, None, None, ('a', 0), ('a', 24), ('a', XF), ('v', PRO[1]), ('v', PL)]
    def vloc(b): return VLOC[b]
    def blk(loc, i, n=4): return (ar if loc[0] == 'a' else vr)(loc[1]+i, n)
    names = []
    def stampi(name):
        if stamps and (stamps is True or name in stamps):
            if name not in names: names.append(name)
            k = names.index(name); assert k < 20
            return [I(f'{STAMPOP} s[{SB(k)}:{SB(k)+1}]')]
        return []
    plans = plan; plan = plans[0]
    def dma(q, kind, n, slot):
        srdn, base, off, fl, vo = {'F': (16, 's25', n*SLOT, ' nt', DL), 'L': (20, 's24', n*SLOT, '', DL),
                                   'X': (12, 's26', (n % 2)*196608 + (n//2)*SLOT, ' nt', DX)}[kind]
        tag = f'{kind}{n}'
        q(f's_add_u32 s49, {base}, {off}')
        q(f's_add_u32 m0, s24, {slot*SLOT}')
        for i in range(6):
            if i == 4: q(f's_add_u32 m0, s24, {slot*SLOT+4096}')
            q(f'buffer_load_dwordx4 v{vo+i}, s[{srdn}:{srdn+3}], s49 offen offset:{1024*(i%4)}{fl} lds', tag=tag)
    def loadA(q):
        q('s_mul_i32 s50, s3, 12288')
        for a_ in range(4):
            q(f's_xor_b32 s51, s3, {a_}\ns_lshl_b32 s51, s51, 10\ns_add_u32 s51, s51, s50')
            for G in range(3):
                if G: q('s_add_u32 s51, s51, 4096')
                q(f'buffer_load_dwordx4 {ar(AA+4*(3*a_+G),4)}, v{VL}, s[28:31], s51 offen sc1', tag='A')
    def loadV(q, bk, slot=None):
        loc = vloc(bk)
        q(f's_xor_b32 s52, s3, {bk//3}\ns_mul_i32 s52, s52, 18432\ns_add_u32 s52, s52, s27')
        if bk % 3: q(f's_add_u32 s52, s52, {6144*(bk%3)}')
        if slot is not None: q(f's_add_u32 m0, s24, {slot*SLOT}')
        for dt in range(6):
            if dt == 4:
                q('s_add_u32 s52, s52, 4096')
                if slot is not None: q(f's_add_u32 m0, s24, {slot*SLOT+4096}')
            if slot is not None: q(f'buffer_load_dwordx4 v{VL}, s[28:31], s52 offen offset:{1024*(dt%4)} sc1 lds', tag=f'W{bk}')
            else: q(f'buffer_load_dwordx4 {blk(loc,4*dt)}, v{VL}, s[28:31], s52 offen offset:{1024*(dt%4)} sc1', tag=f'V{bk}')
    slow = Prog()
    def issue(q, name, prio=None, plan=None, sfx=''):
        n0 = len(q.L)
        for it in plan.get(name, []):
            if it[0] == 'A': loadA(q)
            elif it[0] == 'V': loadV(q, it[1])
            elif it[0] == 'W': loadV(q, it[1], it[2])
            elif it[0] == 'POLL': q(f'buffer_load_dword v{T}, v{NM}, s[28:31], 0 offen sc1')
            elif it[0] == 'CHECK':
                q(f'v_cmp_ne_u32 vcc, s38, v{T}')
                br = q(f's_cbranch_vccnz POLL{sfx}', R=['VM', f'v{T}'], W=['VM', f'v{T}', 's58', 'scc', 'vcc'])
                br.text += f'\nC_POLL{sfx}:'
                slow(f'POLL{sfx}:\ns_mov_b32 s58, {SPIN}\nPOLL1{sfx}:\ns_sleep 8\nbuffer_load_dword v{T}, v{NM}, s[28:31], 0 offen sc1\ns_sub_u32 s58, s58, 1\ns_cbranch_scc1 C_POLL{sfx}\ns_waitcnt vmcnt(0)\nv_cmp_ne_u32 vcc, s38, v{T}\ns_cbranch_vccnz POLL1{sfx}\ns_branch C_POLL{sfx}')
            elif it[0] == 'GO':
                q(f'v_mov_b32 v{LS}, 0\nv_mov_b32 v{T+1}, s38')
                q(f's_mov_b64 exec, 1\nbuffer_store_dword v{T+1}, v{LS}, s[28:31], s97 offen sc0 sc1\ns_mov_b64 exec, -1')
            elif it[0] == 'TOUCHO':
                q('s_mov_b32 s52, s43')
                for i in range(5):
                    if i == 4: q('s_add_u32 s52, s52, 3584')
                    q(f'buffer_load_dwordx4 {ar(JUNK,4)}, v{VL}, s[16:19], s52 offen offset:{1024*(i%4)}', tag='pre')
            elif it[0] == 'TOUCHV':
                q(f's_add_u32 s52, s43, {WS_VT}')
                for i in range(5):
                    if i == 4: q('s_add_u32 s52, s52, 3584')
                    q(f'buffer_load_dwordx4 {ar(JUNK,4)}, v{VL}, s[28:31], s52 offen offset:{1024*(i%4)} sc1', tag='pre')
            else: dma(q, *it)
        if prio:
            for i in q.L[n0:]: i.prio = prio

    p = Prog()
    p('s_getpc_b64 s[40:41]')
    p('s_load_dwordx16 s[64:79], s[0:1], 0\ns_load_dwordx8 s[80:87], s[0:1], 64')
    p(f's_lshr_b32 s42, s2, 3\ns_and_b32 s43, s42, {plan.get("codemask", 31)}\ns_lshl_b32 s43, s43, 12\ns_min_u32 s43, s43, CODE_LIM')
    p(f'v_lshl_add_u32 v{T}, v0, 4, s43')
    p(f'global_load_dwordx4 {ar(JUNK,4)}, v{T}, s[40:41]', tag='pre')
    p('s_cmp_ge_u32 s2, 256\ns_cbranch_scc1 K_end')
    p.ext(stampi('start'))
    p('v_lshrrev_b32 v1, 6, v0\nv_and_b32 v0, 63, v0')
    p('v_readfirstlane_b32 s3, v1')
    p(f'v_lshlrev_b32 v{VL}, 4, v0\nv_min_u32 v{NM}, 29, v0\nv_lshlrev_b32 v{NM}, 7, v{NM}')
    p('s_and_b32 s45, s3, 1\ns_mul_i32 s46, s45, 9\ns_movk_i32 s47, 1366\ns_movk_i32 s48, 768')
    for i in range(3):
        t0, t1, t2 = T+1, T+2, T+3
        p(f'v_add_u32 v{t0}, {64*i}, v0' if i else f'v_mov_b32 v{t0}, v0')
        p(f'v_mul_u32_u24 v{t1}, s47, v{t0}\nv_lshrrev_b32 v{t1}, 16, v{t1}')
        p(f'v_mul_u32_u24 v{t2}, 48, v{t1}\nv_sub_u32 v{t0}, v{t0}, v{t2}')
        p(f'v_lshlrev_b32 v{t2}, 1, v{t1}\nv_xor_b32 v{t2}, s46, v{t2}\nv_xor_b32 v{t0}, v{t0}, v{t2}')
        p(f'v_lshlrev_b32 v{t0}, 4, v{t0}\nv_mul_u32_u24 v{t1}, s48, v{t1}\nv_add_u32 v{t0}, v{t0}, v{t1}')
        p(f'v_subrev_u32 v{DL+i}, {1024*i}, v{t0}' if i else f'v_mov_b32 v{DL+i}, v{t0}')
        p(f'v_add_u32 v{DX+i}, v{t1}, v{DL+i}')
        p(f'v_xor_b32 v{t0}, 128, v{t0}\nv_add_u32 v{DL+i+3}, {3072-1024*((i+3)%4)}, v{t0}\nv_add3_u32 v{DX+i+3}, v{t1}, v{DL+i+3}, s48')
        p(f'v_add_u32 v{DX+i+3}, 2304, v{DX+i+3}')
    m_, g_, F_, t_ = T, T+1, T+2, T+3
    p(f'v_and_b32 v{m_}, 15, v0\nv_lshrrev_b32 v{g_}, 4, v0')
    p('s_lshr_b32 s57, s2, 4\ns_lshl_b32 s57, s57, 3\ns_and_b32 s44, s2, 7\ns_or_b32 s57, s57, s44')
    p('s_mul_i32 s24, s3, 6144')
    p('s_lshr_b32 s99, s2, 4\ns_mul_i32 s44, s99, 43\ns_lshr_b32 s44, s44, 8\ns_mul_i32 s44, s44, 6\ns_sub_u32 s99, s99, s44\ns_add_u32 s99, s99, 3')
    p('s_mul_i32 s25, s2, 49152\ns_add_u32 s25, s25, s24')
    p('s_lshr_b32 s26, s2, 1\ns_mul_i32 s26, s26, 393216\ns_and_b32 s27, s2, 1\ns_mul_i32 s27, s27, 98304\ns_add_u32 s26, s26, s27')
    p('s_mul_i32 s27, s45, 12288\ns_add_u32 s26, s26, s27\ns_lshr_b32 s27, s3, 1\ns_mul_i32 s27, s27, 768\ns_add_u32 s26, s26, s27')
    p(f's_mul_i32 s27, s3, 73728\ns_add_u32 s27, s27, {WS_VT}')
    p('s_lshr_b32 s43, s2, 4\ns_lshl_b32 s43, s43, 2\ns_add_u32 s43, s43, s3\ns_mul_i32 s43, s43, 4608')
    p('s_waitcnt lgkmcnt(0)')
    srd(p, 12, 66, 50331648); srd(p, 16, 68, 12582912); srd(p, 20, 70, 294912); srd(p, 28, 86, WS_SIZE)
    p(f's_load_dword s38, s[86:87], {WS_EPOCH}')
    p(f's_lshl_b32 s50, s3, 12\ns_add_u32 s50, s50, {WS_HF}\nv_add_u32 v{NM}, s50, v{NM}')
    p.ext(stampi('karg'))
    p(f's_mov_b32 s97, {WS_SIZE}\ns_bitcmp1_b32 s2, 3\ns_cbranch_scc0 H_none')
    p('s_cmp_ge_u32 s57, 120\ns_cbranch_scc1 H_none2\ns_cmp_ge_u32 s57, 96\ns_cbranch_scc1 H_v')

    def late(p, n):
        for it in plan['start'][n:]: dma(p, *it)
    def setup(p, n=99):
        for it in plan['start'][:min(n, 2)]: dma(p, *it)
        setup2(p)
        for it in plan['start'][2:n]: dma(p, *it)
    def setup2(p):
        def fswz(dst, m):
            p(f'v_lshrrev_b32 v{t_}, 3, v{m}\nv_mul_u32_u24 v{t_}, 9, v{t_}\nv_and_b32 v{dst}, 7, v{m}\nv_lshlrev_b32 v{dst}, 1, v{dst}\nv_xor_b32 v{dst}, v{dst}, v{t_}')
        fswz(F_, m_)
        p(f'v_xor_b32 v{t_}, v{g_}, v{F_}\nv_lshlrev_b32 v{t_}, 4, v{t_}\nv_mad_u32_u24 v{Q}, v{m_}, s48, v{t_}')
        for a_ in range(1, 4): p(f'v_xor_b32 v{Q+a_}, {64*a_}, v{Q}')
        p(f'v_and_b32 v{t_}, 1, v{g_}\nv_lshlrev_b32 v{t_}, 3, v{t_}\nv_mad_u32_u24 v{MU}, v{m_}, s48, v{t_}\nv_add_u32 v{MU}, {4*SLOT}, v{MU}\nv_mov_b32 v{MU+1}, v{F_}\nv_lshrrev_b32 v{MU+2}, 1, v{g_}')
        p(f'v_lshrrev_b32 v{t_}, 2, v{m_}\nv_cmp_eq_u32 vcc, v{t_}, v{g_}')
        p(f's_lshl_b32 s50, s3, 4\nv_mov_b32 v{t_}, s50\nv_cndmask_b32 v{t_}, 64, v{t_}, vcc\nv_mul_u32_u24 v{SW}, 80, v{m_}\nv_add_u32 v{SW}, v{SW}, v{t_}\nv_add_u32 v{SW}, {STAT}, v{SW}')
        p(f'v_and_b32 v{t_}, 3, v0\nv_lshl_add_u32 v{t_}, v{g_}, 2, v{t_}\nv_mul_u32_u24 v{SR}, 80, v{t_}\nv_bfe_u32 v{t_}, v0, 2, 1\nv_lshl_add_u32 v{SR}, v{t_}, 3, v{SR}\nv_add_u32 v{SR}, {STAT}, v{SR}')
        for j in range(4): p(f's_xor_b32 s50, s3, {j}\ns_lshl_b32 s50, s50, 10\ns_add_u32 s50, s50, {PXB}\nv_add_u32 v{PX+j}, s50, v{VL}')
        p(f'v_mov_b32 v{FL}, {FLG}\nv_mov_b32 v{AL}, 1.0')
        p(f'v_and_b32 v{t_}, 3, v0')
        for j in range(1, 4): p(f'v_cmp_eq_u32 s[{30+2*j}:{31+2*j}], {j}, v{t_}')
        r_, b_ = T+4, T+5
        p(f'v_lshrrev_b32 v{r_}, 2, v{m_}\nv_lshl_add_u32 v{r_}, v{g_}, 2, v{r_}')
        p(f'v_bfe_u32 v{b_}, v0, 1, 1\nv_and_b32 v{T+6}, 1, v0\nv_lshlrev_b32 v{T+6}, 3, v{T+6}')
        fswz(F_, r_)
        p('s_mul_i32 s50, s3, 12')
        p(f'v_mad_u32_u24 v{T+7}, v{r_}, s48, v{T+6}')
        for t in range(6):
            p(f'v_add_u32 v{t_}, s50, v{b_}' if t == 0 else f'v_add3_u32 v{t_}, s50, v{b_}, {2*t}')
            p(f'v_xor_b32 v{t_}, v{t_}, v{F_}\nv_lshl_add_u32 v{P+t}, v{t_}, 4, v{T+7}')
        for e in range(2):
            p(f'v_lshrrev_b32 v{r_}, 2, v{m_}\nv_lshl_add_u32 v{r_}, v{g_}, 3, v{r_}')
            if e: p(f'v_add_u32 v{r_}, 4, v{r_}')
            p(f'v_and_b32 v{T+7}, 15, v{r_}')
            fswz(F_, T+7)
            p(f'v_mad_u32_u24 v{T+7}, v{r_}, s48, v{T+6}')
            p(f'v_add_u32 v{T+7}, {2*SLOT}, v{T+7}')
            for t in range(6):
                p(f'v_add_u32 v{t_}, s50, v{b_}' if t == 0 else f'v_add3_u32 v{t_}, s50, v{b_}, {2*t}')
                p(f'v_xor_b32 v{t_}, v{t_}, v{F_}\nv_lshl_add_u32 v{LT+2*t+e}, v{t_}, 4, v{T+7}')
    head0 = finalize(p.L)
    p = Prog(); p('H_none:')
    Z = U
    p('s_lshr_b32 s50, s2, 4\ns_lshl_b32 s50, s50, 2\ns_add_u32 s50, s50, s3\ns_bfe_u32 s51, s2, 0x20001\ns_mul_i32 s51, s51, 73728\ns_and_b32 s52, s2, 1')
    p(f's_mul_i32 s44, s50, 1152\ns_add_u32 s44, s44, s51\nv_min_u32 v{Z}, 8, v0\nv_lshl_add_u32 v{Z}, v{Z}, 7, s44')
    p(f'global_load_dword a{JUNK}, v{Z}, s[72:73]', tag='pre')
    p(f's_mul_i32 s44, s50, 4608\ns_mul_i32 s59, s52, 384\ns_add_u32 s59, s59, s44\nv_min_u32 v{Z+1}, 17, v0\nv_mul_u32_u24 v{Z+2}, 86, v{Z+1}\nv_lshrrev_b32 v{Z+2}, 8, v{Z+2}')
    p(f'v_mul_u32_u24 v{Z+2}, 384, v{Z+2}\nv_lshl_add_u32 v{Z+1}, v{Z+1}, 7, v{Z+2}\nv_add_u32 v{Z+1}, s59, v{Z+1}')
    p(f'global_load_dword a{JUNK}, v{Z+1}, s[80:81]', tag='pre')
    p(f's_mul_i32 s59, s50, 5\nv_min_u32 v{Z+2}, 4, v0\nv_add_u32 v{Z+2}, s59, v{Z+2}\nv_min_u32 v{Z+2}, 287, v{Z+2}\ns_mul_i32 s59, s52, 36864\ns_add_u32 s59, s59, s51\nv_lshl_add_u32 v{Z+2}, v{Z+2}, 7, s59')
    p(f'global_load_dword a{JUNK}, v{Z+2}, s[74:75]', tag='pre')
    p(f's_lshl_b32 s59, s50, 1\nv_min_u32 v{Z+3}, 1, v0\nv_add_u32 v{Z+3}, s59, v{Z+3}\nv_min_u32 v{Z+3}, 95, v{Z+3}\nv_lshlrev_b32 v{Z+3}, 7, v{Z+3}')
    p(f'global_load_dword a{JUNK}, v{Z+3}, s[64:65]', tag='pre')
    p(f'global_load_dword a{JUNK}, v{Z}, s[76:77]', tag='pre')
    p(f'v_min_u32 v{Z+4}, 35, v0\nv_lshl_add_u32 v{Z+4}, v{Z+4}, 7, s44')
    p(f'global_load_dword a{JUNK}, v{Z+4}, s[70:71]', tag='pre')
    if plan.get('hold'):
        setup2(p); p('WAITV pre')
        for it in plan['start']: dma(p, *it)
    else: setup(p)
    srd(p, 16, 78, 294912); h_none = finalize(p.L)
    plan = plans[1]
    p = Prog(); p('H_none2:'); setup(p); p('s_branch H_join'); h_none2 = finalize(p.L)
    p = Prog(); p('H_a:')
    srd(p, 4, 64, 12288); srd(p, 8, 72, 294912); srd(p, 52, 74, 294912); srd(p, 88, 80, 294912)
    p('s_bfe_u32 s40, s57, 0x20001\ns_and_b32 s41, s57, 1\ns_mul_i32 s41, s41, 12\ns_lshr_b32 s44, s57, 3\ns_add_u32 s41, s41, s44')
    p('s_mul_i32 s50, s44, 43\ns_lshr_b32 s50, s50, 7\ns_mul_i32 s50, s50, 3\ns_sub_u32 s44, s44, s50')
    for pp in range(3):
        p(f's_add_u32 s{92+pp}, s44, {pp}\ns_sub_u32 s50, s{92+pp}, 3\ns_cselect_b32 s{92+pp}, s{92+pp}, s50')
    X0 = U
    if plan.get('ffirst', 1):
        for it in plan['start'][:2]: dma(p, *it)
    WM = X0+8; D1 = X0+32; WF = X0+56; MF = X0+68; D2 = X0+80
    LQ = STAT; LK = LQ+12288; LW = 3*SLOT
    p(f's_mul_i32 s44, s40, 73728\ns_mul_i32 s50, s41, 3072\ns_add_u32 s50, s50, s44\ns_min_u32 s51, s3, 2\ns_lshl_b32 s51, s51, 10\ns_add_u32 s50, s50, s51\ns_add_u32 m0, s51, {LK}')
    p(f'buffer_load_dwordx4 v{VL}, s[52:55], s50 offen lds', tag='tq')
    p(f's_mul_i32 s96, s3, 3072\ns_add_u32 s96, s96, {LQ}\ns_mov_b32 m0, s96\ns_mul_i32 s50, s3, 192\ns_movk_i32 s51, 5462')
    for i in range(3):
        p(f'v_add_u32 v{X0}, {64*i}, v0\nv_mul_u32_u24 v{X0+1}, s51, v{X0}\nv_lshrrev_b32 v{X0+1}, 16, v{X0+1}\nv_mul_u32_u24 v{X0+1}, 576, v{X0+1}\nv_add_u32 v{X0+2+i}, v{X0+1}, v{VL}')
        p(f'buffer_load_dwordx4 v{X0+2+i}, s[4:7], s50 offen offset:{1024*i} lds', tag='tq')
    def addrs_a(p):
        p(f'v_lshrrev_b32 v{X0+6}, 1, v{g_}\nv_lshlrev_b32 v{X0+6}, 8, v{X0+6}\nv_lshl_add_u32 v{X0+6}, v{m_}, 4, v{X0+6}\nv_and_b32 v{X0+7}, 1, v{g_}\nv_lshl_add_u32 v{X0+6}, v{X0+7}, 3, v{X0+6}')
        p(f'v_mul_u32_u24 v{X0+3}, 192, v{m_}\nv_lshl_add_u32 v{X0+3}, v{g_}, 4, v{X0+3}')
        p(f'v_mul_u32_u24 v{X0+4}, 192, v{m_}\nv_lshl_add_u32 v{X0+4}, v{g_}, 3, v{X0+4}\nv_add_u32 v{X0+95}, {LK}, v{X0+3}')
    p('s_mul_i32 s98, s3, 18432\ns_add_u32 s44, s44, s98')
    p(f'v_mul_u32_u24 v{X0+5}, 3072, v{g_}\nv_lshl_add_u32 v{X0+5}, v{m_}, 1, v{X0+5}')
    p('s_mul_i32 s95, s3, 73728\ns_lshl_b32 s50, s41, 5\ns_add_u32 s95, s95, s50')
    p.ext(stampi('a_q'))
    AORD = plan.get('aord', {9: [0, 1]} if plan.get('ffirst', 1) else {})
    for pp in range(3):
        for x in AORD.get(pp, []): dma(p, *plan['start'][x])
        p(f's_mul_i32 s59, s{92+pp}, 6144\ns_add_u32 s50, s44, s59\ns_add_u32 s59, s59, s98\ns_add_u32 m0, s59, {LW}')
        for i in range(6):
            if i == 4: p(f's_add_u32 m0, s59, {LW+4096}\ns_add_u32 s50, s50, 4096')
            p(f'buffer_load_dwordx4 v{VL}, s[8:11], s50 offen offset:{1024*(i%4)} lds', tag='tw')
        p(f's_mul_i32 s50, s{92+pp}, 24576\ns_add_u32 s50, s50, s95')
        for u in range(2):
            for r in range(4): p(f'buffer_load_ushort v{WM+8*pp+4*u+r}, v{X0+5}, s[88:91], s50 offen offset:{768*r}')
            if u == 0: p('s_add_u32 s50, s50, 12288')
        if pp == 0:
            p.ext(stampi('a_w'))
            addrs_a(p); setup2(p)
    p(f'v_mov_b32 v{X0}, -1\nv_lshlrev_b32 v{X0+1}, 2, v0\ns_lshl_b32 s44, s57, 10\ns_lshl_b32 s50, s3, 8\ns_add_u32 s44, s44, s50\ns_add_u32 s44, s44, {WS_XCH}')
    p(f'buffer_store_dword v{X0}, v{X0+1}, s[28:31], s44 offen sc0 sc1', tag='clean')
    p.ext(stampi('a_iss'))
    for x in range(3):
        if not any(x in l for l in AORD.values()): dma(p, *plan['start'][x])
    p.ext(stampi('a_set'))
    p('WAITV tq tw\ns_barrier')
    p.ext(stampi('a_bar'))
    p0 = p; p = Prog()
    for ks in range(3): p(f'ds_read_b128 {ar(4*ks,4)}, v{X0+95} offset:{64*ks}')
    p(f's_mul_i32 s51, s3, 18432\ns_add_u32 s51, s51, {LW}')
    for pp in range(3):
        p(f's_mul_i32 s50, s{92+pp}, 6144\ns_add_u32 s50, s50, s51\nv_add_u32 v{X0+88+pp}, s50, v{X0+3}')
        p(f's_lshl_b32 s50, s{92+pp}, 6\ns_add_u32 s50, s50, s96\nv_add_u32 v{X0+92+pp}, s50, v{X0+4}')
        for t in range(2):
            for ks in range(3): p(f'ds_read_b128 {ar(12+24*pp+12*t+4*ks,4)}, v{X0+88+pp} offset:{3072*t+64*ks}')
        p(f'ds_read_b64 {ar(84+4*pp,2)}, v{X0+92+pp}\nds_read_b64 {ar(86+4*pp,2)}, v{X0+92+pp} offset:32')
    for t in range(6):
        for ks in range(3): p(mfma(vr(D1+4*t,4), ar(12+12*t+4*ks,4), ar(4*ks,4), '0' if ks == 0 else vr(D1+4*t,4)))
    for i in range(12): p(f'v_lshl_or_b32 v{MF+i}, v{WM+1+2*i}, 16, v{WM+2*i}')
    for s in range(3): p(mfma(vr(D2+4,4), vr(MF+4*s,4), ar(84+4*s,4), '0' if s == 0 else vr(D2+4,4)))
    for t in range(6): p(f'v_cvt_pk_bf16_f32 v{WF+2*t}, v{D1+4*t}, v{D1+4*t+1}\nv_cvt_pk_bf16_f32 v{WF+2*t+1}, v{D1+4*t+2}, v{D1+4*t+3}')
    for s in range(3): p(mfma(vr(D2,4), vr(WF+4*s,4), ar(84+4*s,4), '0' if s == 0 else vr(D2,4)))
    p(f's_mov_b32 s50, {f2u(96**-0.5*LOG2E):#x}\ns_mov_b32 s51, {f2u(384**-0.5*LOG2E):#x}')
    p(f'v_add_u32 v{X0+3}, s96, v{VL}')
    for r in range(4): p(f'v_mul_f32 v{D2+r}, s50, v{D2+r}\nv_fma_f32 v{D2+r}, s51, v{D2+4+r}, v{D2+r}')
    p0.ext(schedule(p.L)[0]); p = p0
    p.ext(stampi('a_cmp'))
    p(f'ds_write_b128 v{X0+3}, {vr(D2,4)}')
    p('WAITL\ns_barrier')
    p('s_cmp_eq_u32 s3, 0\ns_cbranch_scc0 H_a2')
    for w in range(4): p(f'ds_read_b128 {vr(D1+4*w,4)}, v{X0+3} offset:{3072*w}')
    for r in range(4): p(f'v_add_f32 v{D1+r}, v{D1+r}, v{D1+4+r}\nv_add_f32 v{D1+8+r}, v{D1+8+r}, v{D1+12+r}\nv_add_f32 v{D1+r}, v{D1+r}, v{D1+8+r}')
    p(f'v_cvt_pk_bf16_f32 v{D1}, v{D1}, v{D1+1}\nv_cvt_pk_bf16_f32 v{D1+1}, v{D1+2}, v{D1+3}')
    p('s_mul_i32 s50, s40, 12288\ns_lshl_b32 s51, s41, 9\ns_add_u32 s50, s50, s51')
    p(f'buffer_store_dwordx2 {vr(D1,2)}, v{X0+6}, s[28:31], s50 offen sc0 sc1', tag='pub')
    p.ext(stampi('a_pub'))
    p(f's_lshl_b32 s97, s40, 12\ns_lshl_b32 s50, s41, 7\ns_add_u32 s97, s97, s50\ns_add_u32 s97, s97, {WS_HF}')
    p('H_a2:'); late(p, 3); p('s_branch H_join')
    h_a = finalize(p.L)
    p = Prog(); p('H_v:')
    if plan.get('ffirst', 1):
        for it in plan['start'][:2]: dma(p, *it)
    srd(p, 8, 76, 294912)
    p('s_bfe_u32 s40, s57, 0x20001\ns_and_b32 s41, s57, 1\ns_mul_i32 s41, s41, 3\ns_lshr_b32 s44, s57, 3\ns_add_u32 s41, s41, s44\ns_sub_u32 s41, s41, 12')
    p(f'v_mul_u32_u24 v{X0+5}, 768, v{g_}\nv_lshl_add_u32 v{X0+5}, v{m_}, 1, v{X0+5}')
    p('s_mul_i32 s50, s40, 73728\ns_mul_i32 s51, s3, 18432\ns_add_u32 s50, s50, s51\ns_lshl_b32 s51, s41, 5\ns_add_u32 s50, s50, s51')
    for s in range(3):
        for u in range(2):
            for r in range(4): p(f'buffer_load_ushort v{WM+8*s+4*u+r}, v{X0+5}, s[8:11], s50 offen offset:{192*r}')
            p('s_add_u32 s50, s50, 3072')
    if not plan.get('ffirst', 1):
        for it in plan['start'][:2]: dma(p, *it)
    setup2(p)
    dma(p, *plan['start'][2])
    for i in range(24): p(f'v_lshlrev_b32 v{WM+i}, 16, v{WM+i}')
    for i in range(0, 24, 4): p(f'v_add_f32 v{D1+i//2}, v{WM+i}, v{WM+i+1}\nv_add_f32 v{D1+i//2+1}, v{WM+i+2}, v{WM+i+3}')
    for i in range(1, 12): p(f'v_add_f32 v{D1}, v{D1}, v{D1+i}')
    allred(p, 'v_add_f32', D1, D1+1)
    p(f's_lshl_b32 s44, s3, 2\ns_add_u32 s44, s44, {SCR}\nv_and_b32 v{X0+3}, 15, v0\nv_lshlrev_b32 v{X0+3}, 4, v{X0+3}\nv_add_u32 v{X0+4}, s44, v{X0+3}\nv_add_u32 v{X0+3}, {SCR}, v{X0+3}')
    p(f'ds_write_b32 v{X0+4}, v{D1}\nWAITL\ns_barrier\nds_read_b128 {vr(D1+4,4)}, v{X0+3}')
    p(f's_mov_b32 s44, {f2u(1/384):#x}\nv_add_f32 v{D1+4}, v{D1+4}, v{D1+5}\nv_add_f32 v{D1+6}, v{D1+6}, v{D1+7}\nv_add_f32 v{D1+4}, v{D1+4}, v{D1+6}\nv_mul_f32 v{D1+4}, s44, v{D1+4}')
    for rnd in range(2):
        for i in range(24):
            if rnd == 0: p(f'v_sub_f32 v{WM+i}, v{WM+i}, v{D1+4}')
            if rnd or i: p(f'v_add_f32 v{D1+5}, v{WM+i}, v{D1+5}')
            else: p(f'v_mov_b32 v{D1+5}, v{WM}')
            p(f'v_cvt_pk_bf16_f32 v{WM+i}, v{D1+5}, v{D1+5}\nv_and_b32 v{WM+i}, 0xffff0000, v{WM+i}\nv_sub_f32 v{D1+5}, v{D1+5}, v{WM+i}')
    for i in range(12): p(f'v_cvt_pk_bf16_f32 v{WF+i}, v{WM+2*i}, v{WM+2*i+1}')
    p(f's_mul_i32 s50, s40, 73728\ns_mul_i32 s51, s3, 18432\ns_add_u32 s50, s50, s51\ns_lshl_b32 s51, s41, 10\ns_add_u32 s50, s50, s51\ns_add_u32 s50, s50, {WS_VT}')
    for s in range(3):
        p(f'buffer_store_dwordx4 {vr(WF+4*s,4)}, v{VL}, s[28:31], s50 offen sc0 sc1', tag='pub')
        if s < 2: p('s_add_u32 s50, s50, 6144')
    late(p, 3)
    p(f's_lshl_b32 s44, s40, 12\ns_lshl_b32 s50, s41, 7\ns_add_u32 s44, s44, s50\ns_add_u32 s44, s44, {WS_HF+24*128}\ns_cmp_eq_u32 s3, 0\ns_cselect_b32 s97, s44, s97\ns_branch H_join')
    h_v = finalize(p.L)

    issue0 = issue
    def mkbody(plan, sfx):
        slot_of = {}
        for name, its in plan.items():
            if not isinstance(its, list): continue
            for it in its:
                if it[0] in ('F', 'L', 'X', 'W'): slot_of[f'{it[0]}{it[1]}'] = it[2]
        LATSLOT = plan['lat_slots']
        def issue(q, name, prio=None): issue0(q, name, prio, plan, sfx)
        q = Prog()
        pre = Prog()
        issue0(pre, 'start', None, plan, sfx)
        base = {'Q': 0, 'P': 0, 'LT': 2*SLOT}
        def rebase(which, off, span=SLOT):
            regs = {'Q': range(Q, Q+4), 'P': range(P, P+6), 'LT': range(LT, LT+12)}[which]
            if not (base[which] <= off and off+span <= base[which]+65536):
                nb = (off//(2*SLOT))*2*SLOT
                d = nb - base[which]
                for r in regs: q(f'v_add_u32 v{r}, {d & 0xffffffff:#x}, v{r}')
                base[which] = nb
            return off - base[which]
        def bar(waits, name):
            b = q('BAR ' + ' '.join(waits)); b.extra = stampi(name); b.tag = stampi('b'+name)
            if plan.get('dloop') and name == 'm1': b.extra = b.extra + [I('s_mov_b32 s58, 0')]
            if plan.get('dloop') and name == 'm2': b.extra = [I(f'C_DLOOP{sfx}:')] + b.extra
            if plan.get('dloop') and name == 'm6': b.extra = [I('s_add_u32 s58, s58, 1'), I('s_cmp_lt_u32 s58, 3'), I(f's_cbranch_scc1 C_DLOOP{sfx}')] + b.extra
        DP = plan.get('dmaprio', 300)
        XI = plan.get('xins', (0, 0))
        for ks in range(12):
            bar([f'L{ks}'] + (['F0', 'F1'] if ks == 0 else []), f'lat{ks}')
            if XI[0] <= ks < XI[1]:
                q(f's_cmp_eq_u32 s99, {ks}')
                br = q(f's_cbranch_scc1 XIN{ks}{sfx}', R=['VM', 'EPOCH', 'exec', 's24', 's26']+[f'v{DX+i}' for i in range(6)], W=['VM', 's49', 'm0', 'scc'])
                br.text += f'\nC_XIN{ks}{sfx}:'
                br.prio = DP
                slow(f'XIN{ks}{sfx}:'); dma(slow, 'X', 0, slot_of['F0']); dma(slow, 'X', 1, slot_of['F1']); slow(f's_branch C_XIN{ks}{sfx}')
                if ks == XI[1]-1: q('GHOST', tag='X0'); q('GHOST', tag='X1')
            issue(q, f'lat{ks}', DP)
            o = rebase('LT', slot_of[f'L{ks}']*SLOT)
            for k2 in (range(4*ks, 4*ks+4) if ks < 3 else ()):
                for pt in range(4):
                    q(f'ds_read_b128 {ar(16*k2+4*pt,4)}, v{Q+k2%4} offset:{slot_of[f"F{pt//2}"]*SLOT+12288*(pt%2)+256*(k2//4)}')
                if k2 == ks:
                    for t in range(6):
                        for e in range(2): q(f'ds_read_b64_tr_b16 {vr(AF[ks%2]+4*t+2*e,2)}, v{LT+2*t+e} offset:{o}')
            if ks > 0:
                for t in range(6):
                    for e in range(2): q(f'ds_read_b64_tr_b16 {vr(AF[ks%2]+4*t+2*e,2)}, v{LT+2*t+e} offset:{o}')
            for t in range(6):
                for pt in range(4):
                    d = vr(U+4*(4*t+pt), 4)
                    q(mfma(d, vr(AF[ks % 2]+4*t, 4), ar(16*ks+4*pt, 4), '0' if ks == 0 else d))
        slot_of['X0'] = slot_of['F0']; slot_of['X1'] = slot_of['F1']
        bar([], 'epi')
        issue(q, 'epi', DP)
        q(f's_lshl_b32 s50, s3, 6')
        for a_ in range(4): q(f'v_xor_b32 v{Q+a_}, s50, v{Q+a_}')
        q('s_mul_i32 s50, s3, 12')
        for t in range(6):
            q(f'v_add3_u32 v{LT+t}, s50, v{MU+2}, {2*t}\nv_xor_b32 v{LT+t}, v{LT+t}, v{MU+1}\nv_lshl_add_u32 v{LT+t}, v{LT+t}, 4, v{MU}')
        assert LATSLOT[1] == LATSLOT[0]+1
        for pt in range(4):
            for t in range(6):
                d = U+4*(4*t+pt); tm = T+2*((6*pt+t) % 6)
                q(f'v_cvt_pk_bf16_f32 v{tm}, v{d}, v{d+1}\nv_cvt_pk_bf16_f32 v{tm+1}, v{d+2}, v{d+3}')
                q(f'ds_write_b64 v{LT+t}, {vr(tm,2)} offset:{12288*pt}')
        q(f's_mov_b32 s50, 0x3f803f80')
        for i in range(4): q(f'v_accvgpr_write_b32 a{ONES+i}, s50')
        for j in range(12): q(mfma(vr(PE,4), ar(ONES,4), ar(AA+4*j,4), '0' if j == 0 else vr(PE,4)))
        q(f'v_sub_f32 v{SA}, 0, v{PE}\nv_mov_b32 v{LS}, 0')
        q(f's_lshl_b32 s50, s3, 2\nv_add_u32 v{RS}, s50, v{FL}\nds_write2_b32 v{RS}, v{LS}, v{LS} offset0:0 offset1:4')
        q(f's_mov_b32 s53, {f2u(1/384):#x}\ns_mov_b32 s54, {f2u(1e-5):#x}\ns_mov_b32 s55, {f2u(THR):#x}\ns_mov_b32 s56, 0x00800080')
        xfc = [0]; trc = [0]
        def pro(pt):
            SLO = PRO[pt % 2]; YY = SLO+4; Y1 = SLO+8; Y = SLO+12
            o = rebase('Q', LATSLOT[pt//2]*SLOT) + 12288*(pt % 2)
            j = 0
            for a_ in range(4):
                for G in range(3):
                    if a_ == 0: fr = vr(Y+4*G, 4)
                    else: fr = ar(XF+4*(xfc[0] % NXF), 4); xfc[0] += 1
                    q(f'ds_read_b128 {fr}, v{Q+a_} offset:{o+256*G}')
                    q(mfma(vr(SLO,4), fr, ar(AA+4*(3*a_+G),4), '0' if j == 0 else vr(SLO,4)))
                    if a_ == 0:
                        q(mfma(vr(YY,4), fr, fr, '0' if G == 0 else vr(YY,4)))
                        q(mfma(vr(Y1,4), fr, ar(ONES,4), '0' if G == 0 else vr(Y1,4)))
                    j += 1
            for i in range(12): q(f'v_add_u32 v{Y+i}, s56, v{Y+i}')
        def partA(k):
            SLO = PRO[(k//2) % 2]; YY = SLO+4; Y1 = SLO+8; Y = SLO+12
            o = rebase('Q', slot_of[f'X{k}']*SLOT)
            sa = SACC[k % 2]
            for a_ in range(4):
                for G in range(3):
                    for mt in range(2):
                        fr = ar(XF+4*(xfc[0] % NXF), 4); xfc[0] += 1
                        q(f'ds_read_b128 {fr}, v{Q+a_} offset:{o+256*G+12288*mt}')
                        d = vr(sa+4*mt, 4)
                        q(mfma(d, fr, ar(AA+4*(3*a_+G),4), vr(SLO,4) if (a_ == 0 and G == 0) else d))
                        if a_ == 0:
                            d2 = vr(S2+4*mt, 4); d1 = vr(S1+4*mt, 4)
                            q(mfma(d2, fr, fr, vr(YY,4) if G == 0 else d2))
                            q(mfma(d1, fr, ar(ONES,4), vr(Y1,4) if G == 0 else d1))
                            q(mfma(d2, fr, vr(Y+4*G,4), d2))
                if a_ == 0:
                    for mt in range(2):
                        for (src, dst) in ((S2+4*mt, T+8+2*mt), (S1+4*mt, T+9+2*mt)):
                            q(f'v_cndmask_b32 v{dst}, v{src}, v{src+1}, s[32:33]\nv_cndmask_b32 v{dst}, v{dst}, v{src+2}, s[34:35]\nv_cndmask_b32 v{dst}, v{dst}, v{src+3}, s[36:37]')
                    q(f'ds_write_b128 v{SW}, {vr(T+8,4)} offset:{1280*(k%2)}')
        DPP = 'row_mask:0xf bank_mask:0xf'
        def softmax(k):
            sa = SACC[k % 2]; t0 = T
            q(f'ds_read2_b64 {vr(t0,4)}, v{SR} offset0:{160*(k%2)} offset1:{160*(k%2)+2}')
            q(f'ds_read2_b64 {vr(t0+4,4)}, v{SR} offset0:{160*(k%2)+4} offset1:{160*(k%2)+6}')
            q(f'v_add_f32 v{t0}, v{t0}, v{t0+2}\nv_add_f32 v{t0+1}, v{t0+1}, v{t0+3}\nv_add_f32 v{t0+4}, v{t0+4}, v{t0+6}\nv_add_f32 v{t0+5}, v{t0+5}, v{t0+7}')
            q(f'v_add_f32 v{t0}, v{t0}, v{t0+4}\nv_add_f32 v{t0+1}, v{t0+1}, v{t0+5}')
            q(f'v_mul_f32 v{t0+1}, s53, v{t0+1}')
            q(f'v_mul_f32 v{t0}, s53, v{t0}\nv_fma_f32 v{t0}, -v{t0+1}, v{t0+1}, v{t0}')
            q(f'v_max_f32 v{t0}, 0, v{t0}\nv_add_f32 v{t0}, s54, v{t0}\nv_rsq_f32 v{t0}, v{t0}')
            for i in range(8): q(f'v_fmac_f32_dpp v{sa+i}, v{t0+1}, v{SA} row_newbcast:{i} {DPP}')
            for i in range(8): q(f'v_mov_b32_dpp v{RS+i}, v{t0} row_newbcast:{i} {DPP}', W=[f'v{RS+i}']).R.discard(f'v{RS+i}')
            mx = T+2; ts = T+4
            def exps(z):
                for i in range(8): z(f'v_exp_f32 v{PE+i}, v{sa+i}')
                z(f'v_add_f32 v{ts}, v{PE}, v{PE+1}\nv_add_f32 v{ts+1}, v{PE+2}, v{PE+3}\nv_add_f32 v{ts+2}, v{PE+4}, v{PE+5}\nv_add_f32 v{ts+3}, v{PE+6}, v{PE+7}')
                z(f'v_add_f32 v{ts}, v{ts}, v{ts+1}\nv_add_f32 v{ts+2}, v{ts+2}, v{ts+3}\nv_add_f32 v{ts}, v{ts}, v{ts+2}')
            def maxes(z):
                z(f'v_max3_f32 v{mx}, v{sa}, v{sa+1}, v{sa+2}\nv_max3_f32 v{mx+1}, v{sa+3}, v{sa+4}, v{sa+5}\nv_max3_f32 v{mx}, v{mx}, v{sa+6}, v{sa+7}\nv_max_f32 v{mx}, v{mx}, v{mx+1}')
                allred(z, 'v_max_f32', mx, mx+1)
            if k == 0:
                for i in range(8): q(f'v_mul_f32 v{sa+i}, v{sa+i}, v{RS+i}')
                maxes(q)
                for i in range(8): q(f'v_sub_f32 v{sa+i}, v{sa+i}, v{mx}')
                q(f'v_sub_f32 v{NM}, 0, v{mx}')
                exps(q)
            else:
                for i in range(8): q(f'v_fma_f32 v{sa+i}, v{sa+i}, v{RS+i}, v{NM}')
                exps(q)
                q(f'v_cmp_nge_f32 vcc, s55, v{ts}')
                live_pl = ([PL+i for i in range(4)] if k % 4 >= 1 else []) + ([PL+4+i for i in range(4)] if k % 4 == 3 else [])
                touched = [f'v{x+i}' for x in (sa, PE) for i in range(8)] + [f'v{x}' for x in (NM, LS, AL, mx, mx+1, ts, ts+1, ts+2, ts+3)] + [f'v{x}' for x in live_pl]
                br = q(f's_cbranch_vccnz RARE{k}{sfx}', R=touched+['EPOCH', f'v{FL}'], W=touched+['L:fl', 's59'])
                br.text += f'\nC_{k}{sfx}:'
                slow(f'RARE{k}{sfx}:')
                maxes(slow)
                slow(f'v_max_f32 v{mx}, 0, v{mx}')
                for i in range(8): slow(f'v_sub_f32 v{sa+i}, v{sa+i}, v{mx}')
                slow(f'v_sub_f32 v{NM}, v{NM}, v{mx}\nv_exp_f32 v{AL}, -v{mx}')
                for r in [LS] + live_pl: slow(f'v_mul_f32 v{r}, v{AL}, v{r}')
                slow(f's_lshl_b32 s59, s3, 2\nv_add_u32 v{mx}, s59, v{FL}\nv_mov_b32 v{mx+1}, {k+1}\nds_write_b32 v{mx}, v{mx+1} offset:{16*(k%2)}')
                exps(slow)
                slow(f's_waitcnt lgkmcnt(0)\ns_branch C_{k}{sfx}')
            q(f'v_add_f32 v{LS}, v{LS}, v{ts}')
            for i in range(8): q(f'v_mul_f32 v{RS+i}, v{PE+i}, v{RS+i}')
            for i in range(4): q(f'v_cvt_pk_bf16_f32 v{PK+i}, v{RS+2*i}, v{RS+2*i+1}')
            q(f'ds_write_b128 v{PX}, {vr(PK,4)} offset:{4096*(k%2)}')
            pl = PL+4*((k//2) % 2)
            for r in range(4):
                if k % 2 == 0: q(f'v_add_f32 v{pl+r}, v{RS+r}, v{RS+4+r}')
                else: q(f'v_add_f32 v{pl+r}, v{pl+r}, v{RS+r}\nv_add_f32 v{pl+r}, v{pl+r}, v{RS+4+r}')
            if k % 4 == 3:
                for i in range(4): q(f'v_cvt_pk_bf16_f32 v{PKL+i}, v{PL+2*i}, v{PL+2*i+1}')
                q(f'ds_write_b128 v{PX}, {vr(PKL,4)} offset:8192')
        def pv(k, order=None):
            if k > 0:
                q(f'ds_read_b128 {vr(PKL,4)}, v{FL} offset:{16*(k%2)}')
                q(f'v_max3_u32 v{PKL}, v{PKL}, v{PKL+1}, v{PKL+2}\nv_max_u32 v{PKL}, v{PKL}, v{PKL+3}\nv_cmp_eq_u32 s[100:101], {k+1}, v{PKL}\ns_cmp_lg_u64 s[100:101], 0')
                touched = [f'v{U+i}' for i in range(96)] + [f'v{AL}'] + [f'v{PKL+i}' for i in range(4)]
                br = q(f's_cbranch_scc1 RESC{k}{sfx}', R=touched+['EPOCH']+[f'v{PX+j}' for j in range(4)], W=touched)
                br.text += f'\nC_R{k}{sfx}:'
                slow(f'RESC{k}{sfx}:')
                for j in range(4):
                    slow(f'v_subrev_u32 v{PKL+j}, {PXB}, v{PX+j}\nv_lshrrev_b32 v{PKL+j}, 2, v{PKL+j}\nv_add_u32 v{PKL+j}, {XA}, v{PKL+j}')
                slow(f'ds_write_b32 v{PKL}, v{AL}\ns_waitcnt lgkmcnt(0)\ns_barrier')
                for j in range(4): slow(f'ds_read_b32 v{PKL+j}, v{PKL+j}')
                slow(f'v_mov_b32 v{AL}, 1.0\ns_waitcnt lgkmcnt(0)\ns_nop 7')
                for i in range(6):
                    for j in range(4):
                        for r in range(4): slow(f'v_mul_f32 v{U+16*i+4*j+r}, v{PKL+j}, v{U+16*i+4*j+r}')
                slow(f's_nop 1\ns_branch C_R{k}{sfx}')
            for j in range(4): q(f'ds_read_b128 {ar(PF+4*j,4)}, v{PX+j} offset:{4096*(k%2)}')
            o = rebase('P', slot_of[f'X{k}']*SLOT)
            frs = []
            for i in range(6):
                fr = TR+4*(trc[0] % NTR); trc[0] += 1; frs.append(fr)
                for e in range(2): q(f'ds_read_b64_tr_b16 {ar(fr+2*e,2)}, v{P+i} offset:{o+12288*e}')
            for i in range(6):
                for j in range(4):
                    d = vr(U+16*i+4*j, 4)
                    q(mfma(d, ar(frs[i],4), ar(PF+4*j,4), '0' if k == 0 else d))
            if k % 4 == 3:
                for j in range(4): q(f'ds_read_b128 {ar(PF+4*j,4)}, v{PX+j} offset:8192')
                for j in (1, 2, 3, 0):
                    for i in range(6):
                        d = vr(U+16*i+4*j, 4)
                        q(mfma(d, ar(LTF+24*(k//4)+4*i,4), ar(PF+4*j,4), d))
        REG = plan.get('regions') or ([(f'm{k}', k+1 if k < 7 else None, k if 0 <= k < 8 else None, k-1 if k >= 1 else None) for k in range(-1, 9)])
        for name, ka, ks_, kp in REG:
            bar([f'X{ka}'] if ka is not None else [], name)
            issue(q, name, DP)
            if name == 'm-1':
                for t in range(2):
                    o = rebase('P', LATSLOT[t]*SLOT)
                    for i in range(6):
                        for e in range(2): q(f'ds_read_b64_tr_b16 {ar(LTF+24*t+4*i+2*e,2)}, v{P+i} offset:{o+12288*e}')
                pro(0)
            if kp is not None: pv(kp)
            if ks_ is not None: softmax(ks_)
            if ka is not None: partA(ka)
            if name in ('m0', 'm2', 'm3'): pro({'m0': 1, 'm2': 2, 'm3': 3}[name])
        allred(q, 'v_add_f32', LS, T)
        q(f's_mul_i32 s51, s3, 3072\ns_mul_i32 s59, s3, 12288')
        for j in (1, 2, 3):
            q(f's_xor_b32 s50, s3, {j}\ns_mul_i32 s50, s50, 12288\ns_add_u32 s50, s50, s51\nv_add_u32 v{Q+j}, s50, v{VL}')
            q(f's_xor_b32 s50, s3, {j}\ns_mul_i32 s50, s50, 3072\ns_add_u32 s50, s50, s59\nv_add_u32 v{P+j}, s50, v{VL}')
        def cvtU(dst, i, j):
            for e in range(2):
                u = U+16*(2*i+e)+4*j
                q(f'v_cvt_pk_bf16_f32 v{dst+2*e}, v{u}, v{u+1}\nv_cvt_pk_bf16_f32 v{dst+2*e+1}, v{u+2}, v{u+3}')
        for j in (1, 2, 3):
            for i in range(3):
                b = SACC[0]+4*((3*j+i) % 4)
                cvtU(b, i, j)
                q(f'ds_write_b128 v{Q+j}, {vr(b,4)} offset:{1024*i}')
        for i in range(3): cvtU(T+4*i, i, 0)
        BB = PRO[0]+8
        for bk in (4, 5, 6): q(f's_add_u32 s50, s24, {slot_of[f"W{bk}"]*SLOT}\nv_add_u32 v{PX+bk-3}, s50, v{VL}')
        bar(['W4', 'W5', 'W6'], 'pj')
        issue(q, 'pj')
        for bk in range(12):
            j, i = bk//3, bk % 3
            if j == 0: b = T+4*i
            else:
                b = BB+4*(bk % 4)
                q(f'ds_read_b128 {vr(b,4)}, v{P+j} offset:{1024*i}')
            for dt in range(6):
                d = vr(CT+4*dt, 4)
                if vloc(bk) is None:
                    fr = ar(TR+4*((6*bk+dt) % 10), 4)
                    q(f'ds_read_b128 {fr}, v{PX+bk-3} offset:{1024*dt}')
                else: fr = blk(vloc(bk), 4*dt)
                q(mfma(d, fr, vr(b, 4), '0' if bk == 0 else d))
        O = PRO[1]
        for i in range(12): q(f'v_cvt_pk_bf16_f32 v{O+4*(i//3)+i%3}, v{CT+2*i}, v{CT+2*i+1}')
        for j in range(4): q(f'v_mov_b32 v{O+4*j+3}, s38')
        q(f'v_sub_f32 v{O+16}, 0, v{NM}\nv_mov_b32 v{O+17}, v{LS}\nv_mov_b32 v{O+18}, s38\nv_mov_b32 v{O+19}, s38')
        q(f'v_and_b32 v{Q}, 15, v0\nv_lshlrev_b32 v{P+4}, 4, v{Q}\nv_lshlrev_b32 v{Q}, 8, v{Q}\nv_and_b32 v{P}, 48, v0\nv_add_u32 v{Q}, v{Q}, v{P}')
        q(f's_lshl_b32 s50, s2, 14\ns_lshl_b32 s51, s3, 12\ns_add_u32 s50, s50, s51\ns_lshr_b32 s51, s50, 4\ns_add_u32 s50, s50, {WS_PART}\ns_add_u32 s51, s51, {WS_ML}')
        for j in range(4): q(f'buffer_store_dwordx4 {vr(O+4*j,4)}, v{Q}, s[28:31], s50 offen offset:{64*j} sc0 sc1')
        q(f'buffer_store_dwordx4 {vr(O+16,4)}, v{P+4}, s[28:31], s51 offen sc0 sc1')
        body, tt = schedule(q.L, verbose=True)
        return pre, body

    pre1, body1 = mkbody(plans[0], 'a')
    pre2, body2 = mkbody(plans[1], 'b')
    p = Prog()
    p.ext(stampi('stored'))
    pub = list(p.L)
    p('s_cmp_lt_u32 s57, 64\ns_cbranch_scc0 K_fin')
    p('s_load_dwordx2 s[4:5], s[0:1], 0\ns_load_dwordx2 s[8:9], s[0:1], 72')
    p('s_lshr_b32 s40, s57, 2\ns_and_b32 s41, s57, 3')
    p('v_mov_b32 v1, s3\nv_mov_b32 v2, v0\nv_lshl_add_u32 v0, v1, 6, v2')
    p('v_lshrrev_b32 v10, 4, v2\nv_and_b32 v4, 15, v2\nv_lshlrev_b32 v3, 14, v10\nv_lshl_add_u32 v3, v4, 4, v3\nv_lshlrev_b32 v9, 10, v10')
    WO = 160; D = 32; ML = 96; A = 24
    p('v_mul_u32_u24 v5, 12, v2\ns_mul_i32 s42, s41, 73728\ns_mul_i32 s43, s3, 18432\ns_add_u32 s42, s42, s43')
    for i in range(24):
        p(f'buffer_load_dwordx3 {vr(WO+4*i,3)}, v5, s[16:19], s42 offen offset:{768*(i%4)}')
        if i % 4 == 3: p('s_add_u32 s42, s42, 3072')
    WPI = [3, 7, 0, 4, 1, 5]
    def wo_perm():
        for i in range(12):
            for u in range(3):
                p(f'v_perm_b32 v{WO+8*i+WPI[2*u]}, v{WO+8*i+4+u}, v{WO+8*i+u}, s46\nv_perm_b32 v{WO+8*i+WPI[2*u+1]}, v{WO+8*i+4+u}, v{WO+8*i+u}, s47')
    p('s_mov_b32 s46, 0x05040100\ns_mov_b32 s47, 0x07060302')
    p('s_waitcnt lgkmcnt(0)')
    srd(p, 12, 4, 12288); srd(p, 20, 8, 12288)
    p('v_lshlrev_b32 v6, 2, v0\ns_mul_i32 s44, s40, 768\ns_mul_i32 s43, s41, 192\ns_add_u32 s44, s44, s43')
    p('buffer_load_dword v7, v6, s[12:15], s44 offen')
    p('v_lshrrev_b32 v11, 2, v4\nv_mul_u32_u24 v11, 3, v11\nv_and_b32 v12, 3, v4')
    p('v_and_b32 v13, 1, v10\nv_lshrrev_b32 v14, 1, v10')
    def daddr(dst, dw):
        p(f'v_lshrrev_b32 v15, 1, v{dw}\nv_lshlrev_b32 v15, 4, v15\nv_and_b32 v16, 1, v{dw}\nv_lshl_add_u32 v15, v16, 1, v15\nv_lshl_add_u32 v15, v12, 2, v15\nv_add_u32 v15, v15, v14')
        p(f'v_lshlrev_b32 v15, 4, v15\nv_lshl_add_u32 v{dst}, v1, 2, v15')
    p('v_add_u32 v17, v11, v13'); daddr(18, 17)
    p('v_add_u32 v17, 2, v11'); daddr(19, 17)
    p('v_lshlrev_b32 v20, 2, v1\nv_add_u32 v20, 1536, v20\nv_cmp_eq_u32 vcc, 1, v13\nv_cndmask_b32 v19, v19, v20, vcc')
    p('v_mul_u32_u24 v21, 24, v1\nv_min_u32 v22, 23, v2\nv_add_lshl_u32 v21, v21, v22, 4\nv_mov_b32 v22, 1536')
    p('v_lshlrev_b32 v8, 10, v2')
    p('s_barrier')
    p(f's_lshl_b32 s42, s3, 20\ns_lshl_b32 s43, s41, 12\ns_add_u32 s42, s42, s43\ns_lshl_b32 s43, s40, 8\ns_add_u32 s42, s42, s43\ns_lshr_b32 s43, s42, 4\ns_add_u32 s42, s42, {WS_PART}\ns_add_u32 s43, s43, {WS_ML}')
    p(f's_mov_b32 s58, {SPIN}\ns_mov_b32 s59, 0\nT_poll:')
    p(f'buffer_load_dword v11, v8, s[28:31], s43 offen offset:8 sc1\ns_sub_u32 s58, s58, 1\ns_cbranch_scc1 T_pd\ns_waitcnt vmcnt(0)\nv_cmp_ne_u32 vcc, s38, v11\ns_cbranch_vccnz T_poll')
    p.ext(stampi('fl1'))
    for j in range(16):
        p(f's_add_u32 s45, s43, {4*j*1024}\nbuffer_load_dwordx4 {vr(ML+4*j,4)}, v9, s[28:31], s45 offen sc1')
        p(f's_add_u32 s45, s42, {4*j*16384}\nbuffer_load_dwordx4 {vr(D+4*j,4)}, v3, s[28:31], s45 offen sc1')
    p('s_cmp_eq_u32 s59, 1\ns_cbranch_scc1 T_np\ns_mov_b32 s59, 1')
    wo_perm()
    p('T_np:')
    tg = [x for j in range(16) for x in (ML+4*j+2, D+4*j+3)]
    for op, r in (('v_min3_u32', 11), ('v_max3_u32', 12)): p(f'{op} v{r}, v{tg[0]}, v{tg[1]}, s38')
    for k in range(2, 32, 2):
        for op, r in (('v_min3_u32', 11), ('v_max3_u32', 12)): p(f'{op} v{r}, v{r}, v{tg[k]}, v{tg[k+1]}')
    p(f'v_cmp_ne_u32 vcc, v11, v12\ns_cbranch_vccnz T_poll\nT_pd:')
    p.ext(stampi('ph1'))
    z = Prog()
    z(f'v_max3_f32 v13, v{ML}, v{ML+4}, v{ML+8}')
    for j in range(3, 15, 2): z(f'v_max3_f32 v13, v13, v{ML+4*j}, v{ML+4*j+4}')
    z(f'v_max_f32 v13, v13, v{ML+60}')
    allred(z, 'v_max_f32', 13, 14)
    z('ds_write_b32 v20, v13 offset:16')
    for j in range(16):
        m = ML+4*j
        z(f'v_sub_f32 v{m}, v{m}, v13\nv_exp_f32 v{m}, v{m}\nv_cvt_pk_bf16_f32 v{m+2}, v{m}, 0\nv_lshlrev_b32 v{m+3}, 16, v{m+2}')
        z(f'v_mul_f32 v{A+6}, v{m+3}, v{m+1}' if j == 0 else f'v_fmac_f32 v{A+6}, v{m+3}, v{m+1}')
        for i in range(3):
            z(f'v_dot2_f32_bf16 v{A+2*i}, v{D+4*j+i}, v{m+2}, {"0" if j == 0 else f"v{A+2*i}"}')
            z(f'v_dot2_f32_bf16 v{A+2*i+1}, v{D+4*j+i}, v{m+3}, {"0" if j == 0 else f"v{A+2*i+1}"}')
    p.ext(schedule(z.L)[0]); p('s_nop 2')
    p.ext(stampi('acc'))
    p(f'v_mov_b32 v{A+7}, v{A+6}')
    for i in range(0, 8, 2): p(f'v_permlane32_swap_b32 v{A+i}, v{A+i+1}')
    for i in range(0, 8, 2): p(f'v_add_f32 v{A+i}, v{A+i}, v{A+i+1}')
    p(f'v_permlane16_swap_b32 v{A}, v{A+2}\nv_permlane16_swap_b32 v{A+4}, v{A+6}\nv_add_f32 v{A}, v{A}, v{A+2}\nv_add_f32 v{A+4}, v{A+4}, v{A+6}')
    p(f'ds_write_b32 v18, v{A}\nds_write_b32 v19, v{A+4}\nWAITL\ns_barrier')
    p(f'ds_read_b128 {vr(D,4)}, v22 offset:16\nds_read_b128 {vr(D+4,4)}, v22\nds_read_b128 {vr(D+8,4)}, v21')
    p(f'v_max3_f32 v13, v{D}, v{D+1}, v{D+2}\nv_max_f32 v13, v13, v{D+3}')
    for i in range(4): p(f'v_sub_f32 v{D+i}, v{D+i}, v13')
    for i in range(4): p(f'v_exp_f32 v{D+i}, v{D+i}')
    p(f'v_mul_f32 v14, v{D}, v{D+4}\nv_mul_f32 v15, v{D}, v{D+8}')
    for i in range(1, 4): p(f'v_fmac_f32 v14, v{D+i}, v{D+4+i}\nv_fmac_f32 v15, v{D+i}, v{D+8+i}')
    p('v_rcp_f32 v14, v14\nv_mul_f32 v15, v15, v14\nv_mov_b32_dpp v14, v15 quad_perm:[1,1,3,3] row_mask:0xf bank_mask:0xf\nv_cvt_pk_bf16_f32 v15, v15, v14')
    for i in range(12): p(f'v_readlane_b32 s{4+i if i < 8 else 44+i}, v15, {2*i}')
    p.ext(stampi('ctx'))
    for i in range(12):
        for u in range(6): p(f'v_dot2_f32_bf16 v{A+u}, v{WO+8*i+WPI[u]}, s{4+i if i < 8 else 44+i}, {"0" if i == 0 else f"v{A+u}"}')
    p('s_nop 2')
    p.ext(stampi('gemv'))
    p('v_mul_u32_u24 v11, 24, v2\nv_mad_u32_u24 v11, v1, v22, v11')
    for u in range(3): p(f'ds_write_b64 v11, {vr(A+2*u,2)} offset:{8192+8*u}')
    p('WAITL\ns_barrier')
    p('v_cmp_gt_u32 vcc, 96, v0\ns_and_saveexec_b64 s[46:47], vcc\ns_cbranch_execz K_fin')
    p('v_lshlrev_b32 v25, 4, v0')
    for z in range(4): p(f'ds_read_b128 {vr(D+4*z,4)}, v25 offset:{8192+1536*z}')
    p('s_mov_b32 s45, 0x7fc00000\nv_mov_b32 v27, s45')
    for i in range(4):
        p(f'v_add_f32 v{D+i}, v{D+i}, v{D+4+i}\nv_add_f32 v{D+8+i}, v{D+8+i}, v{D+12+i}\nv_add_f32 v{D+i}, v{D+i}, v{D+8+i}')
        p(f'v_cmp_eq_u32 vcc, -1, v{D+i}\nv_cndmask_b32 v{D+i}, v{D+i}, v27, vcc')
    p(f's_mul_i32 s42, s57, 1536\ns_add_u32 s42, s42, {WS_XCH}')
    p(f'buffer_store_dwordx4 {vr(D,4)}, v25, s[28:31], s42 offen sc0 sc1')
    p(f's_add_u32 s45, s57, s3\ns_mov_b32 s46, {WS_EPOCH}\ns_cmp_eq_u32 s45, 0\ns_cselect_b32 s45, s46, {WS_SIZE}\nv_mov_b32 v26, s38\nv_mov_b32 v28, 0')
    p(f'buffer_store_dword v26, v28, s[28:31], s45 offen')
    p.ext(stampi('xpub'))
    p('v_cmp_gt_u32 vcc, 48, v0\ns_and_saveexec_b64 s[46:47], vcc\ns_cbranch_execz K_fin')
    p(f'v_lshlrev_b32 v25, 3, v0\ns_mul_i32 s42, s40, 6144\ns_mul_i32 s43, s41, 384\ns_add_u32 s42, s42, s43\ns_add_u32 s42, s42, {WS_XCH}')
    p('s_add_u32 s43, s42, 3072')
    p(f's_mov_b32 s58, {SPIN}\nT_poll2:')
    p(f'buffer_load_dwordx2 v[40:41], v25, s[28:31], s42 offen sc1\nbuffer_load_dwordx2 v[42:43], v25, s[28:31], s42 offen offset:1536 sc1')
    p(f'buffer_load_dwordx2 v[44:45], v25, s[28:31], s43 offen sc1\nbuffer_load_dwordx2 v[46:47], v25, s[28:31], s43 offen offset:1536 sc1')
    p('v_max3_u32 v48, v40, v41, v42\nv_max3_u32 v48, v48, v43, v44\nv_max3_u32 v48, v48, v45, v46\nv_max_u32 v48, v48, v47')
    p('s_sub_u32 s58, s58, 1\ns_cbranch_scc1 T_pd2\nv_cmp_eq_u32 vcc, -1, v48\ns_cbranch_vccnz T_poll2\nT_pd2:')
    p('v_lshlrev_b32 v48, 16, v7\nv_and_b32 v49, 0xffff0000, v7')
    p('v_add_f32 v40, v40, v42\nv_add_f32 v44, v44, v46\nv_add_f32 v41, v41, v43\nv_add_f32 v45, v45, v47\nv_add_f32 v40, v40, v44\nv_add_f32 v41, v41, v45')
    p('v_add_f32 v40, v40, v48\nv_add_f32 v41, v41, v49\nv_cvt_pk_bf16_f32 v40, v40, v41')
    p('buffer_store_dword v40, v6, s[20:23], s44 offen')
    p('K_fin:')
    if stamps:
        p('s_waitcnt vmcnt(0)')
        p.ext(stampi('end'))
        n = 20 if plan.get('fine') else len(names)
        if DBGST:
            p('s_load_dwordx2 s[10:11], s[0:1], 80\ns_waitcnt lgkmcnt(0)')
            p('s_mov_b64 exec, 1\nv_mov_b32 v1, 0\ns_cmp_eq_u32 s3, 0\ns_cbranch_scc0 K_end')
            p(f's_not_b32 s50, s{SB(0)}\nv_mov_b32 v2, s50\nglobal_atomic_umax v1, v2, s[10:11]\ns_nop 1')
            for i in range(n):
                p(f'v_mov_b32 v2, s{SB(i)}\nglobal_atomic_umax v1, v2, s[10:11] offset:{4*i+4}\ns_nop 1')
        else:
            p('s_load_dwordx2 s[10:11], s[0:1], 88\ns_waitcnt lgkmcnt(0)')
            p(f's_add_u32 s10, s10, {STAMP_OFF}\ns_addc_u32 s11, s11, 0')
            p(f's_mul_i32 s50, s2, {8*n}\ns_mov_b64 exec, 1\nv_mov_b32 v1, s50')
            p(f's_cmp_eq_u32 s3, {plan.get("stwave", 0)}\ns_cbranch_scc0 K_end')
            for i in range(n):
                p(f'v_mov_b32 v2, s{SB(i)}\nv_mov_b32 v3, s{SB(i)+1}\nglobal_store_dwordx2 v1, v[2:3], s[10:11] offset:{8*i}\ns_nop 1')
        print('stamps', n, names, file=sys.stderr)
    p('K_end:\ns_endpgm')
    def fin(pre, lab, body, tail):
        m = finalize(pre.L + [I(lab), I('s_waitcnt lgkmcnt(0)'), I('s_add_u32 s38, s38, 1')] + body + tail)
        return m[[i.text for i in m].index(lab):]
    main = fin(pre1, 'H_join1:', body1, p.L)
    main2 = fin(pre2, 'H_join:', body2, [I(i.text) for i in pub] + [I('s_branch K_fin')])
    if plan.get('fine'):
        nb, step = plan['fine']
        bars = [k for k, i in enumerate(main) if i.op == 's_barrier']
        a, b = bars[nb], bars[nb+1]
        out = main[:a+1]; k = 1; info = []
        for j in range(a+1, b+1):
            if (j-a-1) % step == 0 and k < 18 or j == b:
                out.append(I(f's_memtime s[{60+2*k}:{61+2*k}]')); k += 1
                tt = [getattr(x, 'idx', None) for x in main[j:j+6]]
                info.append((j-a-1, next((x for x in tt if x is not None), None)))
            out.append(main[j])
        main = out + [I(f's_memtime s[{60+2*k}:{61+2*k}]')] + main[b+1:]
        print('fine', info, file=sys.stderr)
    return head0 + h_a + h_v + h_none2 + h_none + main + main2 + finalize(slow.L) + [I('CODE_END:')]

BASE = {
    'lat_slots': (4, 5),
    'start': [('F', 0, 0), ('F', 1, 1), ('L', 0, 2), ('L', 1, 3)],
    **{f'lat{k}': [('L', k+3, 2+(k+3) % 4)] for k in range(9)},
    'lat0': [('L', 2, 4), ('L', 3, 5)],
    'lat6': [('L', 9, 3), ('POLL',)], 'lat8': [('L', 11, 5), ('CHECK',), ('A',)], 'lat10': [('X', 0, 0)], 'lat11': [('X', 1, 1)], 'epi': [('X', 2, 2)], 'm-1': [('X', 3, 3)],
    'm1': [('X', 4, 4)], 'm2': [('X', 5, 0)], 'm3': [('X', 6, 1)],
    'm4': [('X', 7, 2), ('V', 0), ('W', 4, 5)], 'm5': [('V', 1), ('V', 2), ('W', 5, 3)], 'm6': [('V', 3), ('W', 6, 4)],
    'm7': [('V', 7), ('V', 8), ('V', 9)], 'm8': [('V', 10), ('V', 11)],
}
P1 = {**BASE, 'm0': [('TOUCHV',)], 'm3': [('X', 6, 1), ('TOUCHO',)], 'hold': 0,
      'lat6': [('L', 9, 3)], 'lat8': [('L', 11, 5), ('X', 0, 0)], 'lat9': [('X', 1, 1)], 'lat10': [('X', 2, 2), ('POLL',)], 'lat11': [],
      'epi': [('CHECK',), ('A',), ('X', 3, 3)], 'm-1': []}
P2 = {**BASE, 'lat1': [('GO',), ('L', 4, 2)], 'ffirst': 0}
PLAN = (P1, P2)

def build(fn, plan=PLAN, stamps=False):
    hdr = open('standalone__detection_seg_mask2former__vision.s.ref').read().split('\n')
    hdr = [l for l in hdr if l.startswith(';') and '@launch' not in l and 'Override launch' not in l and 'grid=ceil' not in l]
    s = '\n'.join(hdr) + '\n'
    s += '; @launch grid=(256,1,1) block=(256,1,1) lds=163840\n'
    s += '.amdgcn_target "amdgcn-amd-amdhsa--gfx950"\n.text\n'
    s += f'.globl {KN}\n.p2align 8\n.type {KN},@function\n{KN}:\n'
    s += emit(gen(plan, stamps)).replace('CODE_LIM', f'CODE_END-{KN}-4096-64')
    s += f'''.section .rodata,"a"
.p2align 6
.amdhsa_kernel {KN}
  .amdhsa_next_free_vgpr 512
  .amdhsa_next_free_sgpr 102
  .amdhsa_accum_offset 256
  .amdhsa_group_segment_fixed_size 0
  .amdhsa_kernarg_size 96
  .amdhsa_user_sgpr_count 2
  .amdhsa_user_sgpr_kernarg_segment_ptr 1
  .amdhsa_system_sgpr_workgroup_id_x 1
.end_amdhsa_kernel
'''
    open(fn, 'w').write(s)

ST = ['start', 'lat0', 'lat10', 'epi', 'm-1', 'm0', 'm2', 'm4', 'm7', 'm8', 'pj', 'stored', 'fl1', 'ph1', 'acc', 'ctx', 'gemv', 'xpub', 'end']
if __name__ == '__main__':
    build('k4.s')
    build('standalone__detection_seg_mask2former__vision.s')
    build('k_st.s', stamps=ST)
```

```python
import re

def regs_of(tok):
    tok = tok.strip()
    tok = tok.lstrip('-')
    if tok.startswith('abs(') or tok.startswith('|'):
        tok = tok.replace('abs(', '').replace(')', '').replace('|', '')
    m = re.fullmatch(r'([vas])\[(\d+):(\d+)\]', tok)
    if m:
        return [f'{m.group(1)}{i}' for i in range(int(m.group(2)), int(m.group(3))+1)]
    if re.fullmatch(r'[vas]\d+', tok):
        return [tok]
    if tok in ('vcc',): return ['vcc']
    if tok in ('exec',): return ['exec']
    if tok == 'm0': return ['m0']
    return []

TRANS = ('v_exp_f32', 'v_log_f32', 'v_rcp_f32', 'v_rsq_f32', 'v_sqrt_f32')

class I:
    __slots__ = ('text', 'op', 'R', 'W', 'kind', 'tag', 'prio', 'idx', 'extra', 'dl')
    def __init__(self, text, R=(), W=(), tag=None, kind=None, private=False):
        self.text = text.strip()
        self.tag = tag
        self.extra = None
        t = self.text
        op = t.split()[0]
        self.op = op
        rest = t[len(op):].strip()
        rest = re.sub(r'quad_perm:\[[0-9,]*\]', 'quad_perm', rest)
        ops = [x.strip() for x in rest.split(',')] if rest else []
        mods = ''
        if ops:
            last = ops[-1].split()
            ops[-1] = last[0] if last else ''
            mods = ' '.join(last[1:])
        r, w = [], []
        k = None
        if op.startswith('v_mfma'):
            k = 'mfma'; w += regs_of(ops[0]); r += regs_of(ops[1]) + regs_of(ops[2]) + regs_of(ops[3])
            self.extra = (regs_of(ops[0]), regs_of(ops[1]) + regs_of(ops[2]), regs_of(ops[3]))
        elif op.startswith('ds_read') or op.startswith('ds_bpermute'):
            k = 'dsr'; w += regs_of(ops[0])
            for o in ops[1:]: r += regs_of(o)
        elif op.startswith('ds_'):
            k = 'dsw'
            for o in ops: r += regs_of(o)
        elif op.startswith('buffer_load') or op.startswith('global_load'):
            if 'lds' in mods.split() or '_lds_' in op:
                k = 'dma'
                for o in ops: r += regs_of(o)
                r.append('m0')
            else:
                k = 'vld'; w += regs_of(ops[0])
                for o in ops[1:]: r += regs_of(o)
        elif op.startswith('buffer_store') or op.startswith('global_store') or op.startswith('global_atomic') or op.startswith('buffer_atomic'):
            k = 'vst'
            for o in ops: r += regs_of(o)
            if op.startswith('buffer_store'): self.extra = regs_of(ops[0])
            elif op.startswith('global_store'): self.extra = regs_of(ops[1])
            if 'atomic' in op and 'sc0' in mods.split():
                k = 'vld'; w += regs_of(ops[0]); r = [x for x in r if x not in w]
        elif op.startswith('buffer_inv') or op.startswith('buffer_wbl2'):
            k = 'vst'
        elif op.startswith('v_cmp'):
            k = 'valu'; w += regs_of(ops[0])
            for o in ops[1:]: r += regs_of(o)
        elif op.startswith('v_permlane'):
            k = 'perm'; w += regs_of(ops[0]) + regs_of(ops[1]); r += regs_of(ops[0]) + regs_of(ops[1])
        elif op.startswith('v_'):
            k = 'trans' if op in TRANS else 'valu'
            w += regs_of(ops[0])
            for o in ops[1:]: r += regs_of(o)
            if op.startswith('v_fmac') or op.startswith('v_dot2c') or op.startswith('v_writelane'): r += regs_of(ops[0])
            if '_co_' in op:
                w += regs_of(ops[1]);
            if 'dpp' in op or 'row_' in mods or 'quad_perm' in mods:
                k = 'dpp'; r += regs_of(ops[0])
        elif op.startswith('s_'):
            k = 'salu'
            if op in ('s_waitcnt', 's_barrier', 's_nop', 's_endpgm', 's_branch', 's_sleep', 's_setprio'):
                k = 'ctl'
            elif op.startswith('s_cbranch'):
                k = 'ctl'
                r.append('scc' if 'scc' in op else ('vcc' if 'vcc' in op else 'exec'))
            elif op.startswith('s_cmp') or op.startswith('s_bitcmp'):
                w.append('scc')
                for o in ops: r += regs_of(o)
            elif op.startswith('s_load') or op.startswith('s_memrealtime') or op.startswith('s_memtime'):
                k = 'smem'; w += regs_of(ops[0])
                for o in ops[1:]: r += regs_of(o)
            else:
                w += regs_of(ops[0])
                for o in ops[1:]: r += regs_of(o)
                if not (op.startswith('s_mov') or op.startswith('s_mul') or op.startswith('s_cselect') or op.startswith('s_getpc') or op.startswith('s_getreg')):
                    w.append('scc')
                if op.startswith('s_cselect') or op.startswith('s_addc') or op.startswith('s_subb'):
                    r.append('scc')
                if 'saveexec' in op:
                    w.append('exec'); r.append('exec')
        elif op.endswith(':'):
            k = 'label'
        elif op in ('WAITV', 'WAITL', 'FENCE'):
            k = 'mark'
        elif op == 'GHOST':
            k = 'ghost'; r.append('VM'); w.append('VM')
        elif op == 'BAR':
            k = 'bar'; w.append('EPOCH'); r.append('VM'); w.append('VM')
        else:
            k = 'other'
        if k in ('valu', 'trans', 'perm', 'dpp', 'mfma', 'dsr', 'dsw', 'dma', 'vld', 'vst'):
            r.append('exec')
        if k in ('dma', 'vld', 'vst'):
            r.append('VM'); w.append('VM')
        if k in ('dsr', 'dsw', 'dma') and not private:
            r.append('EPOCH')
        self.R = set(r) | set(R); self.W = set(w) | set(W)
        self.kind = kind or k
    def __repr__(self): return self.text

ISSUE = {'mfma': 8, 'trans': 8, 'perm': 8}
def issue_cost(i): return ISSUE.get(i.kind, 4)

DSLAT = 130
VLDLAT = 700
DSB128 = 14
DSTR = 8
VMGAP = 64
def dep_latency(p, c, reg, typ):
    if reg == 'VM': return 4
    if typ == 'RAW':
        if p.kind == 'dsr': return DSLAT
        if p.kind == 'dsw': return 60 if reg.startswith('L:') else 4
        if p.kind == 'vld': return VLDLAT
        if p.kind == 'mfma':
            if c.kind == 'mfma' and reg in c.extra[2] and c.extra[2] == p.extra[0]: return 16
            return 44
        if c.kind == 'mfma' and p.kind in ('valu', 'trans', 'perm', 'dpp'): return issue_cost(p)+8
        if p.kind == 'trans': return 12
        if c.kind in ('perm', 'dpp'): return issue_cost(p)+8
        if reg in ('vcc',) or reg.startswith('s'):
            if p.kind == 'valu' and c.kind in ('valu',): return 12
        return issue_cost(p)
    if typ == 'WAW':
        if p.kind == 'mfma' and c.kind != 'mfma': return 44
        if p.kind == 'dsr': return DSLAT
        return issue_cost(p)
    if p.kind == 'mfma' and c.kind in ('valu', 'trans', 'perm', 'dpp') and reg in p.extra[2]: return 20
    return issue_cost(p)

DSBASE = 50
BARCOST = 40
def ds_service(i):
    if i.kind == 'dsr': return SVB if 'b128' in i.op else 2*SVB if 'read2_b64' in i.op else SVT
    return SVW if 'b128' in i.op else 25 if ('b64' in i.op or 'write2' in i.op) else 16
def schedule(insts, verbose=False):
    n = len(insts)
    preds = [dict() for _ in range(n)]
    lastw = {}; readers = {}
    def add(j, p, lat, comp):
        o = preds[j].get(p, (0, False))
        preds[j][p] = (max(o[0], lat), o[1] or comp)
    for j, c in enumerate(insts):
        for r in c.R:
            if r in lastw:
                p = lastw[r]; pi = insts[p]
                if r == 'EPOCH': add(j, p, BARCOST, False)
                elif r == 'VM': add(j, p, VMGAP if (c.kind in ('dma', 'vld', 'vst') and pi.kind in ('dma', 'vld', 'vst')) else 4, False)
                else: add(j, p, dep_latency(pi, c, r, 'RAW'), pi.kind in ('dsr', 'dsw'))
        for r in c.W:
            if r in lastw:
                p = lastw[r]
                if p != j: add(j, p, 4 if r in ('VM', 'EPOCH') else dep_latency(insts[p], c, r, 'WAW'), insts[p].kind == 'dsr' and r not in ('VM', 'EPOCH'))
            for p in readers.get(r, ()):
                if p != j:
                    if r == 'EPOCH': add(j, p, DSLAT if insts[p].kind in ('dsr', 'dsw') else 4, insts[p].kind in ('dsr', 'dsw'))
                    else: add(j, p, dep_latency(insts[p], c, r, 'WAR'), False)
        for r in c.R: readers.setdefault(r, []).append(j)
        for r in c.W:
            lastw[r] = j; readers[r] = []
    succs = [[] for _ in range(n)]
    for j in range(n):
        for p, (l, comp) in preds[j].items(): succs[p].append((j, l, comp))
    cp = [0]*n
    for j in range(n-1, -1, -1):
        cp[j] = max([l + cp[s] for s, l, _ in succs[j]] + [issue_cost(insts[j])])
        if getattr(insts[j], 'prio', None): cp[j] += insts[j].prio
    if any(getattr(i, 'dl', None) is not None for i in insts):
        dl = [0]*n; last = 0
        for j in range(n):
            if getattr(insts[j], 'dl', None) is not None: last = insts[j].dl
            dl[j] = last
        for j in range(n-1, -1, -1):
            for sj, l, comp in succs[j]:
                if insts[sj].kind == 'bar' or insts[j].kind == 'bar': continue
                dl[j] = min(dl[j], dl[sj] - (PREF if comp else min(l, 60)))
        cp = [-x for x in dl]
    npred = [len(preds[j]) for j in range(n)]
    ready_t = [0]*n
    avail = [j for j in range(n) if npred[j] == 0]
    t = 0; mf_free = 0; out = []
    lds_done = 0; vm_free = 0; valu_done = 0
    last_mfma = False
    marks = []
    while avail:
        def start(j):
            s = max(t, ready_t[j])
            k = insts[j].kind
            if k == 'mfma': s = max(s, mf_free)
            if k in ('dsr', 'dsw'): s = max(s, lds_done - DSBASE - QMAX)
            if k in ('dma', 'vld', 'vst'): s = max(s, vm_free)
            if k in ('dsr', 'dsw', 'dma', 'vld', 'vst'): s = max(s, valu_done)
            return s
        now = [j for j in avail if start(j) <= t + 3]
        if now:
            sal = [j for j in now if insts[j].kind in ('salu', 'ctl')]
            mem = [j for j in now if insts[j].kind in ('dsr', 'dsw', 'dma', 'vld', 'vst')]
            if mem and MEMFIRST: best = max(mem, key=lambda j: (cp[j], -j));
            if mem and MEMFIRST and not (sal and last_mfma) and cp[best] + MEMB >= max(cp[j] for j in now): pass
            elif sal and last_mfma: best = max(sal, key=lambda j: (cp[j], -j))
            else: best = max(now, key=lambda j: (cp[j] + (MFBONUS if insts[j].kind == 'mfma' else 0), -j))
        else:
            best = min(avail, key=lambda j: (start(j), -cp[j], j))
        s = start(best)
        i = insts[best]
        out.append(i); avail.remove(best); i.idx = s
        cost = issue_cost(i)
        if i.kind in ('salu', 'ctl', 'mark') and last_mfma: cost = 0
        if i.kind == 'ghost': cost = 0
        if i.op.startswith('s_cbranch'): cost = 6 if last_mfma else BRC
        if i.kind == 'bar': cost = 12; marks.append(s)
        t = s + cost
        done = None
        if i.kind == 'mfma': mf_free = s + 16
        if i.kind in ('dsr', 'dsw'):
            lds_done = max(s + DSBASE, lds_done) + ds_service(i); done = lds_done
        if i.kind in ('dma', 'vld', 'vst'): vm_free = s + VMGAP
        if i.kind in ('valu', 'trans', 'perm', 'dpp'): valu_done = t + 8
        last_mfma = (i.kind == 'mfma')
        for sj, l, comp in succs[best]:
            ready_t[sj] = max(ready_t[sj], (done + 4) if (comp and done) else s + l)
            npred[sj] -= 1
            if npred[sj] == 0: avail.append(sj)
    assert len(out) == n
    if verbose:
        import sys; print('bar times', [b-a for a, b in zip([0]+marks, marks+[t])], 'total', t, file=sys.stderr)
    return out, t
QMAX = 10
PREF = 110
SVW = 62
BRC = 15
SVB = 18
SVT = 10
MEMFIRST = True
MEMB = 10000
MFBONUS = 0

BULK = True
SAFE = 100
def insert_waits(insts):
    out = []
    ds = []
    vm = []
    t = 0; mf = 0; ghosts = {}; allvm = []
    for i in insts:
        needl = None; needv = None
        touch = i.R | i.W
        for k, d in enumerate(ds):
            if d[0] & touch: needl = len(ds)-1-k
        for k, (d, tag) in enumerate(vm):
            if d & (i.R if i.kind == 'vld' else touch): needv = len(vm)-1-k
        if needv is not None and BULK:
            k = len(vm)-1-needv
            if vm[k][1] and vm[k][1][0] == 'V':
                while k+1 < len(vm) and vm[k+1][1] == vm[k][1]: k += 1
                needv = len(vm)-1-k
        if i.op == 'WAITL':
            if ds: needl = 0
        if i.op == 'BAR':
            for k, d in enumerate(ds):
                if d[3]: needl = len(ds)-1-k
            tags = i.text.split()[1:]
            for k, (d, tag) in enumerate(vm):
                if tag in tags or 'ALL' in tags: needv = len(vm)-1-k
            for tg in tags:
                if tg in ghosts:
                    n = len(allvm) - ghosts.pop(tg)
                    if n <= len(vm) or True: needv = n if needv is None else min(needv, n); forced = True
        if i.op == 'WAITV':
            tags = i.text.split()[1:]
            for k, (d, tag) in enumerate(vm):
                if tag in tags or 'ALL' in tags: needv = len(vm)-1-k
        if needl is not None and needv is None and i.kind not in ('mark', 'bar'):
            j = len(out)-1; nds = 0; steps = 0
            while j >= 0 and out[j].kind in ('valu', 'trans', 'dsr', 'dsw', 'dma', 'vld', 'salu') and steps < 7:
                if out[j].kind in ('dsr', 'dsw'): nds += 1
                j -= 1; steps += 1
            need_el = ds[len(ds)-1-needl]
            if j >= 0 and out[j].kind == 'mfma' and steps > 0 and needl - nds >= 0 and need_el[2] < j and t - 4*steps - need_el[1] >= SAFE - 30:
                k = len(ds)-1-needl
                while k+1 < len(ds)-nds and t - 4*steps - ds[k+1][1] >= SAFE: k += 1
                n2 = len(ds)-1-k
                out.insert(j+1, I(f's_waitcnt lgkmcnt({min(n2-nds,15)})'))
                ds = [(a, b, c+1 if c > j else c, e) for a, b, c, e in ds[k+1:]]
                needl = None
        if needl is not None:
            k = len(ds)-1-needl
            while k+1 < len(ds) and t - ds[k+1][1] >= SAFE: k += 1
            needl = len(ds)-1-k
            t = max(t, ds[k][1] + DSLAT - 30)
        parts = []
        if needv is not None:
            parts.append(f'vmcnt({min(needv,63)})'); vm = (vm[max(len(vm)-needv, 0):] if needv else [])
        if needl is not None:
            parts.append(f'lgkmcnt({min(needl,15)})'); ds = ds[len(ds)-needl:] if needl else []
        if parts:
            if out and out[-1].op == 's_waitcnt' and getattr(out[-1], 'tag', None) == 'auto' and not any(x.split('(')[0] in out[-1].text for x in parts):
                out[-1] = I(out[-1].text + ' ' + ' '.join(parts), tag='auto')
            else:
                out.append(I('s_waitcnt ' + ' '.join(parts), tag='auto')); t += 4
        if i.kind == 'mark': continue
        if i.kind == 'ghost':
            ghosts[i.tag] = len(allvm); continue
        if i.kind == 'bar':
            if i.tag: out += i.tag
            out.append(I('s_barrier')); t += 30
            if i.extra: out += i.extra
            continue
        if i.op == 's_waitcnt':
            m = re.search(r'vmcnt\((\d+)\)', i.text)
            if m: nn = int(m.group(1)); vm = vm[len(vm)-nn:] if nn and nn < len(vm) else ([] if nn == 0 else vm)
            m = re.search(r'lgkmcnt\((\d+)\)', i.text)
            if m: nn = int(m.group(1)); ds = ds[len(ds)-nn:] if nn and nn < len(ds) else ([] if nn == 0 else ds)
        out.append(i)
        if i.kind == 'mfma':
            t = max(t, mf); mf = t + 16
        if i.kind == 'dsr': ds.append(({r for r in i.W if not r.startswith('L:')}, t, len(out)-1, 'EPOCH' in i.R))
        elif i.kind == 'dsw': ds.append((set(), t, len(out)-1, 'EPOCH' in i.R))
        elif i.kind == 'vld': vm.append(({r for r in i.W if r != 'VM'}, i.tag)); allvm.append(1)
        elif i.kind in ('dma', 'vst'): vm.append((set(), i.tag)); allvm.append(1)
        t += issue_cost(i)
    return out

VALUK = ('valu', 'trans', 'perm', 'dpp')
def insert_hazards(insts):
    out = []
    def states_since(pred):
        d = 0
        for p in reversed(out):
            if p.kind == 'label' and not p.text.startswith('C_'):
                return
            if p.kind == 'label': continue
            yield d, p
            d += (int(p.text.split()[1])+1) if p.op == 's_nop' else 1
            if d > 24: return
    for c in insts:
        need = 0
        if c.kind not in ('label', 'other'):
            for d, p in states_since(None):
                req = 0
                vw = {r for r in p.W if r[0] in 'va' and r not in ('vcc',) and r != 'VM'}
                if p.kind in VALUK:
                    if c.kind == 'mfma' and vw & c.R: req = max(req, 2)
                    if c.kind in ('perm', 'dpp') and vw & c.R: req = max(req, 2)
                    if c.op.startswith('v_readlane') or c.op.startswith('v_readfirstlane'):
                        if vw & c.R: req = max(req, 1)
                    if p.kind == 'trans' and c.kind in ('valu', 'perm', 'dpp') and vw & c.R: req = max(req, 1)
                    sw = {r for r in p.W if r[0] == 's' or r == 'vcc'} - {'scc'}
                    if sw & c.R:
                        if c.kind in VALUK: req = max(req, 2)
                        if c.kind in ('dma', 'vld', 'vst'): req = max(req, 5)
                        if c.kind in ('salu', 'ctl', 'smem'): req = max(req, 1)
                    if 'exec' in p.W:
                        req = max(req, 5)
                if p.kind == 'mfma':
                    D = set(p.extra[0])
                    if c.kind == 'mfma':
                        if D & set(c.extra[1]): req = max(req, 8)
                        if D & set(c.extra[2]) and c.extra[2] != p.extra[0]: req = max(req, 6)
                        if D & set(c.extra[0]) and c.extra[2] != p.extra[0]: req = max(req, 6)
                    elif c.kind in VALUK + ('dsr', 'dsw', 'dma', 'vld', 'vst'):
                        if D & (c.R | c.W): req = max(req, 8)
                    if c.kind in VALUK + ('dsr', 'vld') and set(p.extra[2]) & c.W: req = max(req, 3)
                if p.kind == 'salu' and 'm0' in p.W and c.kind == 'dma': req = max(req, 1)
                if p.kind == 'vst' and p.extra and len(p.extra) >= 3 and set(p.extra) & c.W: req = max(req, 2)
                if req - d > need: need = req - d
        while need > 0:
            k = min(need, 16)
            out.append(I(f's_nop {k-1}')); need -= k
        out.append(c)
    return out

def finalize(insts):
    return insert_hazards(insert_waits(insts))

def emit(insts):
    return '\n'.join(i.text for i in insts) + '\n'
```

```python
import sys, math, struct
import asmlib
from asmlib import *

KN = 'standalone__detection_seg_mask2former__vision_kernel'
WS_A = 0
WS_EPOCH = 0xD000
WS_VT = 65536
WS_HF = 0x58000
WS_XCH = 0x60000
WS_PART = 0x80000
WS_ML = WS_PART + 256*16384
WS_SIZE = WS_ML + 256*1024
STAMP_OFF = 128 << 20
SLOT = 24576
STAT = 147456; PXB = STAT+2560; PLB = PXB+8192; XA = PLB+4096; FLG = XA+512
LOG2E = 1.4426950408889634
def f2u(x): return struct.unpack('<I', struct.pack('<f', x))[0]
THR = 2.0**30
SPIN = 1 << 15
STAMPOP = 's_memrealtime'
HEADST = False
NV = 160
DPP = 'row_mask:0xf bank_mask:0xf'
def SB(k): return [60, 62, 100, 66, 68, 70, 78, 82, 84, 86, 64, 72, 74, 76, 80, 88, 90, 92][k] if HEADST else 60+2*k

class Prog:
    def __init__(self): self.L = []
    def __call__(self, t, **kw):
        r = []
        for line in t.split('\n'):
            if line.strip():
                i = I(line, **kw); self.L.append(i); r.append(i)
        return r[-1]
    def ext(self, l): self.L += l
def vr(b, n=1): return f'v{b}' if n == 1 else f'v[{b}:{b+n-1}]'
def ar(b, n=1): return f'a{b}' if n == 1 else f'a[{b}:{b+n-1}]'
def mfma(d, a, b, c): return f'v_mfma_f32_16x16x32_bf16 {d}, {a}, {b}, {c}'
def srd(p, s, lo, size):
    p(f's_mov_b32 s{s}, s{lo}\ns_mov_b32 s{s+1}, s{lo+1}\ns_mov_b32 s{s+2}, {size}\ns_mov_b32 s{s+3}, 0x20000')
def allred(z, op, a, t):
    z(f'v_mov_b32 v{t}, v{a}\nv_permlane32_swap_b32 v{a}, v{t}\n{op} v{a}, v{a}, v{t}')
    z(f'v_mov_b32 v{t}, v{a}\nv_permlane16_swap_b32 v{a}, v{t}\n{op} v{a}, v{a}, v{t}')

def gen(plans, stamps=False, opt={}):
    VL = 1
    DX = 2; Q = 8; SR = 12; PXW = 13; PA = 14; NM = 15; LS = 16; SA = 17; AL = 18; HA = 19; YS = 20
    T = 28; SACC = [36, 44]; SLO = [52, 56]; PK = 60; PKL = 64; PL = 68; PE = 76; RS = 84; VF = 92
    DL = SACC[0]
    AA = 0; XF = 48; NXF = 5; VA = 68; JUNK = 92
    CT = SACC[0]
    def frs(kind, b, n=6): return [(kind, b+4*i) for i in range(n)]
    VLOC = [frs('v', VF), frs('v', VF+24), frs('a', VA), frs('v', VF+48, 5)+frs('a', VA+24, 1), None, None, None,
            frs('a', 0), frs('a', 24), frs('a', XF, 5)+frs('v', YS, 1), frs('v', PL), frs('v', VF)]
    XRL = [frs('v', VF), frs('v', VF+24), frs('a', VA), frs('v', PL)]
    def rg(f): return (ar if f[0] == 'a' else vr)(f[1], 4)
    P = 8; QB = 14; RT = 15; TB = 16; PX = 20; SW = 21; FL = 22; S2 = 24; S1 = 32; Y2 = [40, 52]; U = 64
    LT = S2; Q0 = 40; LH = 44
    ONES = 0; XB = 4; NXB = 7; TR = 4; NTR = 7; PF = 32; LTF = 48; AF = [48, 72]; BF = [16, 32]
    names = []
    def stampi(name):
        if stamps and name in stamps:
            if name not in names: names.append(name)
            k = names.index(name); assert k < 20
            return [I(f'{STAMPOP} s[{SB(k)}:{SB(k)+1}]')]
        return []
    def dma(q, kind, n, slot):
        srdn, base, off, fl, vo = {'F': (16, 's25', n*SLOT, ' nt', DL), 'L': (20, 's24', n*SLOT, '', DL),
                                   'X': (12, 's26', (n % 2)*196608 + (n//2)*SLOT, ' nt', DX)}[kind]
        q(f's_add_u32 s49, {base}, {off}')
        q(f's_add_u32 m0, s24, {slot*SLOT}')
        for i in range(6):
            if i == 4: q(f's_add_u32 m0, s24, {slot*SLOT+4096}')
            q(f'buffer_load_dwordx4 v{vo+i}, s[{srdn}:{srdn+3}], s49 offen offset:{1024*(i%4)}{fl} lds', tag=f'{kind}{n}')
    def loadV(q, bk, slot=None):
        q(f's_add_u32 s52, s27, {6144*(3*(bk % 4)+bk//4)}')
        if slot is not None: q(f's_add_u32 m0, s24, {slot*SLOT}')
        for dt in range(6):
            if dt == 4:
                q('s_add_u32 s52, s52, 4096')
                if slot is not None: q(f's_add_u32 m0, s24, {slot*SLOT+4096}')
            if slot is not None: q(f'buffer_load_dwordx4 v{VL}, s[28:31], s52 offen offset:{1024*(dt%4)} sc1 lds', tag=f'W{bk}')
            else: q(f'buffer_load_dwordx4 {rg(VLOC[bk][dt])}, v{VL}, s[28:31], s52 offen offset:{1024*(dt%4)} sc1', tag=f'V{bk}')
    slow = Prog()
    HA0 = HA
    X0 = 64; WM = X0+8; D1 = X0+32; WF = X0+56; MF = X0+68; D2 = X0+80; KF = 44; QF = 72
    def issue0(q, name, prio, plan, sfx, role='A'):
        n0 = len(q.L)
        for it in plan.get(name, []):
            k = it[0]
            who = 'B' if (name.startswith('m') and name != 'm-1' and k in ('X', 'W', 'TOUCHV', 'TOUCHO') and not opt.get('dmaA')) else 'A'
            if who != role: continue
            HA = 23 if role == 'B' else HA0
            if k == 'A':
                q('s_mul_i32 s50, s3, 12288')
                for a_ in range(4):
                    q(f's_xor_b32 s51, s3, {a_}\ns_lshl_b32 s51, s51, 10\ns_add_u32 s51, s51, s50')
                    for G in range(3):
                        if G: q('s_add_u32 s51, s51, 4096')
                        q(f'buffer_load_dwordx4 {ar(AA+4*(3*a_+G),4)}, v{VL}, s[28:31], s51 offen sc1', tag='A')
            elif k == 'V': loadV(q, it[1])
            elif k == 'W': loadV(q, it[1], it[2])
            elif k == 'XR':
                q(f's_add_u32 s49, s26, {(it[1] % 2)*196608 + (it[1]//2)*SLOT}')
                for i in range(6): q(f'buffer_load_dwordx4 {rg(XRL[it[2]][i])}, v{DX+i}, s[12:15], s49 offen offset:{1024*(i%4)} nt', tag=f'R{it[1]}')
            elif k == 'XW':
                q(f's_add_u32 s50, s24, {it[2]*SLOT}\nv_add_u32 v{T+2}, s50, v{VL}')
                for i in range(6): q(f'ds_write_b128 v{T+2}, {rg(XRL[it[3]][i])} offset:{1024*i}')
            elif k == 'POLL': q(f'buffer_load_dword v{HA}, v{PA}, s[28:31], 0 offen sc1')
            elif k == 'CHECK':
                q(f'v_cmp_ne_u32 vcc, s38, v{HA}')
                br = q(f's_cbranch_vccnz POLL{sfx}', R=['VM', f'v{HA}', f'v{PA}'], W=['VM', f'v{HA}', 's58', 'scc', 'vcc'])
                br.text += f'\nC_POLL{sfx}:'
                slow(f'POLL{sfx}:\ns_mov_b32 s58, {SPIN}\nPOLL1{sfx}:\ns_sleep 6\nbuffer_load_dword v{HA}, v{PA}, s[28:31], 0 offen sc1\ns_sub_u32 s58, s58, 1\ns_cbranch_scc1 C_POLL{sfx}\ns_waitcnt vmcnt(0)\nv_cmp_ne_u32 vcc, s38, v{HA}\ns_cbranch_vccnz POLL1{sfx}\ns_branch C_POLL{sfx}')
            elif k == 'PUB':
                q('s_cmp_eq_u32 s96, 0')
                tt = [f'v{x}' for x in range(X0, 160)]
                br = q('s_cbranch_scc0 PUBA', R=['VM', 'EPOCH']+tt, W=['VM', 's50', 's51', 'scc']+tt)
                br.text += '\nC_PUBA:'
                z = Prog(); z('PUBA:')
                for w in range(4): z(f'ds_read_b128 {vr(D1+4*w,4)}, v{X0+3} offset:{3072*w}')
                for r in range(4): z(f'v_add_f32 v{D1+r}, v{D1+r}, v{D1+4+r}\nv_add_f32 v{D1+8+r}, v{D1+8+r}, v{D1+12+r}\nv_add_f32 v{D1+r}, v{D1+r}, v{D1+8+r}')
                z(f'v_cvt_pk_bf16_f32 v{D1}, v{D1}, v{D1+1}\nv_cvt_pk_bf16_f32 v{D1+1}, v{D1+2}, v{D1+3}')
                z('s_mul_i32 s50, s40, 12288\ns_lshl_b32 s51, s41, 9\ns_add_u32 s50, s50, s51')
                z(f'buffer_store_dwordx2 {vr(D1,2)}, v{X0+6}, s[28:31], s50 offen sc0 sc1')
                z.ext(stampi('a_pub')); z('s_branch C_PUBA'); slow.ext(z.L)
            elif k == 'GO':
                q(f'v_mov_b32 v{T}, 0\nv_mov_b32 v{T+1}, s38')
                q(f's_mov_b64 exec, 1\nbuffer_store_dword v{T+1}, v{T}, s[28:31], s97 offen sc0 sc1\ns_mov_b64 exec, -1')
            elif k in ('TOUCHV', 'TOUCHO'):
                q(f's_add_u32 s52, s43, {WS_VT if k == "TOUCHV" else 0}\nv_min_u32 v{HA}, 35, v0\nv_lshlrev_b32 v{HA}, 7, v{HA}')
                q(f'buffer_load_dword v{HA}, v{HA}, s[{"28:31" if k == "TOUCHV" else "16:19"}], s52 offen', tag='pre')
            else: dma(q, *it)
        if prio:
            for i in q.L[n0:]: i.prio = prio

    p = Prog()
    p('s_getpc_b64 s[40:41]')
    p('s_load_dwordx16 s[64:79], s[0:1], 0\ns_load_dwordx8 s[80:87], s[0:1], 64')
    p(f's_lshr_b32 s42, s2, 3\ns_and_b32 s43, s42, 15\ns_lshl_b32 s43, s43, 13\ns_min_u32 s43, s43, CODE_LIM')
    p(f'v_lshl_add_u32 v28, v0, 4, s43')
    p(f'global_load_dwordx4 {ar(JUNK,4)}, v28, s[40:41]', tag='pre')
    p('s_cmp_ge_u32 s2, 256\ns_cbranch_scc1 K_end')
    p.ext(stampi('start'))
    p('v_lshrrev_b32 v2, 6, v0\nv_and_b32 v0, 63, v0')
    p('v_readfirstlane_b32 s39, v2')
    p(f'v_lshlrev_b32 v{VL}, 4, v0')
    m_, g_, F_, t_, r_, b_ = 56, 57, 58, 59, 60, 61
    p(f'v_and_b32 v{m_}, 15, v0\nv_lshrrev_b32 v{g_}, 4, v0')
    p('s_and_b32 s3, s39, 3\ns_movk_i32 s48, 768\ns_mul_i32 s24, s3, 6144')
    p('s_lshr_b32 s57, s2, 4\ns_lshl_b32 s57, s57, 3\ns_and_b32 s44, s2, 7\ns_or_b32 s57, s57, s44')
    p('s_and_b32 s45, s3, 1\ns_mul_i32 s46, s45, 9\ns_movk_i32 s47, 1366')
    for i in range(3):
        t0, t1, t2 = T+1, T+2, T+3
        p(f'v_add_u32 v{t0}, {64*i}, v0' if i else f'v_mov_b32 v{t0}, v0')
        p(f'v_mul_u32_u24 v{t1}, s47, v{t0}\nv_lshrrev_b32 v{t1}, 16, v{t1}')
        p(f'v_mul_u32_u24 v{t2}, 48, v{t1}\nv_sub_u32 v{t0}, v{t0}, v{t2}')
        p(f'v_lshlrev_b32 v{t2}, 1, v{t1}\nv_xor_b32 v{t2}, s46, v{t2}\nv_xor_b32 v{t0}, v{t0}, v{t2}')
        p(f'v_lshlrev_b32 v{t0}, 4, v{t0}\nv_mul_u32_u24 v{t1}, s48, v{t1}\nv_add_u32 v{t0}, v{t0}, v{t1}')
        p(f'v_subrev_u32 v{DL+i}, {1024*i}, v{t0}' if i else f'v_mov_b32 v{DL+i}, v{t0}')
        p(f'v_add_u32 v{DX+i}, v{t1}, v{DL+i}')
        p(f'v_xor_b32 v{t0}, 128, v{t0}\nv_add_u32 v{DL+i+3}, {3072-1024*((i+3)%4)}, v{t0}\nv_add3_u32 v{DX+i+3}, v{t1}, v{DL+i+3}, s48')
        p(f'v_add_u32 v{DX+i+3}, 2304, v{DX+i+3}')
    p('s_mul_i32 s25, s2, 49152\ns_add_u32 s25, s25, s24')
    p('s_lshr_b32 s26, s2, 1\ns_mul_i32 s26, s26, 393216\ns_and_b32 s27, s2, 1\ns_mul_i32 s27, s27, 98304\ns_add_u32 s26, s26, s27')
    p('s_mul_i32 s27, s45, 12288\ns_add_u32 s26, s26, s27\ns_lshr_b32 s27, s3, 1\ns_mul_i32 s27, s27, 768\ns_add_u32 s26, s26, s27')
    p(f's_mul_i32 s27, s3, 73728\ns_add_u32 s27, s27, {WS_VT}')
    p('s_lshr_b32 s43, s2, 4\ns_lshl_b32 s43, s43, 2\ns_add_u32 s43, s43, s3\ns_mul_i32 s43, s43, 4608')
    p('s_waitcnt lgkmcnt(0)')
    srd(p, 12, 66, 50331648); srd(p, 16, 68, 12582912); srd(p, 20, 70, 294912); srd(p, 28, 86, WS_SIZE)
    p(f's_load_dword s38, s[86:87], {WS_EPOCH}')
    p.ext(stampi('karg'))
    p('s_cmp_ge_u32 s39, 4\ns_cbranch_scc1 H_B')
    p(f's_mov_b32 s97, {WS_SIZE}\ns_mov_b32 s96, 0\ns_bitcmp1_b32 s2, 3\ns_cbranch_scc0 H_none')
    p('s_cmp_ge_u32 s57, 120\ns_cbranch_scc1 H_none2\ns_cmp_ge_u32 s57, 96\ns_cbranch_scc1 H_v')
    head0 = finalize(p.L)
    def fswz(p, dst, m):
        p(f'v_lshrrev_b32 v{t_}, 3, v{m}\nv_mul_u32_u24 v{t_}, 9, v{t_}\nv_and_b32 v{dst}, 7, v{m}\nv_lshlrev_b32 v{dst}, 1, v{dst}\nv_xor_b32 v{dst}, v{dst}, v{t_}')
    def setupA(p):
        fswz(p, F_, m_)
        p(f'v_xor_b32 v{t_}, v{g_}, v{F_}\nv_lshlrev_b32 v{t_}, 4, v{t_}\nv_mad_u32_u24 v{Q}, v{m_}, s48, v{t_}\ns_lshl_b32 s50, s3, 6\nv_xor_b32 v{Q}, s50, v{Q}')
        for a_ in range(1, 4): p(f'v_xor_b32 v{Q+a_}, {64*a_}, v{Q}')
        p(f'v_and_b32 v{t_}, 3, v0\nv_lshl_add_u32 v{t_}, v{g_}, 2, v{t_}\nv_mul_u32_u24 v{AL}, 80, v{t_}\nv_bfe_u32 v{t_}, v0, 2, 1\nv_lshl_add_u32 v{SR}, v{t_}, 3, v{AL}\nv_add_u32 v{SR}, {STAT}, v{SR}')
        p(f's_lshl_b32 s50, s3, 10\ns_add_u32 s50, s50, {PXB}\nv_add_u32 v{PXW}, s50, v{VL}\nv_mov_b32 v{LS}, 0')
        p(f's_lshl_b32 s50, s3, 12\ns_add_u32 s50, s50, {WS_HF}\nv_min_u32 v{PA}, 29, v0\nv_lshl_add_u32 v{PA}, v{PA}, 7, s50')
        p(f's_mov_b32 s53, {f2u(1/384):#x}\ns_mov_b32 s54, {f2u(1e-5):#x}\ns_mov_b32 s55, {f2u(THR):#x}')
        if opt.get('prioA'): p(f's_setprio {opt["prioA"]}')
    def start(p, plan, a, b):
        for it in plan['start'][a:b]: dma(p, *it)
    p = Prog(); p('H_B:')
    fswz(p, F_, m_)
    p(f'v_xor_b32 v{t_}, v{g_}, v{F_}\nv_lshlrev_b32 v{t_}, 4, v{t_}\nv_mad_u32_u24 v{Q0}, v{m_}, s48, v{t_}\ns_lshl_b32 s50, s3, 6\nv_xor_b32 v{QB}, s50, v{Q0}')
    for a_ in range(1, 4): p(f'v_xor_b32 v{Q0+a_}, {64*a_}, v{Q0}')
    p(f'v_and_b32 v{t_}, 1, v{g_}\nv_lshlrev_b32 v{t_}, 3, v{t_}\nv_mad_u32_u24 v{LH}, v{m_}, s48, v{t_}\nv_mov_b32 v{LH+1}, v{F_}\nv_lshrrev_b32 v{LH+2}, 1, v{g_}')
    p(f'v_lshrrev_b32 v{t_}, 2, v{m_}\nv_cmp_eq_u32 vcc, v{t_}, v{g_}')
    p(f's_lshl_b32 s50, s3, 4\nv_mov_b32 v{t_}, s50\nv_cndmask_b32 v{t_}, 64, v{t_}, vcc\nv_mul_u32_u24 v{SW}, 80, v{m_}\nv_add_u32 v{SW}, v{SW}, v{t_}\nv_add_u32 v{SW}, {STAT}, v{SW}')
    p(f'v_add_u32 v{PX}, {PXB}, v{VL}')
    p(f'v_mov_b32 v{FL}, {FLG}\nv_and_b32 v{t_}, 3, v0')
    for j in range(1, 4): p(f'v_cmp_eq_u32 s[{30+2*j}:{31+2*j}], {j}, v{t_}')
    p(f'v_bfe_u32 v{b_}, v0, 1, 1\nv_and_b32 v{b_+1}, 1, v0\nv_lshlrev_b32 v{b_+1}, 3, v{b_+1}\ns_mul_i32 s50, s3, 12')
    for kind in ('P', 0, 1):
        if kind == 'P': p(f'v_lshrrev_b32 v{r_}, 2, v{m_}\nv_lshl_add_u32 v{r_}, v{g_}, 2, v{r_}')
        else:
            p(f'v_lshrrev_b32 v{r_}, 2, v{m_}\nv_lshl_add_u32 v{r_}, v{g_}, 3, v{r_}')
            if kind: p(f'v_add_u32 v{r_}, 4, v{r_}')
        p(f'v_and_b32 v{b_+2}, 15, v{r_}')
        fswz(p, F_, b_+2)
        p(f'v_mad_u32_u24 v{b_+2}, v{r_}, s48, v{b_+1}')
        if kind != 'P': p(f'v_add_u32 v{b_+2}, {2*SLOT}, v{b_+2}')
        for t in range(6):
            p(f'v_add_u32 v{t_}, s50, v{b_}' if t == 0 else f'v_add3_u32 v{t_}, s50, v{b_}, {2*t}')
            p(f'v_xor_b32 v{t_}, v{t_}, v{F_}\nv_lshl_add_u32 v{P+t if kind == "P" else LT+2*t+kind}, v{t_}, 4, v{b_+2}')
    p('s_mov_b32 s50, 0x3f803f80\ns_mov_b32 s56, 0x00800080')
    for i in range(4): p(f'v_accvgpr_write_b32 a{ONES+i}, s50')
    if opt.get('prioB'): p(f's_setprio {opt["prioB"]}')
    srd(p, 16, 78, 294912)
    p('s_bitcmp1_b32 s2, 3\ns_cbranch_scc0 J_Ba')
    p('s_cmp_ge_u32 s57, 120\ns_cbranch_scc1 J_Bb\ns_barrier\ns_cmp_ge_u32 s57, 96\ns_cbranch_scc1 J_Bb\ns_barrier\ns_branch J_Bb')
    h_B = finalize(p.L)
    plan = plans[0]
    p = Prog(); p('H_none:')
    Z = X0
    p('s_lshr_b32 s50, s2, 4\ns_lshl_b32 s50, s50, 2\ns_add_u32 s50, s50, s3\ns_bfe_u32 s51, s2, 0x20001\ns_mul_i32 s51, s51, 73728\ns_and_b32 s52, s2, 1')
    p(f's_mul_i32 s44, s50, 1152\ns_add_u32 s44, s44, s51\nv_min_u32 v{Z}, 8, v0\nv_lshl_add_u32 v{Z}, v{Z}, 7, s44')
    p(f'global_load_dword a{JUNK}, v{Z}, s[72:73]', tag='pre')
    p(f's_mul_i32 s59, s52, 384\ns_add_u32 s59, s59, s43\nv_min_u32 v{Z+1}, 17, v0\nv_mul_u32_u24 v{Z+2}, 86, v{Z+1}\nv_lshrrev_b32 v{Z+2}, 8, v{Z+2}')
    p(f'v_mul_u32_u24 v{Z+2}, 384, v{Z+2}\nv_lshl_add_u32 v{Z+1}, v{Z+1}, 7, v{Z+2}\nv_add_u32 v{Z+1}, s59, v{Z+1}')
    p(f'global_load_dword a{JUNK}, v{Z+1}, s[80:81]', tag='pre')
    p(f's_mul_i32 s59, s50, 5\nv_min_u32 v{Z+2}, 4, v0\nv_add_u32 v{Z+2}, s59, v{Z+2}\nv_min_u32 v{Z+2}, 287, v{Z+2}\ns_mul_i32 s59, s52, 36864\ns_add_u32 s59, s59, s51\nv_lshl_add_u32 v{Z+2}, v{Z+2}, 7, s59')
    p(f'global_load_dword a{JUNK}, v{Z+2}, s[74:75]', tag='pre')
    p(f's_lshl_b32 s59, s50, 1\nv_min_u32 v{Z+3}, 1, v0\nv_add_u32 v{Z+3}, s59, v{Z+3}\nv_min_u32 v{Z+3}, 95, v{Z+3}\nv_lshlrev_b32 v{Z+3}, 7, v{Z+3}')
    p(f'global_load_dword a{JUNK}, v{Z+3}, s[64:65]', tag='pre')
    p(f'global_load_dword a{JUNK}, v{Z}, s[76:77]', tag='pre')
    p(f'v_min_u32 v{Z+4}, 35, v0\nv_lshl_add_u32 v{Z+4}, v{Z+4}, 7, s43')
    p(f'global_load_dword a{JUNK}, v{Z+4}, s[70:71]', tag='pre')
    if plan.get('hold'): setupA(p); p('WAITV pre'); start(p, plan, 0, 9)
    else: start(p, plan, 0, 2); setupA(p); start(p, plan, 2, 9)
    srd(p, 16, 78, 294912); p('s_branch J_Aa'); h_none = finalize(p.L)
    plan = plans[1]
    p = Prog(); p('H_none2:'); start(p, plan, 0, 2); setupA(p); start(p, plan, 2, 9); p('s_branch J_Ab'); h_none2 = finalize(p.L)
    p = Prog(); p('H_a:')
    srd(p, 4, 64, 12288); srd(p, 8, 72, 294912); srd(p, 92, 74, 294912); srd(p, 88, 80, 294912)
    p('s_bfe_u32 s40, s57, 0x20001\ns_and_b32 s41, s57, 1\ns_mul_i32 s41, s41, 12\ns_lshr_b32 s44, s57, 3\ns_add_u32 s41, s41, s44')
    LQ = STAT; LK = LQ+12288; LW = 3*SLOT
    p(f's_mul_i32 s44, s40, 73728\ns_mul_i32 s50, s41, 3072\ns_add_u32 s50, s50, s44\ns_min_u32 s51, s3, 2\ns_lshl_b32 s51, s51, 10\ns_add_u32 s50, s50, s51\ns_add_u32 m0, s51, {LK}')
    p(f'buffer_load_dwordx4 v{VL}, s[92:95], s50 offen lds', tag='tq')
    p(f's_mul_i32 s99, s3, 3072\ns_add_u32 s99, s99, {LQ}\ns_mov_b32 m0, s99\ns_mul_i32 s50, s3, 192\ns_movk_i32 s51, 5462')
    for i in range(3):
        p(f'v_add_u32 v{X0}, {64*i}, v0\nv_mul_u32_u24 v{X0+1}, s51, v{X0}\nv_lshrrev_b32 v{X0+1}, 16, v{X0+1}\nv_mul_u32_u24 v{X0+1}, 576, v{X0+1}\nv_add_u32 v{X0+2+i}, v{X0+1}, v{VL}')
        p(f'buffer_load_dwordx4 v{X0+2+i}, s[4:7], s50 offen offset:{1024*i} lds', tag='tq')
    p(f's_mul_i32 s98, s3, 18432\ns_add_u32 s44, s44, s98\ns_add_u32 s98, s98, {LW}')
    p(f'v_mul_u32_u24 v{X0+5}, 3072, v{g_}\nv_lshl_add_u32 v{X0+5}, v{m_}, 1, v{X0+5}')
    p('s_mul_i32 s59, s3, 73728\ns_lshl_b32 s50, s41, 5\ns_add_u32 s59, s59, s50')
    p.ext(stampi('a_q'))
    for pp in range(3):
        p(f's_add_u32 s50, s44, {6144*pp}\ns_add_u32 m0, s98, {6144*pp}')
        for i in range(6):
            if i == 4: p(f's_add_u32 m0, s98, {6144*pp+4096}\ns_add_u32 s50, s50, 4096')
            p(f'buffer_load_dwordx4 v{VL}, s[8:11], s50 offen offset:{1024*(i%4)} lds', tag='tw')
        if pp == 0:
            p.ext(stampi('a_w'))
            p(f'v_lshrrev_b32 v{X0+6}, 1, v{g_}\nv_lshlrev_b32 v{X0+6}, 8, v{X0+6}\nv_lshl_add_u32 v{X0+6}, v{m_}, 4, v{X0+6}\nv_and_b32 v{X0+7}, 1, v{g_}\nv_lshl_add_u32 v{X0+6}, v{X0+7}, 3, v{X0+6}')
            p(f'v_mul_u32_u24 v{X0+3}, 192, v{m_}\nv_lshl_add_u32 v{X0+4}, v{g_}, 3, v{X0+3}\nv_add_u32 v{X0+4}, s99, v{X0+4}\nv_lshl_add_u32 v{X0+3}, v{g_}, 4, v{X0+3}')
            p(f'v_add_u32 v{X0+7}, {LK}, v{X0+3}\nv_add_u32 v{X0+2}, s98, v{X0+3}\nv_add_u32 v{X0+3}, s99, v{VL}')
            setupA(p)
    for s in range(6):
        for r in range(4): p(f'buffer_load_ushort v{WM+4*s+r}, v{X0+5}, s[88:91], s59 offen offset:{768*r}')
        if s < 5: p('s_add_u32 s59, s59, 12288')
    p(f'v_mov_b32 v{X0}, -1\nv_lshlrev_b32 v{X0+1}, 2, v0\ns_lshl_b32 s44, s57, 10\ns_lshl_b32 s50, s3, 8\ns_add_u32 s44, s44, s50\ns_add_u32 s44, s44, {WS_XCH}')
    p(f'buffer_store_dword v{X0}, v{X0+1}, s[28:31], s44 offen sc0 sc1', tag='clean')
    p.ext(stampi('a_iss'))
    start(p, plan, 0, 1)
    p('WAITV tq tw\ns_barrier')
    p.ext(stampi('a_bar'))
    for ks in range(3): p(f'ds_read_b128 {vr(KF+4*ks,4)}, v{X0+7} offset:{64*ks}')
    for t in range(6):
        for ks in range(3): p(f'ds_read_b128 {ar(12*t+4*ks,4)}, v{X0+2} offset:{3072*t+64*ks}')
    for s in range(3): p(f'ds_read_b64 {ar(QF+4*s,2)}, v{X0+4} offset:{64*s}\nds_read_b64 {ar(QF+2+4*s,2)}, v{X0+4} offset:{64*s+32}')
    start(p, plan, 1, 2)
    p('WAITL\ns_barrier')
    p0 = p; p = Prog()
    for t in range(6):
        for ks in range(3): p(mfma(vr(D1+4*t,4), ar(12*t+4*ks,4), vr(KF+4*ks,4), '0' if ks == 0 else vr(D1+4*t,4)))
    for i in range(12): p(f'v_lshl_or_b32 v{MF+i}, v{WM+1+2*i}, 16, v{WM+2*i}')
    for s in range(3): p(mfma(vr(D2+4,4), vr(MF+4*s,4), ar(QF+4*s,4), '0' if s == 0 else vr(D2+4,4)))
    for t in range(6): p(f'v_cvt_pk_bf16_f32 v{WF+2*t}, v{D1+4*t}, v{D1+4*t+1}\nv_cvt_pk_bf16_f32 v{WF+2*t+1}, v{D1+4*t+2}, v{D1+4*t+3}')
    for s in range(3): p(mfma(vr(D2,4), vr(WF+4*s,4), ar(QF+4*s,4), '0' if s == 0 else vr(D2,4)))
    p(f's_mov_b32 s50, {f2u(96**-0.5*LOG2E):#x}\ns_mov_b32 s51, {f2u(384**-0.5*LOG2E):#x}')
    for r in range(4): p(f'v_mul_f32 v{D2+r}, s50, v{D2+r}\nv_fma_f32 v{D2+r}, s51, v{D2+4+r}, v{D2+r}')
    p(f'ds_write_b128 v{X0+3}, {vr(D2,4)}')
    p0.ext(schedule(p.L)[0]); p = p0
    p.ext(stampi('a_cmp'))
    start(p, plan, 2, 9)
    p(f's_lshl_b32 s44, s40, 12\ns_lshl_b32 s50, s41, 7\ns_add_u32 s44, s44, s50\ns_add_u32 s44, s44, {WS_HF}\ns_cmp_eq_u32 s3, 0\ns_cselect_b32 s97, s44, s97\ns_cselect_b32 s96, 1, 0\ns_branch J_Ab')
    h_a = finalize(p.L)
    p = Prog(); p('H_v:')
    srd(p, 8, 76, 294912)
    p('s_bfe_u32 s40, s57, 0x20001\ns_and_b32 s41, s57, 1\ns_mul_i32 s41, s41, 3\ns_lshr_b32 s44, s57, 3\ns_add_u32 s41, s41, s44\ns_sub_u32 s41, s41, 12')
    p(f'v_mul_u32_u24 v{X0+5}, 768, v{g_}\nv_lshl_add_u32 v{X0+5}, v{m_}, 1, v{X0+5}')
    p('s_mul_i32 s50, s40, 73728\ns_mul_i32 s51, s3, 18432\ns_add_u32 s50, s50, s51\ns_lshl_b32 s51, s41, 5\ns_add_u32 s50, s50, s51')
    for s in range(6):
        for r in range(4): p(f'buffer_load_ushort v{WM+4*s+r}, v{X0+5}, s[8:11], s50 offen offset:{192*r}')
        p('s_add_u32 s50, s50, 3072')
    start(p, plan, 0, 2)
    setupA(p)
    for i in range(24): p(f'v_lshlrev_b32 v{WM+i}, 16, v{WM+i}')
    for i in range(0, 24, 4): p(f'v_add_f32 v{D1+i//2}, v{WM+i}, v{WM+i+1}\nv_add_f32 v{D1+i//2+1}, v{WM+i+2}, v{WM+i+3}')
    for i in range(1, 12): p(f'v_add_f32 v{D1}, v{D1}, v{D1+i}')
    allred(p, 'v_add_f32', D1, D1+1)
    p(f's_lshl_b32 s44, s3, 2\ns_add_u32 s44, s44, {STAT}\nv_and_b32 v{X0+3}, 15, v0\nv_lshlrev_b32 v{X0+3}, 4, v{X0+3}\nv_add_u32 v{X0+4}, s44, v{X0+3}\nv_add_u32 v{X0+3}, {STAT}, v{X0+3}')
    p(f'ds_write_b32 v{X0+4}, v{D1}\nWAITL\ns_barrier\nds_read_b128 {vr(D1+4,4)}, v{X0+3}')
    p(f's_mov_b32 s44, {f2u(1/384):#x}\nv_add_f32 v{D1+4}, v{D1+4}, v{D1+5}\nv_add_f32 v{D1+6}, v{D1+6}, v{D1+7}\nv_add_f32 v{D1+4}, v{D1+4}, v{D1+6}\nv_mul_f32 v{D1+4}, s44, v{D1+4}')
    for rnd in range(2):
        for i in range(24):
            if rnd == 0: p(f'v_sub_f32 v{WM+i}, v{WM+i}, v{D1+4}')
            if rnd or i: p(f'v_add_f32 v{D1+5}, v{WM+i}, v{D1+5}')
            else: p(f'v_mov_b32 v{D1+5}, v{WM}')
            p(f'v_cvt_pk_bf16_f32 v{WM+i}, v{D1+5}, v{D1+5}\nv_and_b32 v{WM+i}, 0xffff0000, v{WM+i}\nv_sub_f32 v{D1+5}, v{D1+5}, v{WM+i}')
        if rnd == 0: start(p, plan, 2, 3)
    for i in range(12): p(f'v_cvt_pk_bf16_f32 v{WF+i}, v{WM+2*i}, v{WM+2*i+1}')
    p(f's_mul_i32 s50, s40, 73728\ns_mul_i32 s51, s3, 18432\ns_add_u32 s50, s50, s51\ns_lshl_b32 s51, s41, 10\ns_add_u32 s50, s50, s51\ns_add_u32 s50, s50, {WS_VT}')
    for s in range(3):
        p(f'buffer_store_dwordx4 {vr(WF+4*s,4)}, v{VL}, s[28:31], s50 offen sc0 sc1', tag='pub')
        if s < 2: p('s_add_u32 s50, s50, 6144')
    start(p, plan, 3, 9)
    p(f's_lshl_b32 s44, s40, 12\ns_lshl_b32 s50, s41, 7\ns_add_u32 s44, s44, s50\ns_add_u32 s44, s44, {WS_HF+24*128}\ns_cmp_eq_u32 s3, 0\ns_cselect_b32 s97, s44, s97\ns_branch J_Ab')
    h_v = finalize(p.L)

    def mkbody(plan, sfx, role):
        slot_of = {}
        for name, its in plan.items():
            if not isinstance(its, list) or name == 'regions': continue
            for it in its:
                if it[0] in ('F', 'L', 'X', 'W', 'XW'): slot_of[f'{it[0][0]}{it[1]}'] = it[2]
        LATSLOT = plan['lat_slots']; UX = plan['uslot']*SLOT
        q = Prog(); pre = Prog()
        isA = role == 'A'
        if isA: start(pre, plan, 0, 9)
        base = {'Q': 0, 'P': 0, 'LT': 2*SLOT, 'QB': 0}
        def rebase(which, off, span=SLOT):
            regs = {'Q': range(Q, Q+4), 'P': range(P, P+6), 'LT': range(LT, LT+12), 'QB': [QB]}[which]
            if not (base[which] <= off and off+span <= base[which]+65536):
                nb = (off//(2*SLOT))*2*SLOT
                d = nb - base[which]
                for r in regs: q(f'v_add_u32 v{r}, {d & 0xffffffff:#x}, v{r}')
                base[which] = nb
            return off - base[which]
        DP = plan.get('dmaprio', 300)
        deferred = []
        rix = [0]
        TT = opt.get('T', 1200)
        class span:
            def __init__(s, f0, f1): s.f = (f0, f1)
            def __enter__(s): s.n = len(q.L)
            def __exit__(s, *a):
                L = [i for i in q.L[s.n:] if i.kind != 'bar' and getattr(i, 'dl', None) is None]
                for x, i in enumerate(L): i.dl = rix[0]*10000 + TT*(s.f[0] + (s.f[1]-s.f[0])*x/max(len(L)-1, 1))
        NDA = opt.get('nda', 2); NDB = opt.get('ndb', 8)
        def bar(waits, name):
            b = q('BAR ' + ' '.join(waits)); b.extra = stampi(name); b.tag = stampi('b'+name)
            rix[0] += 1; b.dl = rix[0]*10000 - 2000
            if opt.get('dloop'):
                if name == 'm1': b.extra = b.extra + [I('s_mov_b32 s58, 0')]
                if name == 'm2': b.extra = [I(f'C_DLOOP{role}{sfx}:')] + b.extra
                if name == 'm6': b.extra = [I('s_add_u32 s58, s58, 1'), I('s_cmp_lt_u32 s58, 3'), I(f's_cbranch_scc1 C_DLOOP{role}{sfx}')] + b.extra
            with span(-0.01, 0.08):
                for t in deferred: q(t, R=['EPOCH'])
            deferred.clear()
            if not isA and name == 'm8': b.extra = b.extra + [I(f's_setprio {opt.get("pjprio", 2)}')]
            with span(*(opt.get('vmspan', (0.0, 0.8)))): issue0(q, name, None, plan, sfx, role)
        for ks in range(12):
            bar([f'L{ks}'] + (['F0', 'F1'] if ks == 0 else []), f'lat{ks}')
            if not isA:
              with span(0, 0.3):
                o = rebase('LT', slot_of[f'L{ks}']*SLOT)
                for pt in range(4):
                    q(f'ds_read_b128 {ar(BF[ks%2]+4*pt,4)}, v{Q0+ks%4} offset:{slot_of[f"F{pt//2}"]*SLOT+12288*(pt%2)+256*(ks//4)}')
                for t in range(6):
                    for e in range(2): q(f'ds_read_b64_tr_b16 {ar(AF[ks%2]+4*t+2*e,2)}, v{LT+2*t+e} offset:{o}')
              with span(10000/TT-0.02, 10000/TT+0.3):
                for t, pt in ([(t, pt) for t in range(6) for pt in range(4)] if ks < 11 else [(t, pt) for pt in range(4) for t in range(6)]):
                        d = vr(U+4*(4*t+pt), 4)
                        q(mfma(d, ar(AF[ks % 2]+4*t, 4), ar(BF[ks % 2]+4*pt, 4), '0' if ks == 0 else d))
        bar([], 'epi')
        xfc = [0]; trc = [0]
        q('s_nop 0').dl = rix[0]*10000
        if not isA:
          with span(0.0, 0.45):
            q('s_mul_i32 s50, s3, 12')
            for t in range(6):
                q(f'v_add3_u32 v{LT+t}, s50, v{LH+2}, {2*t}\nv_xor_b32 v{LT+t}, v{LT+t}, v{LH+1}\nv_lshl_add_u32 v{LT+t}, v{LT+t}, 4, v{LH}')
            assert LATSLOT == (0, 1)
            for pt in range(4):
                for t in range(6):
                    d = U+4*(4*t+pt); tm = (TB, TB+2, S1, S1+2, Q0)[(6*pt+t) % 5]
                    q(f'v_cvt_pk_bf16_f32 v{tm}, v{d}, v{d+1}\nv_cvt_pk_bf16_f32 v{tm+1}, v{d+2}, v{d+3}')
                    q(f'ds_write_b64 v{LT+t}, {vr(tm,2)} offset:{12288*pt}')
            q(f'v_mov_b32 v{S1+4}, 0\ns_lshl_b32 s50, s3, 2\nv_add_u32 v{S1+5}, s50, v{FL}\nds_write2_b32 v{S1+5}, v{S1+4}, v{S1+4} offset0:0 offset1:4')
        else:
            q(f's_mov_b32 s50, 0x3f803f80')
            for i in range(4): q(f'v_mov_b32 v{PK+i}, s50')
            for j in range(12): q(mfma(vr(PKL,4), vr(PK,4), ar(AA+4*j,4), '0' if j == 0 else vr(PKL,4)), R=['EPOCH']).dl = rix[0]*10000 + 5000
            q(f'v_sub_f32 v{SA}, 0, v{PKL}')
        def proA(pt):
            o = rebase('Q', LATSLOT[pt//2]*SLOT) + 12288*(pt % 2)
            for a_ in range(4):
                for G in range(3):
                    fr = ar(XF+4*(xfc[0] % NXF), 4); xfc[0] += 1
                    q(f'ds_read_b128 {fr}, v{Q+a_} offset:{o+256*G}')
                    q(mfma(vr(SLO[pt % 2],4), fr, ar(AA+4*(3*a_+G),4), '0' if a_+G == 0 else vr(SLO[pt % 2],4)))
        def partS(k):
            o = rebase('Q', slot_of[f'X{k}']*SLOT)
            sa = SACC[k % 2]
            for a_ in range(4):
                for G in range(3):
                    for mt in range(2):
                        fr = ar(XF+4*(xfc[0] % NXF), 4); xfc[0] += 1
                        q(f'ds_read_b128 {fr}, v{Q+a_} offset:{o+256*G+12288*mt}')
                        d = vr(sa+4*mt, 4)
                        t = mfma(d, fr, ar(AA+4*(3*a_+G),4), vr(SLO[(k//2) % 2],4) if a_+G == 0 else d)
                        if 6*a_+2*G+mt >= 24-NDA: deferred.append(t)
                        else: q(t)
        def sum4(t0, areg, off):
            q(f'ds_read2_b64 {vr(t0,4)}, v{areg} offset0:{off} offset1:{off+2}')
            q(f'ds_read2_b64 {vr(t0+4,4)}, v{areg} offset0:{off+4} offset1:{off+6}')
            q(f'v_add_f32 v{t0}, v{t0}, v{t0+2}\nv_add_f32 v{t0+1}, v{t0+1}, v{t0+3}\nv_add_f32 v{t0+4}, v{t0+4}, v{t0+6}\nv_add_f32 v{t0+5}, v{t0+5}, v{t0+7}')
        def softmax(k):
            sa = SACC[k % 2]; t0 = T
            def ysum(pt, tb):
                sum4(tb, HA, 160*(pt//2)+pt % 2)
                q(f'v_add_f32 v{YS+2*pt}, v{tb}, v{tb+4}\nv_add_f32 v{YS+2*pt+1}, v{tb+1}, v{tb+5}')
            if k == 0:
                q(f'v_and_b32 v{HA}, 4, v0\nv_lshlrev_b32 v{HA}, 1, v{HA}\nv_sub_u32 v{HA}, v{SR}, v{HA}\nv_add_u32 v{HA}, {PLB-STAT}, v{HA}')
                ysum(0, PE)
            sum4(t0, SR, 160*(k % 2))
            y = YS+2*(k//2)
            q(f'v_add_f32 v{t0}, v{t0}, v{y}\nv_add_f32 v{t0+1}, v{t0+1}, v{y+1}')
            q(f'v_add_f32 v{t0}, v{t0}, v{t0+4}\nv_add_f32 v{t0+1}, v{t0+1}, v{t0+5}')
            q(f'v_mul_f32 v{t0+1}, s53, v{t0+1}')
            q(f'v_mul_f32 v{t0}, s53, v{t0}\nv_fma_f32 v{t0}, -v{t0+1}, v{t0+1}, v{t0}')
            q(f'v_max_f32 v{t0}, 0, v{t0}\nv_add_f32 v{t0}, s54, v{t0}\nv_rsq_f32 v{t0}, v{t0}')
            for i in range(8): q(f'v_fmac_f32_dpp v{sa+i}, v{t0+1}, v{SA} row_newbcast:{i} {DPP}')
            for i in range(8): q(f'v_mov_b32_dpp v{RS+i}, v{t0} row_newbcast:{i} {DPP}').R.discard(f'v{RS+i}')
            mx = T+2; ts = T+4
            def exps(z):
                for i in range(8): z(f'v_exp_f32 v{PE+i}, v{sa+i}')
                z(f'v_add_f32 v{ts}, v{PE}, v{PE+1}\nv_add_f32 v{ts+1}, v{PE+2}, v{PE+3}\nv_add_f32 v{ts+2}, v{PE+4}, v{PE+5}\nv_add_f32 v{ts+3}, v{PE+6}, v{PE+7}')
                z(f'v_add_f32 v{ts}, v{ts}, v{ts+1}\nv_add_f32 v{ts+2}, v{ts+2}, v{ts+3}\nv_add_f32 v{ts}, v{ts}, v{ts+2}')
            def maxes(z):
                z(f'v_max3_f32 v{mx}, v{sa}, v{sa+1}, v{sa+2}\nv_max3_f32 v{mx+1}, v{sa+3}, v{sa+4}, v{sa+5}\nv_max3_f32 v{mx}, v{mx}, v{sa+6}, v{sa+7}\nv_max_f32 v{mx}, v{mx}, v{mx+1}')
                allred(z, 'v_max_f32', mx, mx+1)
            if k == 0:
                for i in range(8): q(f'v_mul_f32 v{sa+i}, v{sa+i}, v{RS+i}')
                maxes(q)
                for i in range(8): q(f'v_sub_f32 v{sa+i}, v{sa+i}, v{mx}')
                q(f'v_sub_f32 v{NM}, 0, v{mx}')
                exps(q)
            else:
                for i in range(8): q(f'v_fma_f32 v{sa+i}, v{sa+i}, v{RS+i}, v{NM}')
                exps(q)
                q(f'v_cmp_nge_f32 vcc, s55, v{ts}')
                live_pl = ([PL+i for i in range(4)] if k % 4 >= 1 else []) + ([PL+4+i for i in range(4)] if k % 4 == 3 else [])
                touched = [f'v{x+i}' for x in (sa, PE) for i in range(8)] + [f'v{x}' for x in (NM, LS, AL, mx, mx+1, ts, ts+1, ts+2, ts+3)] + [f'v{x}' for x in live_pl]
                br = q(f's_cbranch_vccnz RARE{k}{sfx}', R=touched+['EPOCH'], W=touched+['s59', 'scc'])
                br.text += f'\nC_{k}{sfx}:'
                slow(f'RARE{k}{sfx}:')
                maxes(slow)
                slow(f'v_max_f32 v{mx}, 0, v{mx}')
                for i in range(8): slow(f'v_sub_f32 v{sa+i}, v{sa+i}, v{mx}')
                slow(f'v_sub_f32 v{NM}, v{NM}, v{mx}\nv_exp_f32 v{AL}, -v{mx}')
                for r in [LS] + live_pl: slow(f'v_mul_f32 v{r}, v{AL}, v{r}')
                slow(f's_lshl_b32 s59, s3, 6\ns_add_u32 s59, s59, {XA+256*(k%2)}\nv_and_b32 v{mx}, 15, v0\nv_lshl_add_u32 v{mx}, v{mx}, 2, s59\nds_write_b32 v{mx}, v{AL}')
                slow(f's_lshl_b32 s59, s3, 2\ns_add_u32 s59, s59, {FLG+16*(k%2)}\nv_mov_b32 v{mx}, s59\nv_mov_b32 v{mx+1}, {k+1}\nds_write_b32 v{mx}, v{mx+1}')
                exps(slow)
                slow(f's_waitcnt lgkmcnt(0)\ns_branch C_{k}{sfx}')
            q(f'v_add_f32 v{LS}, v{LS}, v{ts}')
            for i in range(8): q(f'v_mul_f32 v{RS+i}, v{PE+i}, v{RS+i}')
            for i in range(4): q(f'v_cvt_pk_bf16_f32 v{PK+i}, v{RS+2*i}, v{RS+2*i+1}')
            q(f'ds_write_b128 v{PXW}, {vr(PK,4)} offset:{4096*(k%2)}')
            pl = PL+4*((k//2) % 2)
            for r in range(4):
                if k % 2 == 0: q(f'v_add_f32 v{pl+r}, v{RS+r}, v{RS+4+r}')
                else: q(f'v_add_f32 v{pl+r}, v{pl+r}, v{RS+r}\nv_add_f32 v{pl+r}, v{pl+r}, v{RS+4+r}')
            for pt in {1: (1, 2), 2: (3,)}.get(k, ()): ysum(pt, PE)
            if k % 4 == 3:
                for i in range(4): q(f'v_cvt_pk_bf16_f32 v{PKL+i}, v{PL+2*i}, v{PL+2*i+1}')
                q(f'ds_write_b128 v{PXW}, {vr(PKL,4)} offset:8192')
        def extract(off):
            for mt in range(2):
                for (src, dst) in ((S2+4*mt, TB+2*mt), (S1+4*mt, TB+1+2*mt)):
                    q(f'v_cndmask_b32 v{dst}, v{src}, v{src+1}, s[32:33]\nv_cndmask_b32 v{dst}, v{dst}, v{src+2}, s[34:35]\nv_cndmask_b32 v{dst}, v{dst}, v{src+3}, s[36:37]')
            q(f'ds_write_b128 v{SW}, {vr(TB,4)} offset:{off}')
        def loadY(pt, dbl=True):
            o = rebase('QB', LATSLOT[pt//2]*SLOT) + 12288*(pt % 2)
            for G in range(3): q(f'ds_read_b128 {vr(Y2[pt%2]+4*G,4)}, v{QB} offset:{o+256*G}')
            if dbl: dblY(pt)
        def dblY(pt):
            for i in range(12): q(f'v_add_u32 v{Y2[pt%2]+i}, s56, v{Y2[pt%2]+i}')
        def ystats(t):
            for mt in range(2):
                if t == 0: loadY(mt, False)
                else: o = rebase('QB', LATSLOT[1]*SLOT) + 12288*mt
                for G in range(3):
                    if t == 0: fr = vr(Y2[mt]+4*G, 4)
                    else:
                        fr = ar(TR+4*(trc[0] % NTR), 4); trc[0] += 1
                        q(f'ds_read_b128 {fr}, v{QB} offset:{o+256*G}')
                    q(mfma(vr(S2+4*mt,4), fr, fr, '0' if G == 0 else vr(S2+4*mt,4)))
                    q(mfma(vr(S1+4*mt,4), fr, ar(ONES,4), '0' if G == 0 else vr(S1+4*mt,4)))
            extract(PLB-STAT+1280*t)
        def ltf(t):
            o = rebase('P', LATSLOT[t]*SLOT)
            for i in range(6):
                for e in range(2): q(f'ds_read_b64_tr_b16 {ar(LTF+24*t+4*i+2*e,2)}, v{P+i} offset:{o+12288*e}')
        def stats(k):
            o = rebase('QB', slot_of[f'X{k}']*SLOT)
            y = Y2[(k//2) % 2]
            for G in range(3):
                for mt in range(2):
                    fr = ar(XB+4*(trc[0] % NXB), 4); trc[0] += 1
                    q(f'ds_read_b128 {fr}, v{QB} offset:{o+256*G+12288*mt}')
                    d2 = vr(S2+4*mt, 4); d1 = vr(S1+4*mt, 4)
                    q(mfma(d2, fr, fr, '0' if G == 0 else d2))
                    q(mfma(d1, fr, ar(ONES,4), '0' if G == 0 else d1))
                    q(mfma(d2, fr, vr(y+4*G,4), d2))
            extract(1280*(k % 2))
        def pvcheck(k):
            if k > 0:
                f = TB
                q(f'ds_read_b128 {vr(f,4)}, v{FL} offset:{16*(k%2)}')
                q(f'v_max3_u32 v15, v{f}, v{f+1}, v{f+2}\nv_max_u32 v15, v15, v{f+3}\nv_cmp_eq_u32 vcc, {k+1}, v15')
                touched = [f'v{U+i}' for i in range(96)] + [f'v{f+i}' for i in range(4)] + ['v15']
                br = q(f's_cbranch_vccnz RESC{k}{sfx}', R=touched+['EPOCH'], W=touched+['vcc'])
                br.text += f'\nC_R{k}{sfx}:'
                slow(f'RESC{k}{sfx}:\ns_nop 7')
                for j in range(4):
                    slow(f'v_and_b32 v15, 15, v0\nv_lshlrev_b32 v15, 2, v15\nv_add_u32 v15, {XA+256*(k%2)+64*j}, v15\nds_read_b32 v15, v15\nv_cmp_eq_u32 vcc, {k+1}, v{f+j}\ns_waitcnt lgkmcnt(0)\nv_cndmask_b32 v15, 1.0, v15, vcc')
                    for i in range(6):
                        for r in range(4): slow(f'v_mul_f32 v{U+16*i+4*j+r}, v15, v{U+16*i+4*j+r}')
                slow(f's_nop 1\ns_branch C_R{k}{sfx}')
        def pv(k):
            n7 = len(q.L); r7 = rix[0]
            for j in range(4): q(f'ds_read_b128 {ar(PF+4*j,4)}, v{PX} offset:{4096*(k%2)+1024*j}')
            o = rebase('P', slot_of[f'X{k}']*SLOT)
            ms = []
            if k == 7:
                PG = Y2[0]
                for j in range(4): q(f'ds_read_b128 {vr(PG+4*j,4)}, v{PX} offset:{8192+1024*j}')
                q(f's_mul_i32 s50, s3, 3072\ns_add_u32 s50, s50, {UX}\nv_add_u32 v{QB}, s50, v{VL}')
            n = 0
            for i in range(6):
                fr = TR+4*(trc[0] % NTR); trc[0] += 1
                for e in range(2): q(f'ds_read_b64_tr_b16 {ar(fr+2*e,2)}, v{P+i} offset:{o+12288*e}', private=(k == 7 and i >= 2))
                for j in range(4):
                    d = vr(U+16*i+4*j, 4)
                    t = mfma(d, ar(fr,4), ar(PF+4*j,4), '0' if k == 0 else d)
                    if k not in (3, 7) and 4*i+j >= 24-NDB: deferred.append(t)
                    else: q(t)
                    if k == 7: q(mfma(d, ar(LTF+24+4*i,4), vr(PG+4*j,4), d))
                if k == 7 and i % 2:
                    for j in range(4):
                        b = S2+4*(n % 4); n += 1
                        for e in range(2):
                            u = U+16*(i-1+e)+4*j
                            q(f'v_cvt_pk_bf16_f32 v{b+2*e}, v{u}, v{u+1}\nv_cvt_pk_bf16_f32 v{b+2*e+1}, v{u+2}, v{u+3}')
                        q(f'ds_write_b128 v{QB}, {vr(b,4)} offset:{12288*j+1024*(i//2)}')
                    for x, z in enumerate(q.L[n7:]): z.dl = r7*10000 + 300*(i//2) + 4*x
                    bar(['W4', 'W5', 'W6'] if i == 1 else [], f'pj{i//2}')
                    n7 = len(q.L)
            if k == 3:
                for j in range(4): q(f'ds_read_b128 {ar(PF+4*j,4)}, v{PX} offset:{8192+1024*j}')
                for i in range(6):
                    for j in range(4):
                        d = vr(U+16*i+4*j, 4)
                        t = mfma(d, ar(LTF+4*i,4), ar(PF+4*j,4), d)
                        if 4*i+j >= 24-NDB: deferred.append(t)
                        else: q(t)
        REG = plan.get('regions') or ([(f'm{k}', k+1 if k < 7 else None, k if 0 <= k < 8 else None, k-1 if k >= 1 else None) for k in range(-1, 9)])
        for name, ka, ks_, kp in REG:
            bar([f'X{ka}'] if ka is not None else [], name)
            SP = opt.get('sp', {})
            if isA:
                if ks_ is not None:
                    with span(*SP.get('sm', (0, 0.9))): softmax(ks_)
                with span(*SP.get('S', (0.03, 1.0))):
                    if name in ('m-1', 'm0', 'm2', 'm3'): proA({'m-1': 0, 'm0': 1, 'm2': 2, 'm3': 3}[name])
                    if ka is not None: partS(ka)
            else:
                if kp is not None:
                    with span(0.0, 0.1): pvcheck(kp)
                with span(*SP.get('st', (0.0, 0.6))):
                    if name == 'm-1':
                        ystats(0); dblY(0)
                    if ka is not None: stats(ka)
                with span(*SP.get('pv', (0.05, 1.0))):
                    if name == 'm-1': dblY(1)
                    if name == 'm0': ystats(1); ltf(0); ltf(1)
                    if kp is not None: pv(kp)
                    if name in ('m1', 'm3'): loadY({'m1': 2, 'm3': 3}[name])
        if isA:
            q('s_nop 0').dl = rix[0]*10000
            allred(q, 'v_add_f32', LS, T)
            q(f's_mul_i32 s50, s3, 12288\ns_add_u32 s50, s50, {UX}\nv_add_u32 v{Q}, s50, v{VL}')
            for bk in (4, 5, 6): q(f's_add_u32 s50, s24, {slot_of[f"W{bk}"]*SLOT}\nv_add_u32 v{Q+bk-3}, s50, v{VL}')
            O = VF+48
            q(f'v_and_b32 v{SR}, 15, v0\nv_lshlrev_b32 v{PA}, 4, v{SR}\nv_lshlrev_b32 v{SR}, 8, v{SR}\nv_and_b32 v{PXW}, 48, v0\nv_add_u32 v{SR}, v{SR}, v{PXW}')
            q(f's_lshl_b32 s50, s2, 14\ns_lshl_b32 s51, s3, 12\ns_add_u32 s50, s50, s51\ns_lshr_b32 s51, s50, 4\ns_add_u32 s50, s50, {WS_PART}\ns_add_u32 s51, s51, {WS_ML}')
            BB = (T, T+4, PK, PKL)
            for ph in range(3):
                bar(['W4', 'W5', 'W6'] if ph == 0 else [], f'pj{ph}')
                n0 = len(q.L)
                for n in range(4*ph, 4*ph+4): q(f'ds_read_b128 {vr(BB[n%4],4)}, v{Q} offset:{1024*(3*(n%4)+ph)}')
                order = [(n, dt) for n in range(4*ph, 4*ph+4) for dt in range(6)] if ph < 2 else [(n, dt) for dt in range(6) for n in range(8, 12)]
                for n, dt in order:
                    d = vr(CT+4*dt, 4)
                    fr = rg(VLOC[n-3][dt]) if VLOC[n] is None else rg(VLOC[n][dt])
                    q(mfma(d, fr, vr(BB[n % 4], 4), '0' if n == 0 else d))
                    if ph == 0 and n >= 1: q(f'ds_read_b128 {rg(VLOC[n][dt])}, v{Q+n} offset:{1024*dt}', private=True)
                    if n == 0 and dt == 5: issue0(q, 'pjv', None, plan, sfx)
                if ph == 1:
                    for j in range(4): q(f'v_mov_b32 v{O+4*j+3}, s38')
                    q(f'v_sub_f32 v{O+16}, 0, v{NM}\nv_mov_b32 v{O+17}, v{LS}\nv_mov_b32 v{O+18}, s38\nv_mov_b32 v{O+19}, s38')
                for x, z in enumerate(q.L[n0:]): z.dl = rix[0]*10000 + 8*x
            q('s_nop 0').dl = rix[0]*10000
            for i in range(12): q(f'v_cvt_pk_bf16_f32 v{O+4*(i//3)+i%3}, v{CT+2*i}, v{CT+2*i+1}')
            for j in range(4): q(f'buffer_store_dwordx4 {vr(O+4*j,4)}, v{SR}, s[28:31], s50 offen offset:{64*j} sc0 sc1')
            q(f'buffer_store_dwordx4 {vr(O+16,4)}, v{PA}, s[28:31], s51 offen sc0 sc1')
        body, tt = schedule(q.L, verbose=True)
        return pre, body

    p = Prog()
    p('T_red:')
    p.ext(stampi('stored'))
    p('s_cmp_lt_u32 s57, 64\ns_cbranch_scc0 K_fin')
    p('s_load_dwordx2 s[4:5], s[0:1], 0\ns_load_dwordx2 s[8:9], s[0:1], 72')
    p('s_lshr_b32 s40, s57, 2\ns_and_b32 s41, s57, 3')
    p('v_mov_b32 v1, s39\nv_mov_b32 v2, v0\nv_lshl_add_u32 v0, v1, 6, v2')
    WO = 96; D = 32; ML = 64; A = 24
    p('v_mul_u32_u24 v5, 12, v2\ns_mul_i32 s42, s41, 73728\ns_mul_i32 s43, s39, 9216\ns_add_u32 s42, s42, s43')
    for i in range(12):
        p(f'buffer_load_dwordx3 {vr(WO+4*i,3)}, v5, s[16:19], s42 offen offset:{768*(i%4)}')
        if i % 4 == 3: p('s_add_u32 s42, s42, 3072')
    p('v_lshrrev_b32 v10, 4, v2\nv_and_b32 v4, 15, v2\nv_lshlrev_b32 v3, 14, v10\nv_lshl_add_u32 v3, v4, 4, v3')
    p('v_and_b32 v8, 7, v2\nv_lshl_add_u32 v8, v8, 2, v10\nv_lshlrev_b32 v8, 10, v8')
    p('s_mov_b32 s46, 0x05040100\ns_mov_b32 s47, 0x07060302\ns_mov_b32 s48, 0x00ff00ff\ns_mov_b32 s49, 0x00ff00ff')
    p('s_waitcnt lgkmcnt(0)')
    srd(p, 12, 4, 12288); srd(p, 20, 8, 12288)
    p('v_lshlrev_b32 v6, 2, v0\ns_mul_i32 s44, s40, 768\ns_mul_i32 s43, s41, 192\ns_add_u32 s44, s44, s43')
    p('buffer_load_dword v7, v6, s[12:15], s44 offen')
    p('v_lshrrev_b32 v11, 2, v4\nv_mul_u32_u24 v11, 3, v11\nv_and_b32 v12, 3, v4')
    p('v_and_b32 v13, 1, v10\nv_lshrrev_b32 v14, 1, v10')
    def daddr(dst, dw):
        p(f'v_lshrrev_b32 v15, 1, v{dw}\nv_lshlrev_b32 v15, 4, v15\nv_and_b32 v16, 1, v{dw}\nv_lshl_add_u32 v15, v16, 1, v15\nv_lshl_add_u32 v15, v12, 2, v15\nv_add_u32 v15, v15, v14')
        p(f'v_lshlrev_b32 v15, 5, v15\nv_lshl_add_u32 v{dst}, v1, 2, v15')
    p('v_add_u32 v17, v11, v13'); daddr(18, 17)
    p('v_add_u32 v17, 2, v11'); daddr(19, 17)
    p('v_lshlrev_b32 v20, 2, v1\nv_add_u32 v20, 3072, v20\nv_cmp_eq_u32 vcc, 1, v13\nv_cndmask_b32 v19, v19, v20, vcc')
    p('v_mul_u32_u24 v21, 12, v1\nv_lshrrev_b32 v22, 3, v2\nv_and_b32 v23, 7, v2\nv_lshlrev_b32 v23, 2, v23\nv_add_u32 v9, v21, v22\nv_lshl_add_u32 v9, v9, 5, v23')
    p('v_and_b32 v22, 3, v22\nv_add3_u32 v21, v21, v22, 8\nv_lshl_add_u32 v21, v21, 5, v23\nv_add_u32 v22, 3072, v23')
    WPI = [3, 7, 0, 4, 1, 5]
    for i in range(6):
        for u in range(3):
            p(f'v_perm_b32 v{WO+8*i+WPI[2*u]}, v{WO+8*i+4+u}, v{WO+8*i+u}, s46\nv_perm_b32 v{WO+8*i+WPI[2*u+1]}, v{WO+8*i+4+u}, v{WO+8*i+u}, s47')
    p('s_barrier')
    p(f's_lshl_b32 s42, s39, 19\ns_lshl_b32 s43, s41, 12\ns_add_u32 s42, s42, s43\ns_lshl_b32 s43, s40, 8\ns_add_u32 s42, s42, s43\ns_lshr_b32 s43, s42, 4\ns_add_u32 s42, s42, {WS_PART}\ns_add_u32 s43, s43, {WS_ML}')
    p(f's_mov_b32 s58, {SPIN}\nT_poll:')
    p(f'buffer_load_dwordx4 {vr(ML,4)}, v8, s[28:31], s43 offen sc1\ns_sub_u32 s58, s58, 1\ns_cbranch_scc1 T_pd\ns_waitcnt vmcnt(0)\nv_cmp_ne_u32 vcc, s38, v{ML+2}\ns_cbranch_vccnz T_poll')
    p.ext(stampi('fl1'))
    for j in range(8): p(f's_add_u32 s45, s42, {4*j*16384}\nbuffer_load_dwordx4 {vr(D+4*j,4)}, v3, s[28:31], s45 offen sc1')
    p(f'v_mov_b32 v13, v{ML}')
    for r in (4, 2, 1): p(f'v_max_f32_dpp v13, v13, v13 row_ror:{r} {DPP}')
    allred(p, 'v_max_f32', 13, 15)
    p(f'v_sub_f32 v{ML}, v{ML}, v13\nv_exp_f32 v{ML}, v{ML}\nds_write_b32 v20, v13 offset:32')
    p(f'v_cvt_pk_bf16_f32 v{ML+2}, v{ML}, 0\nv_lshlrev_b32 v{ML+3}, 16, v{ML+2}\nv_mul_f32 v{A+6}, v{ML+3}, v{ML+1}')
    for r in (4, 2, 1): p(f'v_add_f32_dpp v{A+6}, v{A+6}, v{A+6} row_ror:{r} {DPP}')
    for j in range(8):
        p(f'v_mov_b32_dpp v{ML+4+2*j}, v{ML+2} row_newbcast:{j} {DPP}\nv_mov_b32_dpp v{ML+5+2*j}, v{ML+3} row_newbcast:{j} {DPP}')
    p(f'v_mov_b32 v11, s38\nv_mov_b32 v12, s38\nv_mov_b32 v{A+7}, v{A+6}')
    for j in range(8):
        for i in range(3):
            p(f'v_dot2_f32_bf16 v{A+2*i}, v{D+4*j+i}, v{ML+4+2*j}, {"0" if j == 0 else f"v{A+2*i}"}')
            p(f'v_dot2_f32_bf16 v{A+2*i+1}, v{D+4*j+i}, v{ML+5+2*j}, {"0" if j == 0 else f"v{A+2*i+1}"}')
        if j % 2:
            for op, r in (('v_min3_u32', 11), ('v_max3_u32', 12)): p(f'{op} v{r}, v{r}, v{D+4*j-1}, v{D+4*j+3}')
    p(f'v_cmp_ne_u32 vcc, v11, v12\ns_cbranch_vccnz T_poll\nT_pd:\ns_nop 2')
    p.ext(stampi('acc'))
    for i in range(0, 8, 2): p(f'v_permlane32_swap_b32 v{A+i}, v{A+i+1}')
    for i in range(0, 8, 2): p(f'v_add_f32 v{A+i}, v{A+i}, v{A+i+1}')
    p(f'v_permlane16_swap_b32 v{A}, v{A+2}\nv_permlane16_swap_b32 v{A+4}, v{A+6}\nv_add_f32 v{A}, v{A}, v{A+2}\nv_add_f32 v{A+4}, v{A+4}, v{A+6}')
    p(f'ds_write_b32 v18, v{A}\nds_write_b32 v19, v{A+4}\nWAITL\ns_barrier')
    p(f'ds_read_b32 v{D}, v22 offset:32\nds_read_b32 v{D+1}, v22\nds_read_b32 v{D+2}, v9\nds_read_b32 v{D+3}, v21')
    R8 = ['quad_perm:[1,0,3,2]', 'quad_perm:[2,3,0,1]', 'row_half_mirror']
    p(f'v_mov_b32 v13, v{D}')
    for r in R8: p(f'v_max_f32_dpp v13, v13, v13 {r} {DPP}')
    p(f'v_sub_f32 v{D}, v{D}, v13\nv_exp_f32 v{D}, v{D}')
    for i in range(1, 4): p(f'v_mul_f32 v{D+i}, v{D}, v{D+i}')
    for r in R8:
        for i in range(1, 4): p(f'v_add_f32_dpp v{D+i}, v{D+i}, v{D+i} {r} {DPP}')
    p(f'v_rcp_f32 v{D+1}, v{D+1}\nv_mul_f32 v{D+2}, v{D+2}, v{D+1}\nv_mul_f32 v{D+3}, v{D+3}, v{D+1}\nv_cvt_pk_bf16_f32 v15, v{D+2}, v{D+3}')
    for i in range(8): p(f'v_readlane_b32 s{4+i}, v15, {8*i}')
    for i in range(4): p(f's_pack_ll_b32_b16 s{50+i}, s{4+2*i}, s{5+2*i}')
    for i in range(2): p(f's_pack_hh_b32_b16 s{54+i}, s{4+2*i}, s{5+2*i}')
    p.ext(stampi('ctx'))
    for i in range(6):
        for u in range(6): p(f'v_dot2_f32_bf16 v{A+u}, v{WO+8*i+WPI[u]}, s{50+i}, {"0" if i == 0 else f"v{A+u}"}')
    p('v_mul_u32_u24 v11, 24, v2\ns_mul_i32 s45, s39, 1536\nv_add_u32 v11, s45, v11')
    p.ext(stampi('gemv'))
    for u in range(3): p(f'ds_write_b64 v11, {vr(A+2*u,2)} offset:{8192+8*u}')
    p('WAITL\ns_barrier')
    p('v_cmp_gt_u32 vcc, 192, v0\ns_and_saveexec_b64 s[46:47], vcc\ns_cbranch_execz K_fin')
    p('v_lshlrev_b32 v25, 3, v0')
    for z in range(8): p(f'ds_read_b64 {vr(D+2*z,2)}, v25 offset:{8192+1536*z}')
    p('s_mov_b32 s45, 0x7fc00000\nv_mov_b32 v27, s45')
    for i in range(2):
        for z in range(0, 8, 2): p(f'v_add_f32 v{D+2*z+i}, v{D+2*z+i}, v{D+2*z+2+i}')
        p(f'v_add_f32 v{D+i}, v{D+i}, v{D+4+i}\nv_add_f32 v{D+8+i}, v{D+8+i}, v{D+12+i}\nv_add_f32 v{D+i}, v{D+i}, v{D+8+i}')
        p(f'v_cmp_eq_u32 vcc, -1, v{D+i}\nv_cndmask_b32 v{D+i}, v{D+i}, v27, vcc')
    p(f's_mul_i32 s42, s57, 1536\ns_add_u32 s42, s42, {WS_XCH}')
    p(f'buffer_store_dwordx2 {vr(D,2)}, v25, s[28:31], s42 offen sc0 sc1')
    p.ext(stampi('xpub'))
    p('v_cmp_gt_u32 vcc, 48, v0\ns_and_saveexec_b64 s[46:47], vcc\ns_cbranch_execz K_fin')
    p(f's_mov_b32 s46, {WS_EPOCH}\ns_cmp_eq_u32 s57, 0\ns_cselect_b32 s45, s46, {WS_SIZE}\nv_mov_b32 v26, s38\nv_mov_b32 v28, 0')
    p(f'buffer_store_dword v26, v28, s[28:31], s45 offen')
    p(f's_mul_i32 s42, s40, 6144\ns_mul_i32 s43, s41, 384\ns_add_u32 s42, s42, s43\ns_add_u32 s42, s42, {WS_XCH}')
    p('s_add_u32 s43, s42, 3072')
    p(f's_mov_b32 s58, {SPIN}\nT_poll2:')
    p(f'buffer_load_dwordx2 v[40:41], v25, s[28:31], s42 offen sc1\nbuffer_load_dwordx2 v[42:43], v25, s[28:31], s42 offen offset:1536 sc1')
    p(f'buffer_load_dwordx2 v[44:45], v25, s[28:31], s43 offen sc1\nbuffer_load_dwordx2 v[46:47], v25, s[28:31], s43 offen offset:1536 sc1')
    p('v_max3_u32 v48, v40, v41, v42\nv_max3_u32 v48, v48, v43, v44\nv_max3_u32 v48, v48, v45, v46\nv_max_u32 v48, v48, v47')
    p('s_sub_u32 s58, s58, 1\ns_cbranch_scc1 T_pd2\nv_cmp_eq_u32 vcc, -1, v48\ns_cbranch_vccnz T_poll2\nT_pd2:')
    p('v_lshlrev_b32 v48, 16, v7\nv_and_b32 v49, 0xffff0000, v7')
    p('v_add_f32 v40, v40, v42\nv_add_f32 v44, v44, v46\nv_add_f32 v41, v41, v43\nv_add_f32 v45, v45, v47\nv_add_f32 v40, v40, v44\nv_add_f32 v41, v41, v45')
    p('v_add_f32 v40, v40, v48\nv_add_f32 v41, v41, v49\nv_cvt_pk_bf16_f32 v40, v40, v41')
    p('buffer_store_dword v40, v6, s[20:23], s44 offen')
    p('K_fin:')
    bodies = {}
    for gi, sfx in enumerate('ab'):
        for role in 'AB':
            pre, body = mkbody(plans[gi], sfx, role)
            lab = f'J_{role}{sfx}:'
            m = finalize(pre.L + [I(lab), I('s_waitcnt lgkmcnt(0)' if role == 'A' else 's_waitcnt vmcnt(0) lgkmcnt(0)'), I('s_add_u32 s38, s38, 1')] + body + ([I('s_branch T_red')] if sfx == 'a' else stampi('stored') + [I('s_branch K_fin')]))
            bodies[role+sfx] = m[[i.text for i in m].index(lab):]
    if stamps:
        p('s_waitcnt vmcnt(0)')
        p.ext(stampi('end'))
        n = len(stamps)
        order = [names.index(x) if x in names else 0 for x in stamps]
        p('s_load_dwordx2 s[10:11], s[0:1], 88\ns_waitcnt lgkmcnt(0)')
        p(f's_add_u32 s10, s10, {STAMP_OFF}\ns_addc_u32 s11, s11, 0')
        p(f's_mul_i32 s50, s2, {8*n}\ns_mov_b64 exec, 1\nv_mov_b32 v1, s50')
        p(f's_cmp_eq_u32 s39, {opt.get("stwave", 0)}\ns_cbranch_scc0 K_end')
        for i in range(n):
            p(f'v_mov_b32 v2, s{SB(order[i])}\nv_mov_b32 v3, s{SB(order[i])+1}\nglobal_store_dwordx2 v1, v[2:3], s[10:11] offset:{8*i}\ns_nop 1')
        print('stamps', n, ','.join(stamps), file=sys.stderr)
    p('K_end:\ns_endpgm')
    return head0 + h_a + h_v + h_none + h_none2 + h_B + bodies['Ba'] + bodies['Aa'] + bodies['Bb'] + bodies['Ab'] + finalize(p.L) + finalize(slow.L) + [I('CODE_END:')]

BASE = {
    'lat_slots': (0, 1), 'uslot': 2,
    'start': [('F', 0, 0), ('F', 1, 1), ('L', 0, 2), ('L', 1, 3)],
    **{f'lat{k}': [('L', k+3, 2+(k+3) % 4)] for k in range(9)},
    'lat0': [('L', 2, 4), ('L', 3, 5)],
    'm1': [('X', 4, 0)], 'm2': [('X', 5, 2)], 'm3': [('X', 6, 3)],
    'm4': [('X', 7, 4), ('V', 0), ('W', 4, 1)], 'm5': [('V', 1), ('V', 2), ('W', 5, 5)], 'm6': [('V', 3), ('W', 6, 0)],
    'm7': [('V', 7)], 'm8': [('V', 8), ('V', 9), ('V', 10)], 'pjv': [('V', 11)],
}
E = {'lat9': [('X', 0, 2)], 'lat10': [('POLL',)], 'epi': [('CHECK',), ('A',), ('X', 1, 3)], 'm-1': [('X', 2, 4)], 'm0': [('X', 3, 5)]}
P1 = {**BASE, **E, 'm0': [('X', 3, 5), ('TOUCHV',)], 'm3': [('X', 6, 3), ('TOUCHO',)]}
P2 = {**BASE, **E, 'lat0': [('PUB',), ('L', 2, 4), ('L', 3, 5)], 'lat2': [('GO',), ('L', 5, 3)]}
PLAN = (P1, P2)

def build(fn, plan=PLAN, stamps=False, opt={}):
    hdr = open('standalone__detection_seg_mask2former__vision.s.ref').read().split('\n')
    hdr = [l for l in hdr if l.startswith(';') and '@launch' not in l and 'Override launch' not in l and 'grid=ceil' not in l]
    s = '\n'.join(hdr) + '\n'
    s += '; @launch grid=(256,1,1) block=(512,1,1) lds=163840\n'
    s += '.amdgcn_target "amdgcn-amd-amdhsa--gfx950"\n.text\n'
    s += f'.globl {KN}\n.p2align 8\n.type {KN},@function\n{KN}:\n'
    s += emit(gen(plan, stamps, opt)).replace('CODE_LIM', f'CODE_END-{KN}-8192-64')
    s += f'''.section .rodata,"a"
.p2align 6
.amdhsa_kernel {KN}
  .amdhsa_next_free_vgpr 256
  .amdhsa_next_free_sgpr 102
  .amdhsa_accum_offset {NV}
  .amdhsa_group_segment_fixed_size 0
  .amdhsa_kernarg_size 96
  .amdhsa_user_sgpr_count 2
  .amdhsa_user_sgpr_kernarg_segment_ptr 1
  .amdhsa_system_sgpr_workgroup_id_x 1
.end_amdhsa_kernel
'''
    open(fn, 'w').write(s)

ST = ['start', 'lat0', 'lat10', 'epi', 'm-1', 'm0', 'm2', 'm4', 'm7', 'm8', 'pj0', 'stored', 'fl1', 'acc', 'ctx', 'gemv', 'xpub', 'end']
if __name__ == '__main__':
    build('k5.s')
    build('k_st.s', stamps=ST)
```

```python
import sys, math, struct
import asmlib
from asmlib import *

KN = 'standalone__detection_seg_mask2former__vision_kernel'
WS_A = 0
WS_EPOCH = 0xD000
WS_VT = 65536
WS_HF = 0x58000
WS_XCH = 0x60000
WS_PART = 0x80000
WS_ML = WS_PART + 256*16384
WS_SIZE = WS_ML + 256*1024
STAMP_OFF = 128 << 20
SLOT = 24576
STAT = 147456; PXB = STAT+2560; PLB = PXB+8192; XA = PLB+4096; FLG = XA+512
LOG2E = 1.4426950408889634
def f2u(x): return struct.unpack('<I', struct.pack('<f', x))[0]
THR = 2.0**30
SPIN = 1 << 15
STAMPOP = 's_memrealtime'
HEADST = False
NV = 160
DPP = 'row_mask:0xf bank_mask:0xf'
def SB(k): return [60, 62, 100, 66, 68, 70, 78, 82, 84, 86, 64, 72, 74, 76, 80, 88, 90, 92][k] if HEADST else 60+2*k

class Prog:
    def __init__(self): self.L = []
    def __call__(self, t, **kw):
        r = []
        for line in t.split('\n'):
            if line.strip():
                i = I(line, **kw); self.L.append(i); r.append(i)
        return r[-1]
    def ext(self, l): self.L += l
def vr(b, n=1): return f'v{b}' if n == 1 else f'v[{b}:{b+n-1}]'
def ar(b, n=1): return f'a{b}' if n == 1 else f'a[{b}:{b+n-1}]'
def mfma(d, a, b, c): return f'v_mfma_f32_16x16x32_bf16 {d}, {a}, {b}, {c}'
def srd(p, s, lo, size):
    p(f's_mov_b32 s{s}, s{lo}\ns_mov_b32 s{s+1}, s{lo+1}\ns_mov_b32 s{s+2}, {size}\ns_mov_b32 s{s+3}, 0x20000')
def allred(z, op, a, t):
    z(f'v_mov_b32 v{t}, v{a}\nv_permlane32_swap_b32 v{a}, v{t}\n{op} v{a}, v{a}, v{t}')
    z(f'v_mov_b32 v{t}, v{a}\nv_permlane16_swap_b32 v{a}, v{t}\n{op} v{a}, v{a}, v{t}')

def fintail(L):
    out = []; cur = []
    for i in L:
        if i.kind == 'label' and (i.text.startswith('T_ok') or i.text.startswith('T_k')) and i.text != 'T_k2:':
            out += finalize(cur); cur = []
        cur.append(i)
    return out + finalize(cur)
def gen(plans, stamps=False, opt={}):
    VL = 1
    DX = 2; Q = 8; SR = 12; PXW = 13; PA = 14; NM = 15; LS = 16; SA = 17; AL = 18; HA = 19; YS = 20
    T = 28; SACC = [36, 44]; SLO = [52, 56]; PK = 60; PKL = 64; PL = 68; PE = 76; RS = 84; VF = 92
    DL = SACC[0]
    AA = 0; XF = 48; NXF = 5; VA = 68; JUNK = 92
    CT = SACC[0]
    def frs(kind, b, n=6): return [(kind, b+4*i) for i in range(n)]
    VLOC = [frs('v', VF), frs('v', VF+24), frs('a', VA), frs('v', VF+48, 5)+frs('a', VA+24, 1), None, None, None,
            frs('a', 0), frs('a', 24), frs('a', XF, 5)+frs('v', YS, 1), frs('v', PL), frs('v', VF)]
    XRL = [frs('v', VF), frs('v', VF+24), frs('a', VA), frs('v', PL)]
    def rg(f): return (ar if f[0] == 'a' else vr)(f[1], 4)
    P = 8; QB = 14; RT = 15; TB = 16; PX = 20; SW = 21; FL = 22; S2 = 24; S1 = 32; Y2 = [40, 52]; U = 64
    LT = S2; Q0 = 44; LH = 48; LW_ = 52
    ONES = 0; XB = 4; NXB = 7; TR = 4; NTR = 7; PF = 32; LTF = 48; AF = [48, 72]; BF = [16, 32]
    names = []
    def stampi(name):
        if stamps and name in stamps:
            if name not in names: names.append(name)
            k = names.index(name); assert k < 20
            return [I(f'{STAMPOP} s[{SB(k)}:{SB(k)+1}]')]
        return []
    DG = T+4
    def dma(q, kind, n, slot=None):
        if kind == 'F':
            q(f's_add_u32 s49, s25, {256*n}\ns_add_u32 m0, s45, {16384*n}')
            for i in range(4): q(f'buffer_load_dwordx4 v{DG+i}, s[16:19], s49 offen offset:{1024*i} nt lds', tag=f'F{n}')
            return
        srdn, base, off, fl, vo = {'F': (16, 's25', n*SLOT, ' nt', DL), 'L': (20, 's24', n*SLOT, '', DL),
                                   'X': (12, 's26', (n % 2)*196608 + (n//2)*SLOT, ' nt', DX)}[kind]
        q(f's_add_u32 s49, {base}, {off}')
        q(f's_add_u32 m0, s24, {slot*SLOT}')
        for i in range(6):
            if i == 4: q(f's_add_u32 m0, s24, {slot*SLOT+4096}')
            q(f'buffer_load_dwordx4 v{vo+i}, s[{srdn}:{srdn+3}], s49 offen offset:{1024*(i%4)}{fl} lds', tag=f'{kind}{n}')
    def loadV(q, bk, slot=None):
        q(f's_add_u32 s52, s27, {6144*(3*(bk % 4)+bk//4)}')
        if slot is not None: q(f's_add_u32 m0, s24, {slot*SLOT}')
        for dt in range(6):
            if dt == 4:
                q('s_add_u32 s52, s52, 4096')
                if slot is not None: q(f's_add_u32 m0, s24, {slot*SLOT+4096}')
            if slot is not None: q(f'buffer_load_dwordx4 v{VL}, s[28:31], s52 offen offset:{1024*(dt%4)} sc1 lds', tag=f'W{bk}')
            else: q(f'buffer_load_dwordx4 {rg(VLOC[bk][dt])}, v{VL}, s[28:31], s52 offen offset:{1024*(dt%4)} sc1', tag=f'V{bk}')
    slow = Prog()
    HA0 = HA
    X0 = 64; WM = X0+8; D1 = X0+32; WF = X0+56; MF = X0+68; D2 = X0+80; KF = 44; QF = 72
    def issue0(q, name, prio, plan, sfx, role='A'):
        n0 = len(q.L)
        for it in plan.get(name, []):
            k = it[0]
            who = 'B' if (name.startswith('m') and name != 'm-1' and k in ('X', 'W', 'TOUCHV', 'TOUCHO') and not opt.get('dmaA')) else 'A'
            if who != role: continue
            HA = 23 if role == 'B' else (AL if k.startswith('TOUCH') else HA0)
            if k == 'A':
                q('s_mul_i32 s50, s3, 12288')
                for a_ in range(*(it[1:] or (0, 4))):
                    q(f's_xor_b32 s51, s3, {a_}\ns_lshl_b32 s51, s51, 10\ns_add_u32 s51, s51, s50')
                    for G in range(3):
                        if G: q('s_add_u32 s51, s51, 4096')
                        q(f'buffer_load_dwordx4 {ar(AA+4*(3*a_+G),4)}, v{VL}, s[28:31], s51 offen sc1', tag='A')
            elif k == 'V': loadV(q, it[1])
            elif k == 'W': loadV(q, it[1], it[2])
            elif k == 'XR':
                q(f's_add_u32 s49, s26, {(it[1] % 2)*196608 + (it[1]//2)*SLOT}')
                for i in range(6): q(f'buffer_load_dwordx4 {rg(XRL[it[2]][i])}, v{DX+i}, s[12:15], s49 offen offset:{1024*(i%4)} nt', tag=f'R{it[1]}')
            elif k == 'XW':
                q(f's_add_u32 s50, s24, {it[2]*SLOT}\nv_add_u32 v{T+2}, s50, v{VL}')
                for i in range(6): q(f'ds_write_b128 v{T+2}, {rg(XRL[it[3]][i])} offset:{1024*i}')
            elif k == 'POLL': q(f'buffer_load_dword v{HA}, v{PA}, s[28:31], 0 offen sc1')
            elif k == 'CHECK':
                q(f'v_cmp_ne_u32 vcc, s38, v{HA}')
                br = q(f's_cbranch_vccnz POLL{sfx}', R=['VM', f'v{HA}', f'v{PA}'], W=['VM', f'v{HA}', 's58', 'scc', 'vcc'])
                br.text += f'\nC_POLL{sfx}:'
                slow(f'POLL{sfx}:\ns_mov_b32 s58, {SPIN}\nPOLL1{sfx}:\ns_sleep 6\nbuffer_load_dword v{HA}, v{PA}, s[28:31], 0 offen sc1\ns_sub_u32 s58, s58, 1\ns_cbranch_scc1 C_POLL{sfx}\ns_waitcnt vmcnt(0)\nv_cmp_ne_u32 vcc, s38, v{HA}\ns_cbranch_vccnz POLL1{sfx}\ns_branch C_POLL{sfx}')
            elif k == 'PUB':
                q('s_cmp_eq_u32 s96, 0')
                tt = [f'v{x}' for x in range(X0, 160)]
                br = q('s_cbranch_scc0 PUBA', R=['VM', 'EPOCH']+tt, W=['VM', 's50', 's51', 'scc']+tt)
                br.text += '\nC_PUBA:'
                z = Prog(); z('PUBA:')
                for w in range(4): z(f'ds_read_b128 {vr(D1+4*w,4)}, v{X0+3} offset:{3072*w}')
                for r in range(4): z(f'v_add_f32 v{D1+r}, v{D1+r}, v{D1+4+r}\nv_add_f32 v{D1+8+r}, v{D1+8+r}, v{D1+12+r}\nv_add_f32 v{D1+r}, v{D1+r}, v{D1+8+r}')
                z(f'v_cvt_pk_bf16_f32 v{D1}, v{D1}, v{D1+1}\nv_cvt_pk_bf16_f32 v{D1+1}, v{D1+2}, v{D1+3}')
                z('s_mul_i32 s50, s40, 12288\ns_lshl_b32 s51, s41, 9\ns_add_u32 s50, s50, s51')
                z(f'buffer_store_dwordx2 {vr(D1,2)}, v{X0+6}, s[28:31], s50 offen sc0 sc1')
                z.ext(stampi('a_pub')); z('s_branch C_PUBA'); slow.ext(z.L)
            elif k == 'GO':
                q(f'v_mov_b32 v{T}, 0\nv_mov_b32 v{T+1}, s38')
                q(f's_mov_b64 exec, 1\nbuffer_store_dword v{T+1}, v{T}, s[28:31], s97 offen sc0 sc1\ns_mov_b64 exec, -1')
            elif k in ('TOUCHV', 'TOUCHO'):
                q(f's_add_u32 s52, s43, {WS_VT if k == "TOUCHV" else 0}\nv_min_u32 v{HA}, 35, v0\nv_lshlrev_b32 v{HA}, 7, v{HA}')
                q(f'buffer_load_dword v{HA}, v{HA}, s[{"28:31" if k == "TOUCHV" else "16:19"}], s52 offen', tag='pre')
            else: dma(q, *it)
        if prio:
            for i in q.L[n0:]: i.prio = prio

    p = Prog()
    p('s_getpc_b64 s[40:41]')
    p('s_load_dwordx16 s[64:79], s[0:1], 0\ns_load_dwordx8 s[80:87], s[0:1], 64')
    p(f's_lshr_b32 s42, s2, 3\ns_and_b32 s43, s42, 15\ns_lshl_b32 s43, s43, 13\ns_min_u32 s43, s43, CODE_LIM')
    p(f'v_lshl_add_u32 v28, v0, 4, s43')
    p(f'global_load_dwordx4 {ar(JUNK,4)}, v28, s[40:41]', tag='pre')
    p('s_cmp_ge_u32 s2, 256\ns_cbranch_scc1 K_end')
    p.ext(stampi('start'))
    p('v_lshrrev_b32 v2, 6, v0\nv_and_b32 v0, 63, v0')
    p('v_readfirstlane_b32 s39, v2')
    p(f'v_lshlrev_b32 v{VL}, 4, v0')
    m_, g_, F_, t_, r_, b_ = 56, 57, 58, 59, 60, 61
    p(f'v_and_b32 v{m_}, 15, v0\nv_lshrrev_b32 v{g_}, 4, v0')
    p('s_and_b32 s3, s39, 3\ns_movk_i32 s48, 768\ns_mul_i32 s24, s3, 6144')
    p('s_lshr_b32 s57, s2, 4\ns_lshl_b32 s57, s57, 3\ns_and_b32 s44, s2, 7\ns_or_b32 s57, s57, s44')
    p('s_and_b32 s45, s3, 1\ns_mul_i32 s46, s45, 9\ns_movk_i32 s47, 1366')
    for i in range(3):
        t0, t1, t2 = T+1, T+2, T+3
        p(f'v_add_u32 v{t0}, {64*i}, v0' if i else f'v_mov_b32 v{t0}, v0')
        p(f'v_mul_u32_u24 v{t1}, s47, v{t0}\nv_lshrrev_b32 v{t1}, 16, v{t1}')
        p(f'v_mul_u32_u24 v{t2}, 48, v{t1}\nv_sub_u32 v{t0}, v{t0}, v{t2}')
        p(f'v_lshlrev_b32 v{t2}, 1, v{t1}\nv_xor_b32 v{t2}, s46, v{t2}\nv_xor_b32 v{t0}, v{t0}, v{t2}')
        p(f'v_lshlrev_b32 v{t0}, 4, v{t0}\nv_mul_u32_u24 v{t1}, s48, v{t1}\nv_add_u32 v{t0}, v{t0}, v{t1}')
        p(f'v_subrev_u32 v{DL+i}, {1024*i}, v{t0}' if i else f'v_mov_b32 v{DL+i}, v{t0}')
        p(f'v_add_u32 v{DX+i}, v{t1}, v{DL+i}')
        p(f'v_xor_b32 v{t0}, 128, v{t0}\nv_add_u32 v{DL+i+3}, {3072-1024*((i+3)%4)}, v{t0}\nv_add3_u32 v{DX+i+3}, v{t1}, v{DL+i+3}, s48')
        p(f'v_add_u32 v{DX+i+3}, 2304, v{DX+i+3}')
    for i in range(4):
        p(f'v_add_u32 v{F_}, {4*(i&1)}, v{g_}\nv_lshlrev_b32 v{F_}, 1, v{F_}' if i & 1 else f'v_lshlrev_b32 v{F_}, 1, v{g_}')
        if i >= 2: p(f'v_xor_b32 v{F_}, 9, v{F_}')
        p(f'v_xor_b32 v{F_}, v{F_}, v{m_}\nv_lshlrev_b32 v{F_}, 4, v{F_}\nv_mad_u32_u24 v{DG+i}, v{g_}, s48, v{F_}')
        if i: p(f'v_add_u32 v{DG+i}, {2048*i}, v{DG+i}')
    p('s_mul_i32 s25, s2, 49152\ns_lshl_b32 s44, s24, 1\ns_add_u32 s25, s25, s44')
    p('s_lshr_b32 s26, s2, 1\ns_mul_i32 s26, s26, 393216\ns_and_b32 s27, s2, 1\ns_mul_i32 s27, s27, 98304\ns_add_u32 s26, s26, s27')
    p('s_mul_i32 s27, s45, 12288\ns_add_u32 s26, s26, s27\ns_lshr_b32 s27, s3, 1\ns_mul_i32 s27, s27, 768\ns_add_u32 s26, s26, s27')
    p(f's_mul_i32 s27, s3, 73728\ns_add_u32 s27, s27, {WS_VT}\ns_lshl_b32 s45, s3, 12')
    p('s_lshr_b32 s43, s2, 4\ns_lshl_b32 s43, s43, 2\ns_add_u32 s43, s43, s3\ns_mul_i32 s43, s43, 4608')
    p('s_waitcnt lgkmcnt(0)')
    srd(p, 12, 66, 50331648); srd(p, 16, 68, 12582912); srd(p, 20, 70, 294912); srd(p, 28, 86, WS_SIZE)
    p(f's_load_dword s38, s[86:87], {WS_EPOCH}\ns_mov_b32 s10, s78\ns_mov_b32 s11, s79')
    p.ext(stampi('karg'))
    p('s_cmp_ge_u32 s39, 4\ns_cbranch_scc1 H_B')
    p(f's_mov_b32 s97, {WS_SIZE}\ns_mov_b32 s96, 0\ns_bitcmp1_b32 s2, 3\ns_cbranch_scc0 H_none')
    p('s_cmp_ge_u32 s57, 120\ns_cbranch_scc1 H_none2\ns_cmp_ge_u32 s57, 96\ns_cbranch_scc1 H_v')
    head0 = finalize(p.L)
    def fswz(p, dst, m):
        p(f'v_lshrrev_b32 v{t_}, 3, v{m}\nv_mul_u32_u24 v{t_}, 9, v{t_}\nv_and_b32 v{dst}, 7, v{m}\nv_lshlrev_b32 v{dst}, 1, v{dst}\nv_xor_b32 v{dst}, v{dst}, v{t_}')
    def setupA(p):
        fswz(p, F_, m_)
        p(f'v_xor_b32 v{t_}, v{g_}, v{F_}\nv_lshlrev_b32 v{t_}, 4, v{t_}\nv_mad_u32_u24 v{Q}, v{m_}, s48, v{t_}\ns_lshl_b32 s50, s3, 6\nv_xor_b32 v{Q}, s50, v{Q}')
        for a_ in range(1, 4): p(f'v_xor_b32 v{Q+a_}, {64*a_}, v{Q}')
        p(f'v_and_b32 v{t_}, 3, v0\nv_lshl_add_u32 v{t_}, v{g_}, 2, v{t_}\nv_mul_u32_u24 v{AL}, 80, v{t_}\nv_bfe_u32 v{t_}, v0, 2, 1\nv_lshl_add_u32 v{SR}, v{t_}, 3, v{AL}\nv_add_u32 v{SR}, {STAT}, v{SR}')
        p(f's_lshl_b32 s50, s3, 10\ns_add_u32 s50, s50, {PXB}\nv_add_u32 v{PXW}, s50, v{VL}\nv_mov_b32 v{LS}, 0')
        p(f's_lshl_b32 s50, s3, 12\ns_add_u32 s50, s50, {WS_HF}\nv_min_u32 v{PA}, 29, v0\nv_lshl_add_u32 v{PA}, v{PA}, 7, s50')
        p(f's_mov_b32 s53, {f2u(1/384):#x}\ns_mov_b32 s54, {f2u(1e-5):#x}\ns_mov_b32 s55, {f2u(THR):#x}')
        if opt.get('prioA'): p(f's_setprio {opt["prioA"]}')
    def start(p, plan, a, b):
        for it in plan['start'][a:b]: dma(p, *it)
    p = Prog(); p('H_B:')
    fswz(p, F_, m_)
    p(f'v_xor_b32 v{t_}, v{g_}, v{F_}\nv_lshlrev_b32 v{t_}, 4, v{t_}\nv_mad_u32_u24 v{QB}, v{m_}, s48, v{t_}\ns_lshl_b32 s50, s3, 6\nv_xor_b32 v{QB}, s50, v{QB}\nv_lshl_add_u32 v{Q0}, v{m_}, 8, v{t_}')
    for a_ in range(1, 4): p(f'v_xor_b32 v{Q0+a_}, {64*a_}, v{Q0}')
    p(f'v_and_b32 v{t_}, 1, v{g_}\nv_lshlrev_b32 v{t_}, 3, v{t_}\nv_mad_u32_u24 v{LH}, v{m_}, s48, v{t_}\nv_mov_b32 v{LH+1}, v{F_}\nv_lshrrev_b32 v{LH+2}, 1, v{g_}')
    p(f'v_lshrrev_b32 v{t_}, 2, v{m_}\nv_cmp_eq_u32 vcc, v{t_}, v{g_}')
    p(f's_lshl_b32 s50, s3, 4\nv_mov_b32 v{t_}, s50\nv_cndmask_b32 v{t_}, 64, v{t_}, vcc\nv_mul_u32_u24 v{SW}, 80, v{m_}\nv_add_u32 v{SW}, v{SW}, v{t_}\nv_add_u32 v{SW}, {STAT}, v{SW}')
    p(f'v_add_u32 v{PX}, {PXB}, v{VL}')
    p(f'v_mov_b32 v{FL}, {FLG}\nv_and_b32 v{t_}, 3, v0')
    for j in range(1, 4): p(f'v_cmp_eq_u32 s[{30+2*j}:{31+2*j}], {j}, v{t_}')
    p(f'v_bfe_u32 v{b_}, v0, 1, 1\nv_and_b32 v{b_+1}, 1, v0\nv_lshlrev_b32 v{b_+1}, 3, v{b_+1}\ns_mul_i32 s50, s3, 12')
    for kind in ('P', 0, 1):
        if kind == 'P': p(f'v_lshrrev_b32 v{r_}, 2, v{m_}\nv_lshl_add_u32 v{r_}, v{g_}, 2, v{r_}')
        else:
            p(f'v_lshrrev_b32 v{r_}, 2, v{m_}\nv_lshl_add_u32 v{r_}, v{g_}, 3, v{r_}')
            if kind: p(f'v_add_u32 v{r_}, 4, v{r_}')
        p(f'v_and_b32 v{b_+2}, 15, v{r_}')
        fswz(p, F_, b_+2)
        p(f'v_mad_u32_u24 v{b_+2}, v{r_}, s48, v{b_+1}')
        if kind != 'P': p(f'v_add_u32 v{b_+2}, {2*SLOT}, v{b_+2}')
        for t in range(6):
            p(f'v_add_u32 v{t_}, s50, v{b_}' if t == 0 else f'v_add3_u32 v{t_}, s50, v{b_}, {2*t}')
            p(f'v_xor_b32 v{t_}, v{t_}, v{F_}\nv_lshl_add_u32 v{P+t if kind == "P" else LT+2*t+kind}, v{t_}, 4, v{b_+2}')
    p('s_mov_b32 s50, 0x3f803f80\ns_mov_b32 s56, 0x00800080')
    for i in range(4): p(f'v_accvgpr_write_b32 a{ONES+i}, s50')
    if opt.get('prioB'): p(f's_setprio {opt["prioB"]}')
    srd(p, 16, 78, 294912)
    p('s_bitcmp1_b32 s2, 3\ns_cbranch_scc0 J_Ba')
    p('s_cmp_ge_u32 s57, 120\ns_cbranch_scc1 J_Bb\ns_barrier\ns_cmp_ge_u32 s57, 96\ns_cbranch_scc1 J_Bb\ns_barrier\ns_barrier\ns_branch J_Bb')
    h_B = finalize(p.L)
    plan = plans[0]
    p = Prog(); p('H_none:')
    Z = X0
    start(p, plan, 0, 1)
    p('s_lshr_b32 s50, s2, 4\ns_lshl_b32 s50, s50, 2\ns_add_u32 s50, s50, s3\ns_bfe_u32 s51, s2, 0x20001\ns_mul_i32 s51, s51, 73728\ns_and_b32 s52, s2, 1')
    p(f's_mul_i32 s44, s50, 1152\ns_add_u32 s44, s44, s51\nv_min_u32 v{Z}, 8, v0\nv_lshl_add_u32 v{Z}, v{Z}, 7, s44')
    p(f'global_load_dword a{JUNK}, v{Z}, s[72:73]', tag='pre')
    p(f's_mul_i32 s59, s52, 384\ns_add_u32 s59, s59, s43\nv_min_u32 v{Z+1}, 17, v0\nv_mul_u32_u24 v{Z+2}, 86, v{Z+1}\nv_lshrrev_b32 v{Z+2}, 8, v{Z+2}')
    p(f'v_mul_u32_u24 v{Z+2}, 384, v{Z+2}\nv_lshl_add_u32 v{Z+1}, v{Z+1}, 7, v{Z+2}\nv_add_u32 v{Z+1}, s59, v{Z+1}')
    p(f'global_load_dword a{JUNK}, v{Z+1}, s[80:81]', tag='pre')
    p(f's_mul_i32 s59, s50, 5\nv_min_u32 v{Z+2}, 4, v0\nv_add_u32 v{Z+2}, s59, v{Z+2}\nv_min_u32 v{Z+2}, 287, v{Z+2}\ns_mul_i32 s59, s52, 36864\ns_add_u32 s59, s59, s51\nv_lshl_add_u32 v{Z+2}, v{Z+2}, 7, s59')
    p(f'global_load_dword a{JUNK}, v{Z+2}, s[74:75]', tag='pre')
    p(f's_lshl_b32 s59, s50, 1\nv_min_u32 v{Z+3}, 1, v0\nv_add_u32 v{Z+3}, s59, v{Z+3}\nv_min_u32 v{Z+3}, 95, v{Z+3}\nv_lshlrev_b32 v{Z+3}, 7, v{Z+3}')
    p(f'global_load_dword a{JUNK}, v{Z+3}, s[64:65]', tag='pre')
    p(f'global_load_dword a{JUNK}, v{Z}, s[76:77]', tag='pre')
    p(f'v_min_u32 v{Z+4}, 35, v0\nv_lshl_add_u32 v{Z+4}, v{Z+4}, 7, s43')
    p(f'global_load_dword a{JUNK}, v{Z+4}, s[70:71]', tag='pre')
    setupA(p); start(p, plan, 1, 9)
    p('s_branch J_Aa'); h_none = finalize(p.L)
    plan = plans[1]
    p = Prog(); p('H_none2:'); start(p, plan, 0, 1); setupA(p); start(p, plan, 1, 9); p('s_branch J_Ab'); h_none2 = finalize(p.L)
    p = Prog(); p('H_a:')
    srd(p, 4, 64, 12288); srd(p, 8, 72, 294912); srd(p, 92, 74, 294912); srd(p, 88, 80, 294912)
    p('s_bfe_u32 s40, s57, 0x20001\ns_and_b32 s41, s57, 1\ns_mul_i32 s41, s41, 12\ns_lshr_b32 s44, s57, 3\ns_add_u32 s41, s41, s44')
    LQ = STAT; LK = LQ+12288; LW = 3*SLOT
    p(f's_mul_i32 s44, s40, 73728\ns_mul_i32 s50, s41, 3072\ns_add_u32 s50, s50, s44\ns_min_u32 s51, s3, 2\ns_lshl_b32 s51, s51, 10\ns_add_u32 s50, s50, s51\ns_add_u32 m0, s51, {LK}')
    p(f'buffer_load_dwordx4 v{VL}, s[92:95], s50 offen lds', tag='tq')
    p(f's_mul_i32 s99, s3, 3072\ns_add_u32 s99, s99, {LQ}\ns_mov_b32 m0, s99\ns_mul_i32 s50, s3, 192\ns_movk_i32 s51, 5462')
    for i in range(3):
        p(f'v_add_u32 v{X0}, {64*i}, v0\nv_mul_u32_u24 v{X0+1}, s51, v{X0}\nv_lshrrev_b32 v{X0+1}, 16, v{X0+1}\nv_mul_u32_u24 v{X0+1}, 576, v{X0+1}\nv_add_u32 v{X0+2+i}, v{X0+1}, v{VL}')
        p(f'buffer_load_dwordx4 v{X0+2+i}, s[4:7], s50 offen offset:{1024*i} lds', tag='tq')
    p(f's_mul_i32 s98, s3, 18432\ns_add_u32 s44, s44, s98\ns_add_u32 s98, s98, {LW}')
    p(f'v_mul_u32_u24 v{X0+5}, 3072, v{g_}\nv_lshl_add_u32 v{X0+5}, v{m_}, 1, v{X0+5}')
    p('s_mul_i32 s59, s3, 73728\ns_lshl_b32 s50, s41, 5\ns_add_u32 s59, s59, s50')
    p.ext(stampi('a_q'))
    for pp in range(3):
        p(f's_add_u32 s50, s44, {6144*pp}\ns_add_u32 m0, s98, {6144*pp}')
        for i in range(6):
            if i == 4: p(f's_add_u32 m0, s98, {6144*pp+4096}\ns_add_u32 s50, s50, 4096')
            p(f'buffer_load_dwordx4 v{VL}, s[8:11], s50 offen offset:{1024*(i%4)} lds', tag='tw')
        if pp == 0:
            p.ext(stampi('a_w'))
            p(f'v_lshrrev_b32 v{X0+6}, 1, v{g_}\nv_lshlrev_b32 v{X0+6}, 8, v{X0+6}\nv_lshl_add_u32 v{X0+6}, v{m_}, 4, v{X0+6}\nv_and_b32 v{X0+7}, 1, v{g_}\nv_lshl_add_u32 v{X0+6}, v{X0+7}, 3, v{X0+6}')
            p(f'v_mul_u32_u24 v{X0+3}, 192, v{m_}\nv_lshl_add_u32 v{X0+4}, v{g_}, 3, v{X0+3}\nv_add_u32 v{X0+4}, s99, v{X0+4}\nv_lshl_add_u32 v{X0+3}, v{g_}, 4, v{X0+3}')
            p(f'v_add_u32 v{X0+7}, {LK}, v{X0+3}\nv_add_u32 v{X0+2}, s98, v{X0+3}\nv_add_u32 v{X0+3}, s99, v{VL}')
            setupA(p)
    for s in range(6):
        for r in range(4): p(f'buffer_load_ushort v{WM+4*s+r}, v{X0+5}, s[88:91], s59 offen offset:{768*r}')
        if s < 5: p('s_add_u32 s59, s59, 12288')
    p(f'v_mov_b32 v{X0}, -1\nv_lshlrev_b32 v{X0+1}, 2, v0\ns_lshl_b32 s44, s57, 10\ns_lshl_b32 s50, s3, 8\ns_add_u32 s44, s44, s50\ns_add_u32 s44, s44, {WS_XCH}')
    p(f'buffer_store_dword v{X0}, v{X0+1}, s[28:31], s44 offen sc0 sc1', tag='clean')
    p.ext(stampi('a_iss'))
    TS = plan.get('tsplit', (1, 2))
    start(p, plan, 0, TS[0])
    p('WAITV tq tw\ns_barrier')
    p.ext(stampi('a_bar'))
    for ks in range(3): p(f'ds_read_b128 {vr(KF+4*ks,4)}, v{X0+7} offset:{64*ks}')
    for t in range(6):
        for ks in range(3): p(f'ds_read_b128 {ar(12*t+4*ks,4)}, v{X0+2} offset:{3072*t+64*ks}')
    for s in range(3): p(f'ds_read_b64 {ar(QF+4*s,2)}, v{X0+4} offset:{64*s}\nds_read_b64 {ar(QF+2+4*s,2)}, v{X0+4} offset:{64*s+32}')
    start(p, plan, TS[0], TS[1])
    p('WAITL\ns_barrier')
    p0 = p; p = Prog()
    for t in range(6):
        for ks in range(3): p(mfma(vr(D1+4*t,4), ar(12*t+4*ks,4), vr(KF+4*ks,4), '0' if ks == 0 else vr(D1+4*t,4)))
    for i in range(12): p(f'v_lshl_or_b32 v{MF+i}, v{WM+1+2*i}, 16, v{WM+2*i}')
    for s in range(3): p(mfma(vr(D2+4,4), vr(MF+4*s,4), ar(QF+4*s,4), '0' if s == 0 else vr(D2+4,4)))
    for t in range(6): p(f'v_cvt_pk_bf16_f32 v{WF+2*t}, v{D1+4*t}, v{D1+4*t+1}\nv_cvt_pk_bf16_f32 v{WF+2*t+1}, v{D1+4*t+2}, v{D1+4*t+3}')
    for s in range(3): p(mfma(vr(D2,4), vr(WF+4*s,4), ar(QF+4*s,4), '0' if s == 0 else vr(D2,4)))
    p(f's_mov_b32 s50, {f2u(96**-0.5*LOG2E):#x}\ns_mov_b32 s51, {f2u(384**-0.5*LOG2E):#x}')
    for r in range(4): p(f'v_mul_f32 v{D2+r}, s50, v{D2+r}\nv_fma_f32 v{D2+r}, s51, v{D2+4+r}, v{D2+r}')
    p(f'ds_write_b128 v{X0+3}, {vr(D2,4)}')
    p0.ext(schedule(p.L)[0]); p = p0
    p.ext(stampi('a_cmp'))
    p('WAITL\ns_barrier\ns_cmp_eq_u32 s3, 0\ns_cbranch_scc0 H_a2')
    for w in range(4): p(f'ds_read_b128 {vr(D1+4*w,4)}, v{X0+3} offset:{3072*w}')
    for r in range(4): p(f'v_add_f32 v{D1+r}, v{D1+r}, v{D1+4+r}\nv_add_f32 v{D1+8+r}, v{D1+8+r}, v{D1+12+r}\nv_add_f32 v{D1+r}, v{D1+r}, v{D1+8+r}')
    p(f'v_cvt_pk_bf16_f32 v{D1}, v{D1}, v{D1+1}\nv_cvt_pk_bf16_f32 v{D1+1}, v{D1+2}, v{D1+3}')
    p('s_mul_i32 s50, s40, 12288\ns_lshl_b32 s51, s41, 9\ns_add_u32 s50, s50, s51')
    p(f'buffer_store_dwordx2 {vr(D1,2)}, v{X0+6}, s[28:31], s50 offen sc0 sc1')
    p.ext(stampi('a_pub'))
    p('H_a2:')
    start(p, plan, TS[1], 9)
    p(f's_lshl_b32 s44, s40, 12\ns_lshl_b32 s50, s41, 7\ns_add_u32 s44, s44, s50\ns_add_u32 s44, s44, {WS_HF}\ns_cmp_eq_u32 s3, 0\ns_cselect_b32 s97, s44, s97\ns_cselect_b32 s96, 1, 0\ns_branch J_Ab')
    h_a = finalize(p.L)
    p = Prog(); p('H_v:')
    srd(p, 8, 76, 294912)
    p('s_bfe_u32 s40, s57, 0x20001\ns_and_b32 s41, s57, 1\ns_mul_i32 s41, s41, 3\ns_lshr_b32 s44, s57, 3\ns_add_u32 s41, s41, s44\ns_sub_u32 s41, s41, 12')
    p(f'v_mul_u32_u24 v{X0+5}, 768, v{g_}\nv_lshl_add_u32 v{X0+5}, v{m_}, 1, v{X0+5}')
    p('s_mul_i32 s50, s40, 73728\ns_mul_i32 s51, s3, 18432\ns_add_u32 s50, s50, s51\ns_lshl_b32 s51, s41, 5\ns_add_u32 s50, s50, s51')
    for s in range(6):
        for r in range(4): p(f'buffer_load_ushort v{WM+4*s+r}, v{X0+5}, s[8:11], s50 offen offset:{192*r}')
        p('s_add_u32 s50, s50, 3072')
    start(p, plan, 0, TS[1])
    setupA(p)
    for i in range(24): p(f'v_lshlrev_b32 v{WM+i}, 16, v{WM+i}')
    for i in range(0, 24, 4): p(f'v_add_f32 v{D1+i//2}, v{WM+i}, v{WM+i+1}\nv_add_f32 v{D1+i//2+1}, v{WM+i+2}, v{WM+i+3}')
    for i in range(1, 12): p(f'v_add_f32 v{D1}, v{D1}, v{D1+i}')
    allred(p, 'v_add_f32', D1, D1+1)
    p(f's_lshl_b32 s44, s3, 2\ns_add_u32 s44, s44, {STAT}\nv_and_b32 v{X0+3}, 15, v0\nv_lshlrev_b32 v{X0+3}, 4, v{X0+3}\nv_add_u32 v{X0+4}, s44, v{X0+3}\nv_add_u32 v{X0+3}, {STAT}, v{X0+3}')
    p(f'ds_write_b32 v{X0+4}, v{D1}\nWAITL\ns_barrier\nds_read_b128 {vr(D1+4,4)}, v{X0+3}')
    p(f's_mov_b32 s44, {f2u(1/384):#x}\nv_add_f32 v{D1+4}, v{D1+4}, v{D1+5}\nv_add_f32 v{D1+6}, v{D1+6}, v{D1+7}\nv_add_f32 v{D1+4}, v{D1+4}, v{D1+6}\nv_mul_f32 v{D1+4}, s44, v{D1+4}')
    for rnd in range(2):
        for i in range(24):
            if rnd == 0: p(f'v_sub_f32 v{WM+i}, v{WM+i}, v{D1+4}')
            if rnd or i: p(f'v_add_f32 v{D1+5}, v{WM+i}, v{D1+5}')
            else: p(f'v_mov_b32 v{D1+5}, v{WM}')
            p(f'v_cvt_pk_bf16_f32 v{WM+i}, v{D1+5}, v{D1+5}\nv_and_b32 v{WM+i}, 0xffff0000, v{WM+i}\nv_sub_f32 v{D1+5}, v{D1+5}, v{WM+i}')
    for i in range(12): p(f'v_cvt_pk_bf16_f32 v{WF+i}, v{WM+2*i}, v{WM+2*i+1}')
    p(f's_mul_i32 s50, s40, 73728\ns_mul_i32 s51, s3, 18432\ns_add_u32 s50, s50, s51\ns_lshl_b32 s51, s41, 10\ns_add_u32 s50, s50, s51\ns_add_u32 s50, s50, {WS_VT}')
    for s in range(3):
        p(f'buffer_store_dwordx4 {vr(WF+4*s,4)}, v{VL}, s[28:31], s50 offen sc0 sc1', tag='pub')
        if s < 2: p('s_add_u32 s50, s50, 6144')
    start(p, plan, TS[1], 9)
    p(f's_lshl_b32 s44, s40, 12\ns_lshl_b32 s50, s41, 7\ns_add_u32 s44, s44, s50\ns_add_u32 s44, s44, {WS_HF+24*128}\ns_cmp_eq_u32 s3, 0\ns_cselect_b32 s97, s44, s97\ns_branch J_Ab')
    h_v = finalize(p.L)

    def mkbody(plan, sfx, role):
        slot_of = {}
        for name, its in plan.items():
            if not isinstance(its, list) or name == 'regions': continue
            for it in its:
                if it[0] in ('L', 'X', 'W', 'XW'): slot_of[f'{it[0][0]}{it[1]}'] = it[2]
        LATSLOT = plan['lat_slots']; UX = plan['uslot']*SLOT
        q = Prog(); pre = Prog()
        isA = role == 'A'
        if isA: start(pre, plan, 0, 9)
        base = {'Q': 0, 'P': 0, 'LT': 2*SLOT, 'QB': 0}
        def rebase(which, off, span=SLOT):
            regs = {'Q': range(Q, Q+4), 'P': range(P, P+6), 'LT': range(LT, LT+12), 'QB': [QB]}[which]
            if not (base[which] <= off and off+span <= base[which]+65536):
                nb = (off//(2*SLOT))*2*SLOT
                d = nb - base[which]
                for r in regs: q(f'v_add_u32 v{r}, {d & 0xffffffff:#x}, v{r}')
                base[which] = nb
            return off - base[which]
        DP = plan.get('dmaprio', 300)
        deferred = []
        rix = [0]
        TT = opt.get('T', 1200)
        class span:
            def __init__(s, f0, f1): s.f = (f0, f1)
            def __enter__(s): s.n = len(q.L)
            def __exit__(s, *a):
                L = [i for i in q.L[s.n:] if i.kind != 'bar' and getattr(i, 'dl', None) is None]
                for x, i in enumerate(L): i.dl = rix[0]*10000 + TT*(s.f[0] + (s.f[1]-s.f[0])*x/max(len(L)-1, 1))
        NDA = opt.get('nda', 2); NDB = opt.get('ndb', 8)
        def bar(waits, name):
            b = q('BAR ' + ' '.join(waits)); b.extra = stampi(name); b.tag = stampi('b'+name)
            rix[0] += 1; b.dl = rix[0]*10000 - 2000
            if opt.get('dloop'):
                if name == 'm1': b.extra = b.extra + [I('s_mov_b32 s58, 0')]
                if name == 'm2': b.extra = [I(f'C_DLOOP{role}{sfx}:')] + b.extra
                if name == 'm6': b.extra = [I('s_add_u32 s58, s58, 1'), I('s_cmp_lt_u32 s58, 3'), I(f's_cbranch_scc1 C_DLOOP{role}{sfx}')] + b.extra
            with span(-0.01, 0.08):
                for t in deferred: q(t, R=['EPOCH'])
            deferred.clear()
            if not isA and name == 'm8': b.extra = b.extra + [I(f's_setprio {opt.get("pjprio", 2)}')]
            with span(*(opt.get('vmspan', (0.0, 0.8)))): issue0(q, name, None, plan, sfx, role)
        for ks in range(12):
            bar([f'L{ks}', f'F{ks//4}'], f'lat{ks}')
            if not isA:
              with span(0, 0.3):
                o = rebase('LT', slot_of[f'L{ks}']*SLOT)
                for pt in range(4):
                    q(f'ds_read_b128 {ar(BF[ks%2]+4*pt,4)}, v{Q0+ks%4} offset:{16384*(ks//4)+4096*pt}')
                for t in range(6):
                    for e in range(2): q(f'ds_read_b64_tr_b16 {ar(AF[ks%2]+4*t+2*e,2)}, v{LT+2*t+e} offset:{o}')
              with span(10000/TT-0.02, 10000/TT+0.3):
                for kk, t, pt in ([(ks, t, pt) for t in range(6) for pt in range(4)] if ks < 10 else [] if ks == 10 else [(kk, t, pt) for pt in range(4) for kk in (10, 11) for t in range(6)]):
                        d = vr(U+4*(4*t+pt), 4)
                        z = q(mfma(d, ar(AF[kk % 2]+4*t, 4), ar(BF[kk % 2]+4*pt, 4), '0' if kk == 0 else d))
                        if ks == 11: z.dl = rix[0]*10000 + 64*(2*pt+kk-10) + 8*t
        bar([], 'epi')
        if isA and sfx == 'a': q('s_mov_b32 s16, s10\ns_mov_b32 s17, s11\ns_mov_b32 s18, 294912', R=['EPOCH'])
        xfc = [0]; trc = [0]
        q('FENCE').dl = rix[0]*10000
        if not isA:
          with span(0.0, 0.45):
            q('s_mul_i32 s50, s3, 12')
            for t in range(6):
                q(f'v_add3_u32 v{LW_+t}, s50, v{LH+2}, {2*t}\nv_xor_b32 v{LW_+t}, v{LW_+t}, v{LH+1}\nv_lshl_add_u32 v{LW_+t}, v{LW_+t}, 4, v{LH}')
            assert LATSLOT == (0, 1)
            for pt in range(4):
                for t in range(6):
                    d = U+4*(4*t+pt); tm = (TB, TB+2, S1+4, S1+6, 58, 60)[(6*pt+t) % 6]
                    q(f'v_cvt_pk_bf16_f32 v{tm}, v{d}, v{d+1}\nv_cvt_pk_bf16_f32 v{tm+1}, v{d+2}, v{d+3}')
                    q(f'ds_write_b64 v{LW_+t}, {vr(tm,2)} offset:{12288*pt}', private=(pt < 2)).dl = (rix[0]-1)*10000 + 128*pt + 140 + 8*t
            q(f'v_mov_b32 v62, 0\ns_lshl_b32 s50, s3, 2\nv_add_u32 v63, s50, v{FL}\nds_write2_b32 v63, v62, v62 offset0:0 offset1:4')
        def sumA():
            q(f's_mov_b32 s50, 0x3f803f80')
            for i in range(4): q(f'v_mov_b32 v{PK+i}, s50')
            for j in range(12): q(mfma(vr(PKL,4), vr(PK,4), ar(AA+4*j,4), '0' if j == 0 else vr(PKL,4)))
            q(f'v_sub_f32 v{SA}, 0, v{PKL}')
        def proA(pt):
            o = rebase('Q', LATSLOT[pt//2]*SLOT) + 12288*(pt % 2)
            for a_ in range(4):
                for G in range(3):
                    fr = ar(XF+4*(xfc[0] % NXF), 4); xfc[0] += 1
                    q(f'ds_read_b128 {fr}, v{Q+a_} offset:{o+256*G}')
                    q(mfma(vr(SLO[pt % 2],4), fr, ar(AA+4*(3*a_+G),4), '0' if a_+G == 0 else vr(SLO[pt % 2],4)))
        def partS(k):
            o = rebase('Q', slot_of[f'X{k}']*SLOT)
            sa = SACC[k % 2]
            for a_ in range(4):
                for G in range(3):
                    for mt in range(2):
                        fr = ar(XF+4*(xfc[0] % NXF), 4); xfc[0] += 1
                        q(f'ds_read_b128 {fr}, v{Q+a_} offset:{o+256*G+12288*mt}')
                        d = vr(sa+4*mt, 4)
                        t = mfma(d, fr, ar(AA+4*(3*a_+G),4), vr(SLO[(k//2) % 2],4) if a_+G == 0 else d)
                        if 6*a_+2*G+mt >= 24-NDA: deferred.append(t)
                        else: q(t)
        def sum4(t0, areg, off):
            q(f'ds_read2_b64 {vr(t0,4)}, v{areg} offset0:{off} offset1:{off+2}')
            q(f'ds_read2_b64 {vr(t0+4,4)}, v{areg} offset0:{off+4} offset1:{off+6}')
            q(f'v_add_f32 v{t0}, v{t0}, v{t0+2}\nv_add_f32 v{t0+1}, v{t0+1}, v{t0+3}\nv_add_f32 v{t0+4}, v{t0+4}, v{t0+6}\nv_add_f32 v{t0+5}, v{t0+5}, v{t0+7}')
        def softmax(k):
            sa = SACC[k % 2]; t0 = T
            def ysum(pt, tb):
                sum4(tb, HA, 160*(pt//2)+pt % 2)
                q(f'v_add_f32 v{YS+2*pt}, v{tb}, v{tb+4}\nv_add_f32 v{YS+2*pt+1}, v{tb+1}, v{tb+5}')
            if k == 0:
                q(f'v_and_b32 v{HA}, 4, v0\nv_lshlrev_b32 v{HA}, 1, v{HA}\nv_sub_u32 v{HA}, v{SR}, v{HA}\nv_add_u32 v{HA}, {PLB-STAT}, v{HA}')
                ysum(0, PE)
            sum4(t0, SR, 160*(k % 2))
            y = YS+2*(k//2)
            q(f'v_add_f32 v{t0}, v{t0}, v{y}\nv_add_f32 v{t0+1}, v{t0+1}, v{y+1}')
            q(f'v_add_f32 v{t0}, v{t0}, v{t0+4}\nv_add_f32 v{t0+1}, v{t0+1}, v{t0+5}')
            q(f'v_mul_f32 v{t0+1}, s53, v{t0+1}')
            q(f'v_mul_f32 v{t0}, s53, v{t0}\nv_fma_f32 v{t0}, -v{t0+1}, v{t0+1}, v{t0}')
            q(f'v_max_f32 v{t0}, 0, v{t0}\nv_add_f32 v{t0}, s54, v{t0}\nv_rsq_f32 v{t0}, v{t0}')
            for i in range(8): q(f'v_fmac_f32_dpp v{sa+i}, v{t0+1}, v{SA} row_newbcast:{i} {DPP}')
            for i in range(8): q(f'v_mov_b32_dpp v{RS+i}, v{t0} row_newbcast:{i} {DPP}').R.discard(f'v{RS+i}')
            mx = T+2; ts = T+4
            def exps(z):
                for i in range(8): z(f'v_exp_f32 v{PE+i}, v{sa+i}')
                z(f'v_add_f32 v{ts}, v{PE}, v{PE+1}\nv_add_f32 v{ts+1}, v{PE+2}, v{PE+3}\nv_add_f32 v{ts+2}, v{PE+4}, v{PE+5}\nv_add_f32 v{ts+3}, v{PE+6}, v{PE+7}')
                z(f'v_add_f32 v{ts}, v{ts}, v{ts+1}\nv_add_f32 v{ts+2}, v{ts+2}, v{ts+3}\nv_add_f32 v{ts}, v{ts}, v{ts+2}')
            def maxes(z):
                z(f'v_max3_f32 v{mx}, v{sa}, v{sa+1}, v{sa+2}\nv_max3_f32 v{mx+1}, v{sa+3}, v{sa+4}, v{sa+5}\nv_max3_f32 v{mx}, v{mx}, v{sa+6}, v{sa+7}\nv_max_f32 v{mx}, v{mx}, v{mx+1}')
                allred(z, 'v_max_f32', mx, mx+1)
            if k == 0:
                for i in range(8): q(f'v_mul_f32 v{sa+i}, v{sa+i}, v{RS+i}')
                maxes(q)
                for i in range(8): q(f'v_sub_f32 v{sa+i}, v{sa+i}, v{mx}')
                q(f'v_sub_f32 v{NM}, 0, v{mx}')
                exps(q)
            else:
                for i in range(8): q(f'v_fma_f32 v{sa+i}, v{sa+i}, v{RS+i}, v{NM}')
                exps(q)
                q(f'v_cmp_nge_f32 vcc, s55, v{ts}')
                live_pl = ([PL+i for i in range(4)] if k % 4 >= 1 else []) + ([PL+4+i for i in range(4)] if k % 4 == 3 else [])
                touched = [f'v{x+i}' for x in (sa, PE) for i in range(8)] + [f'v{x}' for x in (NM, LS, AL, mx, mx+1, ts, ts+1, ts+2, ts+3)] + [f'v{x}' for x in live_pl]
                br = q(f's_cbranch_vccnz RARE{k}{sfx}', R=touched+['EPOCH'], W=touched+['s59', 'scc'])
                br.text += f'\nC_{k}{sfx}:'
                slow(f'RARE{k}{sfx}:')
                maxes(slow)
                slow(f'v_max_f32 v{mx}, 0, v{mx}')
                for i in range(8): slow(f'v_sub_f32 v{sa+i}, v{sa+i}, v{mx}')
                slow(f'v_sub_f32 v{NM}, v{NM}, v{mx}\nv_exp_f32 v{AL}, -v{mx}')
                for r in [LS] + live_pl: slow(f'v_mul_f32 v{r}, v{AL}, v{r}')
                slow(f's_lshl_b32 s59, s3, 6\ns_add_u32 s59, s59, {XA+256*(k%2)}\nv_and_b32 v{mx}, 15, v0\nv_lshl_add_u32 v{mx}, v{mx}, 2, s59\nds_write_b32 v{mx}, v{AL}')
                slow(f's_lshl_b32 s59, s3, 2\ns_add_u32 s59, s59, {FLG+16*(k%2)}\nv_mov_b32 v{mx}, s59\nv_mov_b32 v{mx+1}, {k+1}\nds_write_b32 v{mx}, v{mx+1}')
                exps(slow)
                slow(f's_waitcnt lgkmcnt(0)\ns_branch C_{k}{sfx}')
            q(f'v_add_f32 v{LS}, v{LS}, v{ts}')
            for i in range(8): q(f'v_mul_f32 v{RS+i}, v{PE+i}, v{RS+i}')
            for i in range(4): q(f'v_cvt_pk_bf16_f32 v{PK+i}, v{RS+2*i}, v{RS+2*i+1}')
            q(f'ds_write_b128 v{PXW}, {vr(PK,4)} offset:{4096*(k%2)}')
            pl = PL+4*((k//2) % 2)
            for r in range(4):
                if k % 2 == 0: q(f'v_add_f32 v{pl+r}, v{RS+r}, v{RS+4+r}')
                else: q(f'v_add_f32 v{pl+r}, v{pl+r}, v{RS+r}\nv_add_f32 v{pl+r}, v{pl+r}, v{RS+4+r}')
            for pt in {1: (1, 2), 2: (3,)}.get(k, ()): ysum(pt, PE)
            if k % 4 == 3:
                for i in range(4): q(f'v_cvt_pk_bf16_f32 v{PKL+i}, v{PL+2*i}, v{PL+2*i+1}')
                q(f'ds_write_b128 v{PXW}, {vr(PKL,4)} offset:8192')
        def extract(off):
            for mt in range(2):
                for (src, dst) in ((S2+4*mt, TB+2*mt), (S1+4*mt, TB+1+2*mt)):
                    q(f'v_cndmask_b32 v{dst}, v{src}, v{src+1}, s[32:33]\nv_cndmask_b32 v{dst}, v{dst}, v{src+2}, s[34:35]\nv_cndmask_b32 v{dst}, v{dst}, v{src+3}, s[36:37]')
            q(f'ds_write_b128 v{SW}, {vr(TB,4)} offset:{off}')
        def loadY(pt, dbl=True):
            o = rebase('QB', LATSLOT[pt//2]*SLOT) + 12288*(pt % 2)
            for G in range(3): q(f'ds_read_b128 {vr(Y2[pt%2]+4*G,4)}, v{QB} offset:{o+256*G}')
            if dbl: dblY(pt)
        def dblY(pt):
            for i in range(12): q(f'v_add_u32 v{Y2[pt%2]+i}, s56, v{Y2[pt%2]+i}')
        def ystats(t):
            for mt in range(2):
                if t == 0: loadY(mt, False)
                else: o = rebase('QB', LATSLOT[1]*SLOT) + 12288*mt
                for G in range(3):
                    if t == 0: fr = vr(Y2[mt]+4*G, 4)
                    else:
                        fr = ar(TR+4*(trc[0] % NTR), 4); trc[0] += 1
                        q(f'ds_read_b128 {fr}, v{QB} offset:{o+256*G}')
                    q(mfma(vr(S2+4*mt,4), fr, fr, '0' if G == 0 else vr(S2+4*mt,4)))
                    q(mfma(vr(S1+4*mt,4), fr, ar(ONES,4), '0' if G == 0 else vr(S1+4*mt,4)))
            extract(PLB-STAT+1280*t)
        def ltf(t):
            o = rebase('P', LATSLOT[t]*SLOT)
            for i in range(6):
                for e in range(2): q(f'ds_read_b64_tr_b16 {ar(LTF+24*t+4*i+2*e,2)}, v{P+i} offset:{o+12288*e}')
        def stats(k):
            o = rebase('QB', slot_of[f'X{k}']*SLOT)
            y = Y2[(k//2) % 2]
            for G in range(3):
                for mt in range(2):
                    fr = ar(XB+4*(trc[0] % NXB), 4); trc[0] += 1
                    q(f'ds_read_b128 {fr}, v{QB} offset:{o+256*G+12288*mt}')
                    d2 = vr(S2+4*mt, 4); d1 = vr(S1+4*mt, 4)
                    q(mfma(d2, fr, fr, '0' if G == 0 else d2))
                    q(mfma(d1, fr, ar(ONES,4), '0' if G == 0 else d1))
                    q(mfma(d2, fr, vr(y+4*G,4), d2))
            extract(1280*(k % 2))
        def pvcheck(k):
            if k > 0:
                f = TB
                q(f'ds_read_b128 {vr(f,4)}, v{FL} offset:{16*(k%2)}')
                q(f'v_max3_u32 v15, v{f}, v{f+1}, v{f+2}\nv_max_u32 v15, v15, v{f+3}\nv_cmp_eq_u32 vcc, {k+1}, v15')
                touched = [f'v{U+i}' for i in range(96)] + [f'v{f+i}' for i in range(4)] + ['v15']
                br = q(f's_cbranch_vccnz RESC{k}{sfx}', R=touched+['EPOCH'], W=touched+['vcc'])
                br.text += f'\nC_R{k}{sfx}:'
                slow(f'RESC{k}{sfx}:\ns_nop 7')
                for j in range(4):
                    slow(f'v_and_b32 v15, 15, v0\nv_lshlrev_b32 v15, 2, v15\nv_add_u32 v15, {XA+256*(k%2)+64*j}, v15\nds_read_b32 v15, v15\nv_cmp_eq_u32 vcc, {k+1}, v{f+j}\ns_waitcnt lgkmcnt(0)\nv_cndmask_b32 v15, 1.0, v15, vcc')
                    for i in range(6):
                        for r in range(4): slow(f'v_mul_f32 v{U+16*i+4*j+r}, v15, v{U+16*i+4*j+r}')
                slow(f's_nop 1\ns_branch C_R{k}{sfx}')
        def pv(k):
            n7 = len(q.L); r7 = rix[0]
            for j in range(4): q(f'ds_read_b128 {ar(PF+4*j,4)}, v{PX} offset:{4096*(k%2)+1024*j}')
            o = rebase('P', slot_of[f'X{k}']*SLOT)
            ms = []
            if k == 7:
                PG = Y2[0]
                for j in range(4): q(f'ds_read_b128 {vr(PG+4*j,4)}, v{PX} offset:{8192+1024*j}')
                q(f's_mul_i32 s50, s3, 3072\ns_add_u32 s50, s50, {UX}\nv_add_u32 v{QB}, s50, v{VL}')
            n = 0
            for i in range(6):
                fr = TR+4*(trc[0] % NTR); trc[0] += 1
                for e in range(2): q(f'ds_read_b64_tr_b16 {ar(fr+2*e,2)}, v{P+i} offset:{o+12288*e}', private=(k == 7 and i >= 2))
                for j in range(4):
                    d = vr(U+16*i+4*j, 4)
                    t = mfma(d, ar(fr,4), ar(PF+4*j,4), '0' if k == 0 else d)
                    if k not in (3, 7) and 4*i+j >= 24-NDB: deferred.append(t)
                    else: q(t)
                    if k == 7: q(mfma(d, ar(LTF+24+4*i,4), vr(PG+4*j,4), d))
                if k == 7 and i % 2:
                    for j in range(4):
                        b = S2+4*(n % 4); n += 1
                        for e in range(2):
                            u = U+16*(i-1+e)+4*j
                            q(f'v_cvt_pk_bf16_f32 v{b+2*e}, v{u}, v{u+1}\nv_cvt_pk_bf16_f32 v{b+2*e+1}, v{u+2}, v{u+3}')
                        q(f'ds_write_b128 v{QB}, {vr(b,4)} offset:{12288*j+1024*(i//2)}')
                    for x, z in enumerate(q.L[n7:]): z.dl = r7*10000 + 300*(i//2) + 4*x
                    bar(['W4', 'W5', 'W6'] if i == 1 else [], f'pj{i//2}')
                    n7 = len(q.L)
            if k == 3:
                for j in range(4): q(f'ds_read_b128 {ar(PF+4*j,4)}, v{PX} offset:{8192+1024*j}')
                for i in range(6):
                    for j in range(4):
                        d = vr(U+16*i+4*j, 4)
                        t = mfma(d, ar(LTF+4*i,4), ar(PF+4*j,4), d)
                        if 4*i+j >= 24-NDB: deferred.append(t)
                        else: q(t)
        REG = plan.get('regions') or ([(f'm{k}', k+1 if k < 7 else None, k if 0 <= k < 8 else None, k-1 if k >= 1 else None) for k in range(-1, 9)])
        for name, ka, ks_, kp in REG:
            bar([f'X{ka}'] if ka is not None else [], name)
            SP = opt.get('sp', {})
            if isA:
                if ks_ is not None:
                    with span(*SP.get('sm', (0, 0.9))): softmax(ks_)
                with span(*SP.get('S', (0.03, 1.0))):
                    for pt in opt.get('pro', {'m-1': (0, 1), 'm1': (2,), 'm3': (3,)}).get(name, ()): proA(pt)
                    if ka is not None: partS(ka)
                    if name == 'm-1': sumA()
            else:
                if kp is not None:
                    with span(-0.1 if kp == 7 else 0.0, -0.05 if kp == 7 else 0.1): pvcheck(kp)
                with span(*SP.get('st', (0.0, 0.6))):
                    if name == 'm-1':
                        ystats(0); dblY(0)
                    if ka is not None: stats(ka)
                with span(*SP.get('pv', (0.05, 1.0))):
                    if name == 'm-1': dblY(1)
                    if name == 'm0': ystats(1); ltf(0); ltf(1)
                    if kp is not None: pv(kp)
                    if name in ('m1', 'm3'): loadY({'m1': 2, 'm3': 3}[name])
        if isA:
            q('FENCE').dl = rix[0]*10000
            allred(q, 'v_add_f32', LS, T)
            q(f's_mul_i32 s50, s3, 12288\ns_add_u32 s50, s50, {UX}\nv_add_u32 v{Q}, s50, v{VL}')
            for bk in (4, 5, 6): q(f's_add_u32 s50, s24, {slot_of[f"W{bk}"]*SLOT}\nv_add_u32 v{Q+bk-3}, s50, v{VL}')
            O = VF+48
            q(f'v_and_b32 v{SR}, 15, v0\nv_lshlrev_b32 v{PA}, 4, v{SR}\nv_lshlrev_b32 v{SR}, 8, v{SR}\nv_and_b32 v{PXW}, 48, v0\nv_add_u32 v{SR}, v{SR}, v{PXW}')
            q(f's_lshl_b32 s50, s2, 14\ns_lshl_b32 s51, s3, 12\ns_add_u32 s50, s50, s51\ns_lshr_b32 s51, s50, 4\ns_add_u32 s50, s50, {WS_PART}\ns_add_u32 s51, s51, {WS_ML}')
            BB = (T, T+4, PK, PKL)
            for ph in range(3):
                bar(['W4', 'W5', 'W6'] if ph == 0 else [], f'pj{ph}')
                n0 = len(q.L)
                for n in range(4*ph, 4*ph+4): q(f'ds_read_b128 {vr(BB[n%4],4)}, v{Q} offset:{1024*(3*(n%4)+ph)}')
                order = [(n, dt) for n in range(4*ph, 4*ph+4) for dt in range(6)] if ph < 2 else [(n, dt) for dt in range(6) for n in range(8, 12)]
                for n, dt in order:
                    d = vr(CT+4*dt, 4)
                    fr = rg(VLOC[n-3][dt]) if VLOC[n] is None else rg(VLOC[n][dt])
                    q(mfma(d, fr, vr(BB[n % 4], 4), '0' if n == 0 else d))
                    if ph == 0 and n >= 1: q(f'ds_read_b128 {rg(VLOC[n][dt])}, v{Q+n} offset:{1024*dt}', private=True)
                    if n == 0 and dt == 5: issue0(q, 'pjv', None, plan, sfx)
                if ph == 1:
                    for j in range(4): q(f'v_mov_b32 v{O+4*j+3}, s38')
                    q(f'v_sub_f32 v{O+16}, 0, v{NM}\nv_mov_b32 v{O+17}, v{LS}\nv_mov_b32 v{O+18}, s38\nv_mov_b32 v{O+19}, s38')
                for x, z in enumerate(q.L[n0:]): z.dl = rix[0]*10000 + 8*x
            q('FENCE').dl = rix[0]*10000
            for i in range(12): q(f'v_cvt_pk_bf16_f32 v{O+4*(i//3)+i%3}, v{CT+2*i}, v{CT+2*i+1}')
            MLP = opt.get('mlpos', 4)
            for j in range(5):
                if j == MLP: q(f'buffer_store_dwordx4 {vr(O+16,4)}, v{PA}, s[28:31], s51 offen sc0 sc1', R=[f'v{O+4*min(j,3)}'])
                if j < 4: q(f'buffer_store_dwordx4 {vr(O+4*j,4)}, v{SR}, s[28:31], s50 offen offset:{64*j} {opt.get("stfl", "sc0 sc1")}')
        body, tt = schedule(q.L, verbose=True)
        return pre, body

    p = Prog()
    p('T_red:')
    p.ext(stampi('stored'))
    p('s_cmp_lt_u32 s57, 64\ns_cbranch_scc0 K_fin')
    p('s_load_dwordx2 s[4:5], s[0:1], 0\ns_load_dwordx2 s[8:9], s[0:1], 72')
    p('s_lshr_b32 s40, s57, 2\ns_and_b32 s41, s57, 3')
    p('v_mov_b32 v1, s39\nv_mov_b32 v2, v0\nv_lshl_add_u32 v0, v1, 6, v2')
    WO = 96; D = 32; ML = 64; A = 24
    p('v_mul_u32_u24 v5, 12, v2\ns_mul_i32 s42, s41, 73728\ns_mul_i32 s43, s39, 9216\ns_add_u32 s42, s42, s43')
    for i in range(12):
        p(f'buffer_load_dwordx3 {vr(WO+4*i,3)}, v5, s[16:19], s42 offen offset:{768*(i%4)}')
        if i % 4 == 3: p('s_add_u32 s42, s42, 3072')
    p('v_lshrrev_b32 v10, 4, v2\nv_and_b32 v4, 15, v2\nv_lshlrev_b32 v3, 14, v10\nv_lshl_add_u32 v3, v4, 4, v3')
    p('v_and_b32 v8, 7, v2\nv_lshl_add_u32 v8, v8, 2, v10\nv_lshlrev_b32 v8, 10, v8')
    p('s_mov_b32 s46, 0x05040100\ns_mov_b32 s47, 0x07060302\ns_mov_b32 s48, 0x00ff00ff\ns_mov_b32 s49, 0x00ff00ff')
    p('s_waitcnt lgkmcnt(0)')
    srd(p, 12, 4, 12288); srd(p, 20, 8, 12288)
    p('v_lshlrev_b32 v6, 2, v0\ns_mul_i32 s44, s40, 768\ns_mul_i32 s43, s41, 192\ns_add_u32 s44, s44, s43')
    p('buffer_load_dword v7, v6, s[12:15], s44 offen')
    p('v_lshrrev_b32 v11, 2, v4\nv_mul_u32_u24 v11, 3, v11\nv_and_b32 v12, 3, v4')
    p('v_and_b32 v13, 1, v10\nv_lshrrev_b32 v14, 1, v10')
    def daddr(dst, dw):
        p(f'v_lshrrev_b32 v15, 1, v{dw}\nv_lshlrev_b32 v15, 4, v15\nv_and_b32 v16, 1, v{dw}\nv_lshl_add_u32 v15, v16, 1, v15\nv_lshl_add_u32 v15, v12, 2, v15\nv_add_u32 v15, v15, v14')
        p(f'v_lshlrev_b32 v15, 5, v15\nv_lshl_add_u32 v{dst}, v1, 2, v15')
    p('v_add_u32 v17, v11, v13'); daddr(18, 17)
    p('v_add_u32 v17, 2, v11'); daddr(19, 17)
    p('v_lshlrev_b32 v20, 2, v1\nv_add_u32 v20, 3072, v20\nv_cmp_eq_u32 vcc, 1, v13\nv_cndmask_b32 v19, v19, v20, vcc')
    p('v_mul_u32_u24 v21, 12, v1\nv_lshrrev_b32 v22, 3, v2\nv_and_b32 v23, 7, v2\nv_lshlrev_b32 v23, 2, v23\nv_add_u32 v9, v21, v22\nv_lshl_add_u32 v9, v9, 5, v23')
    p('v_and_b32 v22, 3, v22\nv_add3_u32 v21, v21, v22, 8\nv_lshl_add_u32 v21, v21, 5, v23\nv_add_u32 v22, 3072, v23')
    WPI = [3, 7, 0, 4, 1, 5]
    for i in range(6):
        for u in range(3):
            p(f'v_perm_b32 v{WO+8*i+WPI[2*u]}, v{WO+8*i+4+u}, v{WO+8*i+u}, s46\nv_perm_b32 v{WO+8*i+WPI[2*u+1]}, v{WO+8*i+4+u}, v{WO+8*i+u}, s47')
    p('s_barrier')
    p(f's_lshl_b32 s42, s39, 19\ns_lshl_b32 s43, s41, 12\ns_add_u32 s42, s42, s43\ns_lshl_b32 s43, s40, 8\ns_add_u32 s42, s42, s43\ns_lshr_b32 s43, s42, 4\ns_add_u32 s42, s42, {WS_PART}\ns_add_u32 s43, s43, {WS_ML}')
    NP = opt.get('npoll', 1)
    PB = [ML, 84, 88, 92][:NP]
    p(f's_mov_b32 s58, {SPIN}\nT_re:')
    for b in PB[:-1]: p(f'buffer_load_dwordx4 {vr(b,4)}, v8, s[28:31], s43 offen sc1\ns_sleep 1')
    p('T_poll:')
    for x, b in enumerate(PB):
        p(f'buffer_load_dwordx4 {vr(PB[x-1],4)}, v8, s[28:31], s43 offen sc1\ns_waitcnt vmcnt({NP-1})\nv_cmp_ne_u32 vcc, s38, v{b+2}\ns_cbranch_vccz T_ok{x}')
    p('s_sub_u32 s58, s58, 1\ns_cbranch_scc0 T_poll\ns_branch T_pd')
    for x in range(NP-1, 0, -1):
        p(f'T_ok{x}:\nv_mov_b32 v80, v{PB[x]}\nv_mov_b32 v81, v{PB[x]+1}\ns_branch T_go')
    p(f'T_ok0:\nv_mov_b32 v80, v{ML}\nv_mov_b32 v81, v{ML+1}\nT_go:')
    ML = 80
    p.ext(stampi('fl1'))
    for j in range(8): p(f's_add_u32 s45, s42, {4*j*16384}\nbuffer_load_dwordx4 {vr(D+4*j,4)}, v3, s[28:31], s45 offen sc1')
    p(f'v_mov_b32 v13, v{ML}')
    for r in (4, 2, 1): p(f'v_max_f32_dpp v13, v13, v13 row_ror:{r} {DPP}')
    allred(p, 'v_max_f32', 13, 15)
    p(f'v_sub_f32 v{ML}, v{ML}, v13\nv_exp_f32 v{ML}, v{ML}\nds_write_b32 v20, v13 offset:32')
    p(f'v_cvt_pk_bf16_f32 v{ML+2}, v{ML}, 0\nv_lshlrev_b32 v{ML+3}, 16, v{ML+2}\nv_mul_f32 v{A+6}, v{ML+3}, v{ML+1}')
    for r in (4, 2, 1): p(f'v_add_f32_dpp v{A+6}, v{A+6}, v{A+6} row_ror:{r} {DPP}')
    for j in range(8):
        p(f'v_mov_b32_dpp v{144+2*j}, v{ML+2} row_newbcast:{j} {DPP}\nv_mov_b32_dpp v{145+2*j}, v{ML+3} row_newbcast:{j} {DPP}')
    p(f'v_mov_b32 v11, s38\nv_mov_b32 v12, s38\nv_mov_b32 v{A+7}, v{A+6}')
    for j in range(8):
        for i in range(3):
            p(f'v_dot2_f32_bf16 v{A+2*i}, v{D+4*j+i}, v{144+2*j}, {"0" if j == 0 else f"v{A+2*i}"}')
            p(f'v_dot2_f32_bf16 v{A+2*i+1}, v{D+4*j+i}, v{145+2*j}, {"0" if j == 0 else f"v{A+2*i+1}"}')
        if j % 2:
            for op, r in (('v_min3_u32', 11), ('v_max3_u32', 12)): p(f'{op} v{r}, v{r}, v{D+4*j-1}, v{D+4*j+3}')
    p(f'v_cmp_ne_u32 vcc, v11, v12\ns_cbranch_vccnz T_rt\nT_pd:\ns_nop 2')
    slow('T_rt:\ns_sub_u32 s58, s58, 1\ns_cbranch_scc0 T_re\ns_branch T_pd')
    p.ext(stampi('acc'))
    for i in range(0, 8, 2): p(f'v_permlane32_swap_b32 v{A+i}, v{A+i+1}')
    for i in range(0, 8, 2): p(f'v_add_f32 v{A+i}, v{A+i}, v{A+i+1}')
    p(f'v_permlane16_swap_b32 v{A}, v{A+2}\nv_permlane16_swap_b32 v{A+4}, v{A+6}\nv_add_f32 v{A}, v{A}, v{A+2}\nv_add_f32 v{A+4}, v{A+4}, v{A+6}')
    p(f'ds_write_b32 v18, v{A}\nds_write_b32 v19, v{A+4}\nWAITL\ns_barrier')
    p(f'ds_read_b32 v{D}, v22 offset:32\nds_read_b32 v{D+1}, v22\nds_read_b32 v{D+2}, v9\nds_read_b32 v{D+3}, v21')
    R8 = ['quad_perm:[1,0,3,2]', 'quad_perm:[2,3,0,1]', 'row_half_mirror']
    p(f'v_mov_b32 v13, v{D}')
    for r in R8: p(f'v_max_f32_dpp v13, v13, v13 {r} {DPP}')
    p(f'v_sub_f32 v{D}, v{D}, v13\nv_exp_f32 v{D}, v{D}')
    for i in range(1, 4): p(f'v_mul_f32 v{D+i}, v{D}, v{D+i}')
    for r in R8:
        for i in range(1, 4): p(f'v_add_f32_dpp v{D+i}, v{D+i}, v{D+i} {r} {DPP}')
    p(f'v_rcp_f32 v{D+1}, v{D+1}\nv_mul_f32 v{D+2}, v{D+2}, v{D+1}\nv_mul_f32 v{D+3}, v{D+3}, v{D+1}\nv_cvt_pk_bf16_f32 v15, v{D+2}, v{D+3}')
    for i in range(8): p(f'v_readlane_b32 s{4+i}, v15, {8*i}')
    for i in range(4): p(f's_pack_ll_b32_b16 s{50+i}, s{4+2*i}, s{5+2*i}')
    for i in range(2): p(f's_pack_hh_b32_b16 s{54+i}, s{4+2*i}, s{5+2*i}')
    p.ext(stampi('ctx'))
    for i in range(6):
        for u in range(6): p(f'v_dot2_f32_bf16 v{A+u}, v{WO+8*i+WPI[u]}, s{50+i}, {"0" if i == 0 else f"v{A+u}"}')
    p('v_mul_u32_u24 v11, 24, v2\ns_mul_i32 s45, s39, 1536\nv_add_u32 v11, s45, v11')
    p.ext(stampi('gemv'))
    for u in range(3): p(f'ds_write_b64 v11, {vr(A+2*u,2)} offset:{8192+8*u}')
    p('WAITL\ns_barrier')
    p('v_cmp_gt_u32 vcc, 192, v0\ns_and_saveexec_b64 s[46:47], vcc\ns_cbranch_execz K_fin')
    p('v_lshlrev_b32 v25, 3, v0')
    for z in range(8): p(f'ds_read_b64 {vr(D+2*z,2)}, v25 offset:{8192+1536*z}')
    p('s_mov_b32 s45, 0x7fc00000\nv_mov_b32 v27, s45')
    for i in range(2):
        for z in range(0, 8, 2): p(f'v_add_f32 v{D+2*z+i}, v{D+2*z+i}, v{D+2*z+2+i}')
        p(f'v_add_f32 v{D+i}, v{D+i}, v{D+4+i}\nv_add_f32 v{D+8+i}, v{D+8+i}, v{D+12+i}\nv_add_f32 v{D+i}, v{D+i}, v{D+8+i}')
        p(f'v_cmp_eq_u32 vcc, -1, v{D+i}\nv_cndmask_b32 v{D+i}, v{D+i}, v27, vcc')
    p(f's_mul_i32 s42, s57, 1536\ns_add_u32 s42, s42, {WS_XCH}')
    p(f'buffer_store_dwordx2 {vr(D,2)}, v25, s[28:31], s42 offen sc0 sc1')
    p.ext(stampi('xpub'))
    p('v_cmp_gt_u32 vcc, 48, v0\ns_and_saveexec_b64 s[46:47], vcc\ns_cbranch_execz K_fin')
    p(f's_mov_b32 s46, {WS_EPOCH}\ns_cmp_eq_u32 s57, 0\ns_cselect_b32 s45, s46, {WS_SIZE}\nv_mov_b32 v26, s38\nv_mov_b32 v28, 0')
    p(f'buffer_store_dword v26, v28, s[28:31], s45 offen')
    p(f's_mul_i32 s42, s40, 6144\ns_mul_i32 s43, s41, 384\ns_add_u32 s42, s42, s43\ns_add_u32 s42, s42, {WS_XCH}')
    p('s_add_u32 s43, s42, 3072')
    def ld2(b):
        p(f'buffer_load_dwordx2 {vr(b,2)}, v25, s[28:31], s42 offen sc1\nbuffer_load_dwordx2 {vr(b+2,2)}, v25, s[28:31], s42 offen offset:1536 sc1')
        p(f'buffer_load_dwordx2 {vr(b+4,2)}, v25, s[28:31], s43 offen sc1\nbuffer_load_dwordx2 {vr(b+6,2)}, v25, s[28:31], s43 offen offset:1536 sc1')
    def ck2(b, lab):
        p(f's_waitcnt vmcnt(4)\nv_max3_u32 v48, v{b}, v{b+1}, v{b+2}\nv_max3_u32 v48, v48, v{b+3}, v{b+4}\nv_max3_u32 v48, v48, v{b+5}, v{b+6}\nv_max_u32 v48, v48, v{b+7}\nv_cmp_eq_u32 vcc, -1, v48\ns_cbranch_vccz {lab}')
    if opt.get('hop2', 0):
        p(f's_mov_b32 s58, {SPIN}'); ld2(40); p('s_sleep 2\nT_poll2:')
        ld2(52); ck2(40, 'T_k0'); ld2(40); ck2(52, 'T_k1')
    else:
        p(f's_mov_b32 s58, {SPIN}\ns_sleep {opt.get("hopsl", 0)}\nT_poll2:'); ld2(40); p('s_waitcnt vmcnt(0)'); ck2(40, 'T_k0')
    p('s_sub_u32 s58, s58, 1\ns_cbranch_scc0 T_poll2')
    p('T_k1:\nv_add_f32 v60, v52, v54\nv_add_f32 v62, v56, v58\nv_add_f32 v61, v53, v55\nv_add_f32 v63, v57, v59\ns_branch T_k2')
    p('T_k0:\nv_add_f32 v60, v40, v42\nv_add_f32 v62, v44, v46\nv_add_f32 v61, v41, v43\nv_add_f32 v63, v45, v47\nT_k2:')
    p('v_lshlrev_b32 v48, 16, v7\nv_and_b32 v49, 0xffff0000, v7')
    p('v_add_f32 v60, v60, v62\nv_add_f32 v61, v61, v63\nv_add_f32 v60, v60, v48\nv_add_f32 v61, v61, v49\nv_cvt_pk_bf16_f32 v60, v60, v61')
    p('buffer_store_dword v60, v6, s[20:23], s44 offen')
    p('K_fin:')
    bodies = {}
    for gi, sfx in enumerate('ab'):
        for role in 'AB':
            pre, body = mkbody(plans[gi], sfx, role)
            lab = f'J_{role}{sfx}:'
            m = finalize(pre.L + [I(lab), I('s_waitcnt lgkmcnt(0)' if role == 'A' else 's_waitcnt vmcnt(0) lgkmcnt(0)'), I('s_add_u32 s38, s38, 1')] + body + ([I('s_branch T_red')] if sfx == 'a' else stampi('stored') + [I('s_branch K_fin')]))
            bodies[role+sfx] = m[[i.text for i in m].index(lab):]
    if stamps:
        p('s_waitcnt vmcnt(0)')
        p.ext(stampi('end'))
        n = len(stamps)
        order = [names.index(x) if x in names else 0 for x in stamps]
        p('s_load_dwordx2 s[10:11], s[0:1], 88\ns_waitcnt lgkmcnt(0)')
        p(f's_add_u32 s10, s10, {STAMP_OFF}\ns_addc_u32 s11, s11, 0')
        p(f's_mul_i32 s50, s2, {8*n}\ns_mov_b64 exec, 1\nv_mov_b32 v1, s50')
        p(f's_cmp_eq_u32 s39, {opt.get("stwave", 0)}\ns_cbranch_scc0 K_end')
        for i in range(n):
            p(f'v_mov_b32 v2, s{SB(order[i])}\nv_mov_b32 v3, s{SB(order[i])+1}\nglobal_store_dwordx2 v1, v[2:3], s[10:11] offset:{8*i}\ns_nop 1')
        print('stamps', n, ','.join(stamps), file=sys.stderr)
    p('K_end:\ns_endpgm')
    return head0 + h_a + h_v + h_none + h_none2 + h_B + bodies['Ba'] + bodies['Aa'] + bodies['Bb'] + bodies['Ab'] + fintail(p.L) + finalize(slow.L) + [I('CODE_END:')]

BASE = {
    'lat_slots': (0, 1), 'uslot': 2,
    'start': [('F', 0), ('L', 0, 2), ('L', 1, 3), ('F', 1)],
    **{f'lat{k}': [('L', k+3, 2+(k+3) % 4)] for k in range(9)},
    'lat0': [('L', 2, 4), ('L', 3, 5)], 'lat3': [('F', 2), ('L', 6, 4)],
    'm1': [('X', 4, 0)], 'm2': [('X', 5, 2)], 'm3': [('X', 6, 3)],
    'm4': [('X', 7, 4), ('V', 0), ('W', 4, 1)], 'm5': [('V', 1), ('V', 2), ('W', 5, 5)], 'm6': [('V', 3), ('W', 6, 0)],
    'm7': [('V', 7)], 'm8': [('V', 8), ('V', 9), ('V', 10)], 'pjv': [('V', 11)],
}
E = {'lat8': [('L', 11, 5), ('POLL',)], 'lat9': [('X', 0, 2)], 'lat10': [('CHECK',), ('A', 0, 2)], 'epi': [('A', 2, 4), ('X', 1, 3)], 'm-1': [('X', 2, 4)], 'm0': [('X', 3, 5)]}
P1 = {**BASE, **E, 'm0': [('X', 3, 5), ('TOUCHV',)], 'm3': [('X', 6, 3), ('TOUCHO',)]}
P2 = {**BASE, **E, 'lat1': [('GO',), ('L', 4, 2)], 'start': [('F', 0), ('F', 1), ('L', 0, 2), ('L', 1, 3)], 'lat3': [('L', 6, 4)], 'lat2': [('F', 2), ('L', 5, 3)], 'tsplit': (2, 3)}
PLAN = (P1, P2)

def build(fn, plan=PLAN, stamps=False, opt={}):
    hdr = open('standalone__detection_seg_mask2former__vision.s.ref').read().split('\n')
    hdr = [l for l in hdr if l.startswith(';') and '@launch' not in l and 'Override launch' not in l and 'grid=ceil' not in l]
    s = '\n'.join(hdr) + '\n'
    s += '; @launch grid=(256,1,1) block=(512,1,1) lds=163840\n'
    s += '.amdgcn_target "amdgcn-amd-amdhsa--gfx950"\n.text\n'
    s += f'.globl {KN}\n.p2align 8\n.type {KN},@function\n{KN}:\n'
    s += emit(gen(plan, stamps, opt)).replace('CODE_LIM', f'CODE_END-{KN}-8192-64')
    s += f'''.section .rodata,"a"
.p2align 6
.amdhsa_kernel {KN}
  .amdhsa_next_free_vgpr 256
  .amdhsa_next_free_sgpr 102
  .amdhsa_accum_offset {NV}
  .amdhsa_group_segment_fixed_size 0
  .amdhsa_kernarg_size 96
  .amdhsa_user_sgpr_count 2
  .amdhsa_user_sgpr_kernarg_segment_ptr 1
  .amdhsa_system_sgpr_workgroup_id_x 1
.end_amdhsa_kernel
'''
    open(fn, 'w').write(s)

ST = ['start', 'lat0', 'lat10', 'epi', 'm-1', 'm0', 'm2', 'm4', 'm7', 'm8', 'pj0', 'stored', 'fl1', 'acc', 'ctx', 'gemv', 'xpub', 'end']
if __name__ == '__main__':
    build('k5.s')
    build('k_st.s', stamps=ST)
```

```python
import re

def regs_of(tok):
    tok = tok.strip()
    tok = tok.lstrip('-')
    if tok.startswith('abs(') or tok.startswith('|'):
        tok = tok.replace('abs(', '').replace(')', '').replace('|', '')
    m = re.fullmatch(r'([vas])\[(\d+):(\d+)\]', tok)
    if m:
        return [f'{m.group(1)}{i}' for i in range(int(m.group(2)), int(m.group(3))+1)]
    if re.fullmatch(r'[vas]\d+', tok):
        return [tok]
    if tok in ('vcc',): return ['vcc']
    if tok in ('exec',): return ['exec']
    if tok == 'm0': return ['m0']
    return []

TRANS = ('v_exp_f32', 'v_log_f32', 'v_rcp_f32', 'v_rsq_f32', 'v_sqrt_f32')

class I:
    __slots__ = ('text', 'op', 'R', 'W', 'kind', 'tag', 'prio', 'idx', 'extra', 'dl')
    def __init__(self, text, R=(), W=(), tag=None, kind=None, private=False):
        self.text = text.strip()
        self.tag = tag
        self.extra = None
        t = self.text
        op = t.split()[0]
        self.op = op
        rest = t[len(op):].strip()
        rest = re.sub(r'quad_perm:\[[0-9,]*\]', 'quad_perm', rest)
        ops = [x.strip() for x in rest.split(',')] if rest else []
        mods = ''
        if ops:
            last = ops[-1].split()
            ops[-1] = last[0] if last else ''
            mods = ' '.join(last[1:])
        r, w = [], []
        k = None
        if op.startswith('v_mfma'):
            k = 'mfma'; w += regs_of(ops[0]); r += regs_of(ops[1]) + regs_of(ops[2]) + regs_of(ops[3])
            self.extra = (regs_of(ops[0]), regs_of(ops[1]) + regs_of(ops[2]), regs_of(ops[3]))
        elif op.startswith('ds_read') or op.startswith('ds_bpermute'):
            k = 'dsr'; w += regs_of(ops[0])
            for o in ops[1:]: r += regs_of(o)
        elif op.startswith('ds_'):
            k = 'dsw'
            for o in ops: r += regs_of(o)
        elif op.startswith('buffer_load') or op.startswith('global_load'):
            if 'lds' in mods.split() or '_lds_' in op:
                k = 'dma'
                for o in ops: r += regs_of(o)
                r.append('m0')
            else:
                k = 'vld'; w += regs_of(ops[0])
                for o in ops[1:]: r += regs_of(o)
        elif op.startswith('buffer_store') or op.startswith('global_store') or op.startswith('global_atomic') or op.startswith('buffer_atomic'):
            k = 'vst'
            for o in ops: r += regs_of(o)
            if op.startswith('buffer_store'): self.extra = regs_of(ops[0])
            elif op.startswith('global_store'): self.extra = regs_of(ops[1])
            if 'atomic' in op and 'sc0' in mods.split():
                k = 'vld'; w += regs_of(ops[0]); r = [x for x in r if x not in w]
        elif op.startswith('buffer_inv') or op.startswith('buffer_wbl2'):
            k = 'vst'
        elif op.startswith('v_cmp'):
            k = 'valu'; w += regs_of(ops[0])
            for o in ops[1:]: r += regs_of(o)
        elif op.startswith('v_permlane'):
            k = 'perm'; w += regs_of(ops[0]) + regs_of(ops[1]); r += regs_of(ops[0]) + regs_of(ops[1])
        elif op.startswith('v_'):
            k = 'trans' if op in TRANS else 'dot' if op.startswith('v_dot2') else 'valu'
            w += regs_of(ops[0])
            for o in ops[1:]: r += regs_of(o)
            if op.startswith('v_fmac') or op.startswith('v_dot2c') or op.startswith('v_writelane'): r += regs_of(ops[0])
            if '_co_' in op:
                w += regs_of(ops[1]);
            if 'dpp' in op or 'row_' in mods or 'quad_perm' in mods:
                k = 'dpp'; r += regs_of(ops[0])
        elif op.startswith('s_'):
            k = 'salu'
            if op in ('s_waitcnt', 's_barrier', 's_nop', 's_endpgm', 's_branch', 's_sleep', 's_setprio'):
                k = 'ctl'
            elif op.startswith('s_cbranch'):
                k = 'ctl'
                r.append('scc' if 'scc' in op else ('vcc' if 'vcc' in op else 'exec'))
            elif op.startswith('s_cmp') or op.startswith('s_bitcmp'):
                w.append('scc')
                for o in ops: r += regs_of(o)
            elif op.startswith('s_load') or op.startswith('s_memrealtime') or op.startswith('s_memtime'):
                k = 'smem'; w += regs_of(ops[0])
                for o in ops[1:]: r += regs_of(o)
            else:
                w += regs_of(ops[0])
                for o in ops[1:]: r += regs_of(o)
                if not (op.startswith('s_mov') or op.startswith('s_mul') or op.startswith('s_cselect') or op.startswith('s_getpc') or op.startswith('s_getreg')):
                    w.append('scc')
                if op.startswith('s_cselect') or op.startswith('s_addc') or op.startswith('s_subb'):
                    r.append('scc')
                if 'saveexec' in op:
                    w.append('exec'); r.append('exec')
        elif op.endswith(':'):
            k = 'label'
        elif op in ('WAITV', 'WAITL', 'FENCE'):
            k = 'mark'
        elif op == 'GHOST':
            k = 'ghost'; r.append('VM'); w.append('VM')
        elif op == 'BAR':
            k = 'bar'; w.append('EPOCH'); r.append('VM'); w.append('VM')
        else:
            k = 'other'
        if k in ('valu', 'dot', 'trans', 'perm', 'dpp', 'mfma', 'dsr', 'dsw', 'dma', 'vld', 'vst'):
            r.append('exec')
        if k in ('dma', 'vld', 'vst'):
            r.append('VM'); w.append('VM')
        if k in ('dsr', 'dsw', 'dma') and not private:
            r.append('EPOCH')
        self.R = set(r) | set(R); self.W = set(w) | set(W)
        self.kind = kind or k
    def __repr__(self): return self.text

ISSUE = {'mfma': 8, 'trans': 8, 'perm': 8}
def issue_cost(i): return ISSUE.get(i.kind, 4)

DSLAT = 130
VLDLAT = 700
DSB128 = 14
DSTR = 8
VMGAP = 64
def dep_latency(p, c, reg, typ):
    if reg == 'VM': return 4
    if typ == 'RAW':
        if p.kind == 'dsr': return DSLAT
        if p.kind == 'dsw': return 60 if reg.startswith('L:') else 4
        if p.kind == 'vld': return VLDLAT
        if p.kind == 'mfma':
            if c.kind == 'mfma' and reg in c.extra[2] and c.extra[2] == p.extra[0]: return 16
            return 44
        if c.kind == 'mfma' and p.kind in ('valu', 'trans', 'perm', 'dpp'): return issue_cost(p)+8
        if p.kind == 'dot' and c.kind != 'dot': return 16
        if p.kind == 'trans': return 12
        if c.kind in ('perm', 'dpp'): return issue_cost(p)+8
        if reg in ('vcc',) or reg.startswith('s'):
            if p.kind == 'valu' and c.kind in ('valu',): return 12
        return issue_cost(p)
    if typ == 'WAW':
        if p.kind == 'mfma' and c.kind != 'mfma': return 44
        if p.kind == 'dsr': return DSLAT
        return issue_cost(p)
    if p.kind == 'mfma' and c.kind in ('valu', 'trans', 'perm', 'dpp') and reg in p.extra[2]: return 20
    return issue_cost(p)

DSBASE = 50
BARCOST = 40
def ds_service(i):
    if i.kind == 'dsr': return SVB if 'b128' in i.op else 2*SVB if 'read2_b64' in i.op else SVT
    return SVW if 'b128' in i.op else 25 if ('b64' in i.op or 'write2' in i.op) else 16
def schedule(insts, verbose=False):
    n = len(insts)
    preds = [dict() for _ in range(n)]
    lastw = {}; readers = {}
    def add(j, p, lat, comp):
        o = preds[j].get(p, (0, False))
        preds[j][p] = (max(o[0], lat), o[1] or comp)
    for j, c in enumerate(insts):
        for r in c.R:
            if r in lastw:
                p = lastw[r]; pi = insts[p]
                if r == 'EPOCH': add(j, p, BARCOST, False)
                elif r == 'VM': add(j, p, VMGAP if (c.kind in ('dma', 'vld', 'vst') and pi.kind in ('dma', 'vld', 'vst')) else 4, False)
                else: add(j, p, dep_latency(pi, c, r, 'RAW'), pi.kind in ('dsr', 'dsw'))
        for r in c.W:
            if r in lastw:
                p = lastw[r]
                if p != j: add(j, p, 4 if r in ('VM', 'EPOCH') else dep_latency(insts[p], c, r, 'WAW'), insts[p].kind == 'dsr' and r not in ('VM', 'EPOCH'))
            for p in readers.get(r, ()):
                if p != j:
                    if r == 'EPOCH': add(j, p, DSLAT if insts[p].kind in ('dsr', 'dsw') else 4, insts[p].kind in ('dsr', 'dsw'))
                    else: add(j, p, dep_latency(insts[p], c, r, 'WAR'), False)
        for r in c.R: readers.setdefault(r, []).append(j)
        for r in c.W:
            lastw[r] = j; readers[r] = []
    succs = [[] for _ in range(n)]
    for j in range(n):
        for p, (l, comp) in preds[j].items(): succs[p].append((j, l, comp))
    cp = [0]*n
    for j in range(n-1, -1, -1):
        cp[j] = max([l + cp[s] for s, l, _ in succs[j]] + [issue_cost(insts[j])])
        if getattr(insts[j], 'prio', None): cp[j] += insts[j].prio
    if any(getattr(i, 'dl', None) is not None for i in insts):
        dl = [0]*n; last = 0
        for j in range(n):
            if getattr(insts[j], 'dl', None) is not None: last = insts[j].dl
            dl[j] = last
        for j in range(n-1, -1, -1):
            for sj, l, comp in succs[j]:
                if insts[sj].kind == 'bar' or insts[j].kind == 'bar': continue
                dl[j] = min(dl[j], dl[sj] - (PREF if comp else min(l, 60)))
        cp = [-x for x in dl]
        if BARLAST:
            prev = 0
            for j in range(n):
                if insts[j].kind == 'bar':
                    for p in range(prev, j):
                        if dl[p] < dl[j] and p not in preds[j]:
                            preds[j][p] = (4, False); succs[p].append((j, 4, False))
                    prev = max(0, j - 400)
    npred = [len(preds[j]) for j in range(n)]
    ready_t = [0]*n
    avail = [j for j in range(n) if npred[j] == 0]
    t = 0; mf_free = 0; out = []
    lds_done = 0; vm_free = 0; valu_done = 0; dot_done = 0
    last_mfma = False
    marks = []
    while avail:
        def start(j):
            s = max(t, ready_t[j])
            k = insts[j].kind
            if k == 'mfma': s = max(s, mf_free, dot_done)
            if k == 'dot': s = max(s, mf_free + 4)
            if k in ('dsr', 'dsw'): s = max(s, lds_done - DSBASE - QMAX)
            if k in ('dma', 'vld', 'vst'): s = max(s, vm_free)
            if k in ('dsr', 'dsw', 'dma', 'vld', 'vst'): s = max(s, valu_done)
            return s
        now = [j for j in avail if start(j) <= t + 3]
        if now:
            sal = [j for j in now if insts[j].kind in ('salu', 'ctl')]
            mem = [j for j in now if insts[j].kind in ('dsr', 'dsw', 'dma', 'vld', 'vst')]
            if mem and MEMFIRST: best = max(mem, key=lambda j: (cp[j], -j));
            if mem and MEMFIRST and not (sal and last_mfma) and cp[best] + MEMB >= max(cp[j] for j in now): pass
            elif sal and last_mfma: best = max(sal, key=lambda j: (cp[j], -j))
            else: best = max(now, key=lambda j: (cp[j] + (MFBONUS if insts[j].kind == 'mfma' else 0), -j))
        else:
            best = min(avail, key=lambda j: (start(j), -cp[j], j))
        if now and insts[best].kind in ('valu', 'dot', 'trans', 'dpp', 'perm'):
            od = [j for j in avail if insts[j].kind in ('dsr', 'dsw') and t + 3 < start(j) <= t + 8 and cp[j] >= cp[best] + OVERDUE]
            if od: best = max(od, key=lambda j: (cp[j], -j))
        s = start(best)
        i = insts[best]
        out.append(i); avail.remove(best); i.idx = s
        cost = issue_cost(i)
        if i.kind in ('salu', 'ctl', 'mark') and last_mfma: cost = 0
        if i.kind == 'ghost': cost = 0
        if i.op.startswith('s_cbranch'): cost = 6 if last_mfma else BRC
        if i.kind == 'bar': cost = 12; marks.append(s)
        t = s + cost
        done = None
        if i.kind == 'mfma': mf_free = s + 16
        if i.kind in ('dsr', 'dsw'):
            lds_done = max(s + DSBASE, lds_done) + ds_service(i); done = lds_done
        if i.kind in ('dma', 'vld', 'vst'): vm_free = s + VMGAP
        if i.kind in ('valu', 'dot', 'trans', 'perm', 'dpp'): valu_done = t + 8
        if i.kind == 'dot': dot_done = t + 8
        last_mfma = (i.kind == 'mfma')
        for sj, l, comp in succs[best]:
            ready_t[sj] = max(ready_t[sj], (done + 4) if (comp and done) else s + l)
            npred[sj] -= 1
            if npred[sj] == 0: avail.append(sj)
    assert len(out) == n
    if verbose:
        import sys; print('bar times', [b-a for a, b in zip([0]+marks, marks+[t])], 'total', t, file=sys.stderr)
    return out, t
QMAX = 10
BARLAST = True
OVERDUE = 60
PREF = 110
SVW = 62
BRC = 15
SVB = 18
SVT = 10
MEMFIRST = True
MEMB = 10000
MFBONUS = 0

BULK = True
SAFE = 100
def insert_waits(insts):
    out = []
    ds = []
    vm = []
    t = 0; mf = 0; ghosts = {}; allvm = []
    for i in insts:
        needl = None; needv = None
        touch = i.R | i.W
        for k, d in enumerate(ds):
            if d[0] & touch: needl = len(ds)-1-k
        for k, (d, tag) in enumerate(vm):
            if d & (i.R if i.kind == 'vld' else touch): needv = len(vm)-1-k
        if needv is not None and BULK:
            k = len(vm)-1-needv
            if vm[k][1] and vm[k][1][0] == 'V':
                while k+1 < len(vm) and vm[k+1][1] == vm[k][1]: k += 1
                needv = len(vm)-1-k
        if i.op == 'WAITL':
            if ds: needl = 0
        if i.op == 'BAR':
            for k, d in enumerate(ds):
                if d[3]: needl = len(ds)-1-k
            tags = i.text.split()[1:]
            for k, (d, tag) in enumerate(vm):
                if tag in tags or 'ALL' in tags: needv = len(vm)-1-k
            for tg in tags:
                if tg in ghosts:
                    n = len(allvm) - ghosts.pop(tg)
                    if n <= len(vm) or True: needv = n if needv is None else min(needv, n); forced = True
        if i.op == 'WAITV':
            tags = i.text.split()[1:]
            for k, (d, tag) in enumerate(vm):
                if tag in tags or 'ALL' in tags: needv = len(vm)-1-k
        if needl is not None and needv is None and i.kind not in ('mark', 'bar'):
            j = len(out)-1; nds = 0; steps = 0
            while j >= 0 and out[j].kind in ('valu', 'dot', 'trans', 'dsr', 'dsw', 'dma', 'vld', 'salu') and steps < 7:
                if out[j].kind in ('dsr', 'dsw'): nds += 1
                j -= 1; steps += 1
            need_el = ds[len(ds)-1-needl]
            if j >= 0 and out[j].kind == 'mfma' and steps > 0 and needl - nds >= 0 and need_el[2] < j and t - 4*steps - need_el[1] >= SAFE - 30:
                k = len(ds)-1-needl
                while k+1 < len(ds)-nds and t - 4*steps - ds[k+1][1] >= SAFE: k += 1
                n2 = len(ds)-1-k
                out.insert(j+1, I(f's_waitcnt lgkmcnt({min(n2-nds,15)})'))
                ds = [(a, b, c+1 if c > j else c, e) for a, b, c, e in ds[k+1:]]
                needl = None
        if needl is not None:
            k = len(ds)-1-needl
            while k+1 < len(ds) and t - ds[k+1][1] >= SAFE: k += 1
            needl = len(ds)-1-k
            t = max(t, ds[k][1] + DSLAT - 30)
        parts = []
        if needv is not None:
            parts.append(f'vmcnt({min(needv,63)})'); vm = (vm[max(len(vm)-needv, 0):] if needv else [])
        if needl is not None:
            parts.append(f'lgkmcnt({min(needl,15)})'); ds = ds[len(ds)-needl:] if needl else []
        if parts:
            if out and out[-1].op == 's_waitcnt' and getattr(out[-1], 'tag', None) == 'auto' and not any(x.split('(')[0] in out[-1].text for x in parts):
                out[-1] = I(out[-1].text + ' ' + ' '.join(parts), tag='auto')
            else:
                out.append(I('s_waitcnt ' + ' '.join(parts), tag='auto')); t += 4
        if i.kind == 'mark': continue
        if i.kind == 'ghost':
            ghosts[i.tag] = len(allvm); continue
        if i.kind == 'bar':
            if i.tag: out += i.tag
            out.append(I('s_barrier')); t += 30
            if i.extra: out += i.extra
            continue
        if i.op == 's_waitcnt':
            m = re.search(r'vmcnt\((\d+)\)', i.text)
            if m: nn = int(m.group(1)); vm = vm[len(vm)-nn:] if nn and nn < len(vm) else ([] if nn == 0 else vm)
            m = re.search(r'lgkmcnt\((\d+)\)', i.text)
            if m: nn = int(m.group(1)); ds = ds[len(ds)-nn:] if nn and nn < len(ds) else ([] if nn == 0 else ds)
        out.append(i)
        if i.kind == 'mfma':
            t = max(t, mf); mf = t + 16
        if i.kind == 'dsr': ds.append(({r for r in i.W if not r.startswith('L:')}, t, len(out)-1, 'EPOCH' in i.R))
        elif i.kind == 'dsw': ds.append((set(), t, len(out)-1, 'EPOCH' in i.R or i.tag == 'must'))
        elif i.kind == 'vld': vm.append(({r for r in i.W if r != 'VM'}, i.tag)); allvm.append(1)
        elif i.kind in ('dma', 'vst'): vm.append((set(), i.tag)); allvm.append(1)
        t += issue_cost(i)
    return out

VALUK = ('valu', 'dot', 'trans', 'perm', 'dpp')
def insert_hazards(insts):
    out = []
    def states_since(pred):
        d = 0
        for p in reversed(out):
            if p.kind == 'label' and not p.text.startswith('C_'):
                return
            if p.kind == 'label': continue
            yield d, p
            d += (int(p.text.split()[1])+1) if p.op == 's_nop' else 1
            if d > 24: return
    for c in insts:
        need = 0
        if c.kind not in ('label', 'other'):
            for d, p in states_since(None):
                req = 0
                vw = {r for r in p.W if r[0] in 'va' and r not in ('vcc',) and r != 'VM'}
                if p.kind in VALUK:
                    if c.kind == 'mfma' and vw & c.R: req = max(req, 2)
                    if c.kind in ('perm', 'dpp') and vw & c.R: req = max(req, 2)
                    if c.op.startswith('v_readlane') or c.op.startswith('v_readfirstlane'):
                        if vw & c.R: req = max(req, 1)
                    if p.kind == 'trans' and c.kind in ('valu', 'perm', 'dpp') and vw & c.R: req = max(req, 1)
                    sw = {r for r in p.W if r[0] == 's' or r == 'vcc'} - {'scc'}
                    if sw & c.R:
                        if c.kind in VALUK: req = max(req, 2)
                        if c.kind in ('dma', 'vld', 'vst'): req = max(req, 5)
                        if c.kind in ('salu', 'ctl', 'smem'): req = max(req, 1)
                    if 'exec' in p.W:
                        req = max(req, 5)
                if p.kind == 'dot' and c.kind != 'dot' and vw & (c.R | c.W): req = max(req, 3)
                if p.kind == 'mfma':
                    D = set(p.extra[0])
                    if c.kind == 'mfma':
                        if D & set(c.extra[1]): req = max(req, 8)
                        if D & set(c.extra[2]) and c.extra[2] != p.extra[0]: req = max(req, 6)
                        if D & set(c.extra[0]) and c.extra[2] != p.extra[0]: req = max(req, 6)
                    elif c.kind in VALUK + ('dsr', 'dsw', 'dma', 'vld', 'vst'):
                        if D & (c.R | c.W): req = max(req, 8)
                    if c.kind in VALUK + ('dsr', 'vld') and set(p.extra[2]) & c.W: req = max(req, 3)
                if p.kind == 'salu' and 'm0' in p.W and c.kind == 'dma': req = max(req, 1)
                if p.kind == 'vst' and p.extra and len(p.extra) >= 3 and set(p.extra) & c.W: req = max(req, 2)
                if req - d > need: need = req - d
        while need > 0:
            k = min(need, 16)
            out.append(I(f's_nop {k-1}')); need -= k
        out.append(c)
    return out

def finalize(insts):
    return insert_hazards(insert_waits(insts))

def emit(insts):
    return '\n'.join(i.text for i in insts) + '\n'
```

```python
import sys, math, struct
import asmlib
from asmlib import *

KN = 'standalone__detection_seg_mask2former__vision_kernel'
WS_A = 0
WS_EPOCH = 0xD000
WS_VT = 65536
WS_HF = 0x58000
WS_XCH = 0x60000
WS_PART = 0x80000
WS_ML = WS_PART + 256*16384
WS_SIZE = WS_ML + 256*1024
STAMP_OFF = 128 << 20
SLOT = 24576
STAT = 147456; PXB = STAT+2560; PLB = PXB+8192; XA = PLB+4096; FLG = XA+512
LOG2E = 1.4426950408889634
def f2u(x): return struct.unpack('<I', struct.pack('<f', x))[0]
THR = 2.0**30
SPIN = 1 << 20
STAMPOP = 's_memrealtime'
HEADST = False
NV = 160
DPP = 'row_mask:0xf bank_mask:0xf'
def SB(k): return [60, 62, 100, 66, 68, 70, 78, 82, 84, 86, 64, 72, 74, 76, 80, 88, 90, 92][k] if HEADST else 60+2*k

class Prog:
    def __init__(self): self.L = []
    def __call__(self, t, **kw):
        r = []
        for line in t.split('\n'):
            if line.strip():
                i = I(line, **kw); self.L.append(i); r.append(i)
        return r[-1]
    def ext(self, l): self.L += l
def vr(b, n=1): return f'v{b}' if n == 1 else f'v[{b}:{b+n-1}]'
def ar(b, n=1): return f'a{b}' if n == 1 else f'a[{b}:{b+n-1}]'
def mfma(d, a, b, c): return f'v_mfma_f32_16x16x32_bf16 {d}, {a}, {b}, {c}'
def srd(p, s, lo, size):
    p(f's_mov_b32 s{s}, s{lo}\ns_mov_b32 s{s+1}, s{lo+1}\ns_mov_b32 s{s+2}, {size}\ns_mov_b32 s{s+3}, 0x20000')
def allred(z, op, a, t):
    z(f'v_mov_b32 v{t}, v{a}\nv_permlane32_swap_b32 v{a}, v{t}\n{op} v{a}, v{a}, v{t}')
    z(f'v_mov_b32 v{t}, v{a}\nv_permlane16_swap_b32 v{a}, v{t}\n{op} v{a}, v{a}, v{t}')

def fintail(L):
    out = []; cur = []
    for i in L:
        if i.kind == 'label' and (i.text.startswith('T_ok') or i.text.startswith('T_k')) and i.text != 'T_k2:':
            out += finalize(cur); cur = []
        cur.append(i)
    return out + finalize(cur)
def gen(plans, stamps=False, opt={}):
    VL = 1
    DX = 2; Q = 8; SR = 12; PXW = 13; PA = 14; NM = 15; LS = 16; SA = 17; AL = 18; HA = 19; YS = 20
    T = 28; SACC = [36, 44]; SLO = [52, 56]; PK = 60; PKL = 64; PL = 68; PE = 76; RS = 84; VF = 92
    DL = SACC[0]
    AA = 0; XF = 48; NXF = 5; VA = 68; JUNK = 92
    CT = SACC[0]
    def frs(kind, b, n=6): return [(kind, b+4*i) for i in range(n)]
    VLOC = [frs('v', VF), frs('v', VF+24), frs('a', VA), frs('v', VF+48, 5)+frs('a', VA+24, 1),
            frs('a', 0), frs('a', 24), frs('a', XF, 5)+frs('v', YS, 1), frs('v', PL), None, None, None, frs('v', VF)]
    XRL = [frs('v', VF), frs('v', VF+24), frs('a', VA), frs('v', PL)]
    def rg(f): return (ar if f[0] == 'a' else vr)(f[1], 4)
    P = 8; QB = 14; RT = 15; TB = 16; PX = 20; SW = 21; FL = 22; S2 = 24; S1 = 32; Y2 = [40, 52]; U = 64
    LT = S2; Q0 = 44; LH = 48; LW_ = 52
    ONES = 0; XB = 4; NXB = 7; TR = 4; NTR = 7; PF = 32; LTF = 48; AF = [48, 72]; BF = [16, 32]
    names = []
    def stampi(name):
        if stamps and name in stamps:
            if name not in names: names.append(name)
            k = names.index(name); assert k < 20
            return [I(f'{STAMPOP} s[{SB(k)}:{SB(k)+1}]')]
        return []
    DG = T+4
    def dma(q, kind, n, slot=None):
        if kind == 'F':
            q(f's_add_u32 s49, s25, {256*n}\ns_add_u32 m0, s45, {16384*n}')
            for i in range(4): q(f'buffer_load_dwordx4 v{DG+i}, s[16:19], s49 offen offset:{1024*i} nt lds', tag=f'F{n}')
            return
        srdn, base, off, fl, vo = {'F': (16, 's25', n*SLOT, ' nt', DL), 'L': (20, 's24', n*SLOT, '', DL),
                                   'X': (12, 's26', (n % 2)*196608 + (n//2)*SLOT, ' nt', DX)}[kind]
        q(f's_add_u32 s49, {base}, {off}')
        q(f's_add_u32 m0, s24, {slot*SLOT}')
        for i in range(6):
            if i == 4: q(f's_add_u32 m0, s24, {slot*SLOT+4096}')
            q(f'buffer_load_dwordx4 v{vo+i}, s[{srdn}:{srdn+3}], s49 offen offset:{1024*(i%4)}{fl} lds', tag=f'{kind}{n}')
    def loadV(q, bk, slot=None):
        q(f's_add_u32 s52, s27, {6144*(3*(bk % 4)+bk//4)}')
        if slot is not None: q(f's_add_u32 m0, s24, {slot*SLOT}')
        for dt in range(6):
            if dt == 4:
                q('s_add_u32 s52, s52, 4096')
                if slot is not None: q(f's_add_u32 m0, s24, {slot*SLOT+4096}')
            if slot is not None: q(f'buffer_load_dwordx4 v{VL}, s[28:31], s52 offen offset:{1024*(dt%4)} sc1 lds', tag=f'W{bk}')
            else: q(f'buffer_load_dwordx4 {rg(VLOC[bk][dt])}, v{VL}, s[28:31], s52 offen offset:{1024*(dt%4)} sc1', tag=f'V{bk}')
    slow = Prog()
    HA0 = HA
    X0 = 64; WM = X0+8; D1 = X0+32; WF = X0+56; MF = X0+68; D2 = X0+80; KF = 44; QF = 72
    def issue0(q, name, prio, plan, sfx, role='A'):
        n0 = len(q.L)
        for it in plan.get(name, []):
            k = it[0]
            who = 'B' if (name.startswith('m') and name != 'm-1' and k in ('X', 'W', 'TOUCHV', 'TOUCHO') and not opt.get('dmaA')) else 'A'
            if who != role: continue
            HA = 23 if role == 'B' else (AL if k.startswith('TOUCH') else HA0)
            if k == 'A':
                q('s_mul_i32 s50, s3, 12288')
                for a_ in range(*(it[1:] or (0, 4))):
                    q(f's_xor_b32 s51, s3, {a_}\ns_lshl_b32 s51, s51, 10\ns_add_u32 s51, s51, s50')
                    for G in range(3):
                        if G: q('s_add_u32 s51, s51, 4096')
                        q(f'buffer_load_dwordx4 {ar(AA+4*(3*a_+G),4)}, v{VL}, s[28:31], s51 offen sc1', tag='A')
            elif k == 'V': loadV(q, it[1])
            elif k == 'W': loadV(q, it[1], it[2])
            elif k == 'XR':
                q(f's_add_u32 s49, s26, {(it[1] % 2)*196608 + (it[1]//2)*SLOT}')
                for i in range(6): q(f'buffer_load_dwordx4 {rg(XRL[it[2]][i])}, v{DX+i}, s[12:15], s49 offen offset:{1024*(i%4)} nt', tag=f'R{it[1]}')
            elif k == 'XW':
                q(f's_add_u32 s50, s24, {it[2]*SLOT}\nv_add_u32 v{T+2}, s50, v{VL}')
                for i in range(6): q(f'ds_write_b128 v{T+2}, {rg(XRL[it[3]][i])} offset:{1024*i}')
            elif k == 'POLL': q(f'buffer_load_dword v{HA}, v{PA}, s[28:31], 0 offen sc1')
            elif k == 'CHECK':
                q(f'v_cmp_ne_u32 vcc, s38, v{HA}')
                br = q(f's_cbranch_vccnz POLL{sfx}', R=['VM', f'v{HA}', f'v{PA}'], W=['VM', f'v{HA}', 's58', 'scc', 'vcc'])
                br.text += f'\nC_POLL{sfx}:'
                slow(f'POLL{sfx}:\ns_mov_b32 s58, {SPIN}\nPOLL1{sfx}:\ns_sleep 6\nbuffer_load_dword v{HA}, v{PA}, s[28:31], 0 offen sc1\ns_sub_u32 s58, s58, 1\ns_cbranch_scc1 C_POLL{sfx}\ns_waitcnt vmcnt(0)\nv_cmp_ne_u32 vcc, s38, v{HA}\ns_cbranch_vccnz POLL1{sfx}\ns_branch C_POLL{sfx}')
            elif k == 'PUB':
                q('s_cmp_eq_u32 s96, 0')
                tt = [f'v{x}' for x in range(X0, 160)]
                br = q('s_cbranch_scc0 PUBA', R=['VM', 'EPOCH']+tt, W=['VM', 's50', 's51', 'scc']+tt)
                br.text += '\nC_PUBA:'
                z = Prog(); z('PUBA:')
                for w in range(4): z(f'ds_read_b128 {vr(D1+4*w,4)}, v{X0+3} offset:{3072*w}')
                for r in range(4): z(f'v_add_f32 v{D1+r}, v{D1+r}, v{D1+4+r}\nv_add_f32 v{D1+8+r}, v{D1+8+r}, v{D1+12+r}\nv_add_f32 v{D1+r}, v{D1+r}, v{D1+8+r}')
                z(f'v_cvt_pk_bf16_f32 v{D1}, v{D1}, v{D1+1}\nv_cvt_pk_bf16_f32 v{D1+1}, v{D1+2}, v{D1+3}')
                z('s_mul_i32 s50, s40, 12288\ns_lshl_b32 s51, s41, 9\ns_add_u32 s50, s50, s51')
                z(f'buffer_store_dwordx2 {vr(D1,2)}, v{X0+6}, s[28:31], s50 offen sc0 sc1')
                z.ext(stampi('a_pub')); z('s_branch C_PUBA'); slow.ext(z.L)
            elif k == 'GO':
                q(f'v_mov_b32 v{T}, 0\nv_mov_b32 v{T+1}, s38')
                if len(it) > 2: q(f's_waitcnt vmcnt({it[2]})', R=['VM'], W=['VM'])
                q(f's_mov_b64 exec, 1\nbuffer_store_dword v{T+1}, v{T}, s[28:31], s{it[1]} offen sc0 sc1\ns_mov_b64 exec, -1')
            elif k == 'TOUCHV':
                q(f's_add_u32 s52, s43, {WS_VT}\nv_min_u32 v{HA}, 35, v0\nv_lshlrev_b32 v{HA}, 7, v{HA}')
                q(f'buffer_load_dword v{HA}, v{HA}, s[28:31], s52 offen', tag='pre')
            elif k == 'TOUCHP':
                q(f's_lshl_b32 s52, s2, 14\ns_lshl_b32 s50, s3, 12\ns_add_u32 s52, s52, s50\ns_lshr_b32 s50, s52, 4\ns_sub_u32 s50, s50, s52\ns_add_u32 s50, s50, {WS_ML-WS_PART-4096}\ns_add_u32 s52, s52, {WS_PART}')
                q(f'v_min_u32 v{YS}, 33, v0\nv_lshlrev_b32 v{YS}, 7, v{YS}\nv_add_u32 v{YS+1}, s50, v{YS}\nv_cmp_lt_u32 vcc, 31, v0\nv_cndmask_b32 v{YS}, v{YS}, v{YS+1}, vcc')
                q(f'buffer_load_dword v{YS}, v{YS}, s[28:31], s52 offen {it[1]}', tag='pre')
            elif k == 'TOUCHO':
                if role == 'A': HA = NM
                q(f'v_min_u32 v{HA}, 35, v0\nv_lshl_add_u32 v{HA}, v{HA}, 7, s43')
                q(f'global_load_dword v{HA}, v{HA}, s[10:11]', tag='pre')
            else: dma(q, *it)
        if prio:
            for i in q.L[n0:]: i.prio = prio

    p = Prog()
    p('s_getpc_b64 s[40:41]')
    p('s_load_dwordx16 s[64:79], s[0:1], 0\ns_load_dwordx8 s[80:87], s[0:1], 64')
    p(f's_lshr_b32 s42, s2, 3\ns_and_b32 s43, s42, 15\ns_lshl_b32 s43, s43, 13\ns_min_u32 s43, s43, CODE_LIM')
    p(f'v_lshl_add_u32 v28, v0, 4, s43')
    p(f'global_load_dwordx4 {ar(JUNK,4)}, v28, s[40:41]', tag='pre')
    p('s_cmp_ge_u32 s2, 256\ns_cbranch_scc1 K_end')
    p.ext(stampi('start'))
    p('v_lshrrev_b32 v2, 6, v0\nv_and_b32 v0, 63, v0')
    p('v_readfirstlane_b32 s39, v2')
    p(f'v_lshlrev_b32 v{VL}, 4, v0')
    m_, g_, F_, t_, r_, b_ = 56, 57, 58, 59, 60, 61
    p(f'v_and_b32 v{m_}, 15, v0\nv_lshrrev_b32 v{g_}, 4, v0')
    p('s_and_b32 s3, s39, 3\ns_movk_i32 s48, 768\ns_mul_i32 s24, s3, 6144')
    p('s_lshr_b32 s57, s2, 4\ns_lshl_b32 s57, s57, 3\ns_and_b32 s44, s2, 7\ns_or_b32 s57, s57, s44')
    p('s_and_b32 s45, s3, 1\ns_mul_i32 s46, s45, 9\ns_movk_i32 s47, 1366')
    for i in range(3):
        t0, t1, t2 = T+1, T+2, T+3
        p(f'v_add_u32 v{t0}, {64*i}, v0' if i else f'v_mov_b32 v{t0}, v0')
        p(f'v_mul_u32_u24 v{t1}, s47, v{t0}\nv_lshrrev_b32 v{t1}, 16, v{t1}')
        p(f'v_mul_u32_u24 v{t2}, 48, v{t1}\nv_sub_u32 v{t0}, v{t0}, v{t2}')
        p(f'v_lshlrev_b32 v{t2}, 1, v{t1}\nv_xor_b32 v{t2}, s46, v{t2}\nv_xor_b32 v{t0}, v{t0}, v{t2}')
        p(f'v_lshlrev_b32 v{t0}, 4, v{t0}\nv_mul_u32_u24 v{t1}, s48, v{t1}\nv_add_u32 v{t0}, v{t0}, v{t1}')
        p(f'v_subrev_u32 v{DL+i}, {1024*i}, v{t0}' if i else f'v_mov_b32 v{DL+i}, v{t0}')
        p(f'v_add_u32 v{DX+i}, v{t1}, v{DL+i}')
        p(f'v_xor_b32 v{t0}, 128, v{t0}\nv_add_u32 v{DL+i+3}, {3072-1024*((i+3)%4)}, v{t0}\nv_add3_u32 v{DX+i+3}, v{t1}, v{DL+i+3}, s48')
        p(f'v_add_u32 v{DX+i+3}, 2304, v{DX+i+3}')
    for i in range(4):
        p(f'v_add_u32 v{F_}, {4*(i&1)}, v{g_}\nv_lshlrev_b32 v{F_}, 1, v{F_}' if i & 1 else f'v_lshlrev_b32 v{F_}, 1, v{g_}')
        if i >= 2: p(f'v_xor_b32 v{F_}, 9, v{F_}')
        p(f'v_xor_b32 v{F_}, v{F_}, v{m_}\nv_lshlrev_b32 v{F_}, 4, v{F_}\nv_mad_u32_u24 v{DG+i}, v{g_}, s48, v{F_}')
        if i: p(f'v_add_u32 v{DG+i}, {2048*i}, v{DG+i}')
    p('s_mul_i32 s25, s2, 49152\ns_lshl_b32 s44, s24, 1\ns_add_u32 s25, s25, s44')
    p('s_lshr_b32 s26, s2, 1\ns_mul_i32 s26, s26, 393216\ns_and_b32 s27, s2, 1\ns_mul_i32 s27, s27, 98304\ns_add_u32 s26, s26, s27')
    p('s_mul_i32 s27, s45, 12288\ns_add_u32 s26, s26, s27\ns_lshr_b32 s27, s3, 1\ns_mul_i32 s27, s27, 768\ns_add_u32 s26, s26, s27')
    p(f's_mul_i32 s27, s3, 73728\ns_add_u32 s27, s27, {WS_VT}\ns_lshl_b32 s45, s3, 12')
    p('s_lshr_b32 s43, s2, 4\ns_lshl_b32 s43, s43, 2\ns_add_u32 s43, s43, s3\ns_mul_i32 s43, s43, 4608')
    p('s_waitcnt lgkmcnt(0)')
    srd(p, 12, 66, 50331648); srd(p, 16, 68, 12582912); srd(p, 20, 70, 294912); srd(p, 28, 86, WS_SIZE)
    p(f's_load_dword s38, s[86:87], {WS_EPOCH}\ns_mov_b32 s10, s78\ns_mov_b32 s11, s79')
    p.ext(stampi('karg'))
    p('s_cmp_ge_u32 s39, 4\ns_cbranch_scc1 H_B')
    p(f's_mov_b32 s97, {WS_SIZE}\ns_mov_b32 s96, {WS_SIZE}\ns_bitcmp1_b32 s2, 3\ns_cbranch_scc0 H_none')
    p('s_cmp_ge_u32 s57, 120\ns_cbranch_scc1 H_none2\ns_cmp_ge_u32 s57, 96\ns_cbranch_scc1 H_v')
    head0 = finalize(p.L)
    def fswz(p, dst, m):
        p(f'v_lshrrev_b32 v{t_}, 3, v{m}\nv_mul_u32_u24 v{t_}, 9, v{t_}\nv_and_b32 v{dst}, 7, v{m}\nv_lshlrev_b32 v{dst}, 1, v{dst}\nv_xor_b32 v{dst}, v{dst}, v{t_}')
    def setupA(p):
        fswz(p, F_, m_)
        p(f'v_xor_b32 v{t_}, v{g_}, v{F_}\nv_lshlrev_b32 v{t_}, 4, v{t_}\nv_mad_u32_u24 v{Q}, v{m_}, s48, v{t_}\ns_lshl_b32 s50, s3, 6\nv_xor_b32 v{Q}, s50, v{Q}')
        for a_ in range(1, 4): p(f'v_xor_b32 v{Q+a_}, {64*a_}, v{Q}')
        p(f'v_and_b32 v{t_}, 3, v0\nv_lshl_add_u32 v{t_}, v{g_}, 2, v{t_}\nv_mul_u32_u24 v{AL}, 80, v{t_}\nv_bfe_u32 v{t_}, v0, 2, 1\nv_lshl_add_u32 v{SR}, v{t_}, 3, v{AL}\nv_add_u32 v{SR}, {STAT}, v{SR}')
        p(f's_lshl_b32 s50, s3, 10\ns_add_u32 s50, s50, {PXB}\nv_add_u32 v{PXW}, s50, v{VL}\nv_mov_b32 v{LS}, 0')
        p(f's_lshl_b32 s50, s3, 12\ns_add_u32 s50, s50, {WS_HF}\nv_min_u32 v{PA}, 29, v0\nv_lshl_add_u32 v{PA}, v{PA}, 7, s50')
        p(f's_mov_b32 s53, {f2u(1/384):#x}\ns_mov_b32 s54, {f2u(1e-5):#x}\ns_mov_b32 s55, {f2u(THR):#x}')
        if opt.get('prioA'): p(f's_setprio {opt["prioA"]}')
    def start(p, plan, a, b):
        for it in plan['start'][a:b]: dma(p, *it)
    p = Prog(); p('H_B:')
    fswz(p, F_, m_)
    p(f'v_xor_b32 v{t_}, v{g_}, v{F_}\nv_lshlrev_b32 v{t_}, 4, v{t_}\nv_mad_u32_u24 v{QB}, v{m_}, s48, v{t_}\ns_lshl_b32 s50, s3, 6\nv_xor_b32 v{QB}, s50, v{QB}\nv_lshl_add_u32 v{Q0}, v{m_}, 8, v{t_}')
    for a_ in range(1, 4): p(f'v_xor_b32 v{Q0+a_}, {64*a_}, v{Q0}')
    p(f'v_and_b32 v{t_}, 1, v{g_}\nv_lshlrev_b32 v{t_}, 3, v{t_}\nv_mad_u32_u24 v{LH}, v{m_}, s48, v{t_}\nv_mov_b32 v{LH+1}, v{F_}\nv_lshrrev_b32 v{LH+2}, 1, v{g_}')
    p(f'v_lshrrev_b32 v{t_}, 2, v{m_}\nv_cmp_eq_u32 vcc, v{t_}, v{g_}')
    p(f's_lshl_b32 s50, s3, 4\nv_mov_b32 v{t_}, s50\nv_cndmask_b32 v{t_}, 64, v{t_}, vcc\nv_mul_u32_u24 v{SW}, 80, v{m_}\nv_add_u32 v{SW}, v{SW}, v{t_}\nv_add_u32 v{SW}, {STAT}, v{SW}')
    p(f'v_add_u32 v{PX}, {PXB}, v{VL}')
    p(f'v_mov_b32 v{FL}, {FLG}\nv_and_b32 v{t_}, 3, v0')
    for j in range(1, 4): p(f'v_cmp_eq_u32 s[{30+2*j}:{31+2*j}], {j}, v{t_}')
    p(f'v_bfe_u32 v{b_}, v0, 1, 1\nv_and_b32 v{b_+1}, 1, v0\nv_lshlrev_b32 v{b_+1}, 3, v{b_+1}\ns_mul_i32 s50, s3, 12')
    for kind in ('P', 0, 1):
        if kind == 'P': p(f'v_lshrrev_b32 v{r_}, 2, v{m_}\nv_lshl_add_u32 v{r_}, v{g_}, 2, v{r_}')
        else:
            p(f'v_lshrrev_b32 v{r_}, 2, v{m_}\nv_lshl_add_u32 v{r_}, v{g_}, 3, v{r_}')
            if kind: p(f'v_add_u32 v{r_}, 4, v{r_}')
        p(f'v_and_b32 v{b_+2}, 15, v{r_}')
        fswz(p, F_, b_+2)
        p(f'v_mad_u32_u24 v{b_+2}, v{r_}, s48, v{b_+1}')
        if kind != 'P': p(f'v_add_u32 v{b_+2}, {2*SLOT}, v{b_+2}')
        for t in range(6):
            p(f'v_add_u32 v{t_}, s50, v{b_}' if t == 0 else f'v_add3_u32 v{t_}, s50, v{b_}, {2*t}')
            p(f'v_xor_b32 v{t_}, v{t_}, v{F_}\nv_lshl_add_u32 v{P+t if kind == "P" else LT+2*t+kind}, v{t_}, 4, v{b_+2}')
    p('s_mov_b32 s50, 0x3f803f80\ns_mov_b32 s56, 0x00800080')
    for i in range(4): p(f'v_accvgpr_write_b32 a{ONES+i}, s50')
    if opt.get('prioB'): p(f's_setprio {opt["prioB"]}')
    srd(p, 16, 78, 294912)
    p('s_bitcmp1_b32 s2, 3\ns_cbranch_scc0 J_Ba')
    p('s_cmp_ge_u32 s57, 120\ns_cbranch_scc1 J_Bb\ns_barrier\ns_cmp_ge_u32 s57, 96\ns_cbranch_scc1 J_Bb\ns_barrier\ns_barrier\ns_branch J_Bb')
    h_B = finalize(p.L)
    plan = plans[0]
    p = Prog(); p('H_none:')
    Z = X0
    start(p, plan, 0, 1)
    p('s_lshr_b32 s50, s2, 4\ns_lshl_b32 s50, s50, 2\ns_add_u32 s50, s50, s3\ns_bfe_u32 s51, s2, 0x20001\ns_mul_i32 s51, s51, 73728\ns_and_b32 s52, s2, 1')
    p(f's_mul_i32 s44, s50, 1152\ns_add_u32 s44, s44, s51\nv_min_u32 v{Z}, 8, v0\nv_lshl_add_u32 v{Z}, v{Z}, 7, s44')
    p(f'global_load_dword a{JUNK}, v{Z}, s[72:73]', tag='pre')
    p(f's_mul_i32 s59, s52, 384\ns_add_u32 s59, s59, s43\nv_min_u32 v{Z+1}, 17, v0\nv_mul_u32_u24 v{Z+2}, 86, v{Z+1}\nv_lshrrev_b32 v{Z+2}, 8, v{Z+2}')
    p(f'v_mul_u32_u24 v{Z+2}, 384, v{Z+2}\nv_lshl_add_u32 v{Z+1}, v{Z+1}, 7, v{Z+2}\nv_add_u32 v{Z+1}, s59, v{Z+1}')
    p(f'global_load_dword a{JUNK}, v{Z+1}, s[80:81]', tag='pre')
    p(f's_mul_i32 s59, s50, 5\nv_min_u32 v{Z+2}, 4, v0\nv_add_u32 v{Z+2}, s59, v{Z+2}\nv_min_u32 v{Z+2}, 287, v{Z+2}\ns_mul_i32 s59, s52, 36864\ns_add_u32 s59, s59, s51\nv_lshl_add_u32 v{Z+2}, v{Z+2}, 7, s59')
    p(f'global_load_dword a{JUNK}, v{Z+2}, s[74:75]', tag='pre')
    p(f's_lshl_b32 s59, s50, 1\nv_min_u32 v{Z+3}, 1, v0\nv_add_u32 v{Z+3}, s59, v{Z+3}\nv_min_u32 v{Z+3}, 95, v{Z+3}\nv_lshlrev_b32 v{Z+3}, 7, v{Z+3}')
    p(f'global_load_dword a{JUNK}, v{Z+3}, s[64:65]', tag='pre')
    p(f'global_load_dword a{JUNK}, v{Z}, s[76:77]', tag='pre')
    p(f'v_min_u32 v{Z+4}, 35, v0\nv_lshl_add_u32 v{Z+4}, v{Z+4}, 7, s43')
    p(f'global_load_dword a{JUNK}, v{Z+4}, s[70:71]', tag='pre')
    setupA(p); start(p, plan, 1, 9)
    p('s_branch J_Aa'); h_none = finalize(p.L)
    plan = plans[1]
    p = Prog(); p('H_none2:'); start(p, plan, 0, 1); setupA(p); start(p, plan, 1, 9); p('s_branch J_Ab'); h_none2 = finalize(p.L)
    p = Prog(); p('H_a:')
    srd(p, 4, 64, 12288); srd(p, 8, 72, 294912); srd(p, 92, 74, 294912); srd(p, 88, 80, 294912)
    p('s_bfe_u32 s40, s57, 0x20001\ns_and_b32 s41, s57, 1\ns_mul_i32 s41, s41, 12\ns_lshr_b32 s44, s57, 3\ns_add_u32 s41, s41, s44')
    LQ = STAT; LK = LQ+12288; LW = 3*SLOT
    p(f's_mul_i32 s44, s40, 73728\ns_mul_i32 s50, s41, 3072\ns_add_u32 s50, s50, s44\ns_min_u32 s51, s3, 2\ns_lshl_b32 s51, s51, 10\ns_add_u32 s50, s50, s51\ns_add_u32 m0, s51, {LK}')
    p(f'buffer_load_dwordx4 v{VL}, s[92:95], s50 offen lds', tag='tq')
    p(f's_mul_i32 s99, s3, 3072\ns_add_u32 s99, s99, {LQ}\ns_mov_b32 m0, s99\ns_mul_i32 s50, s3, 192\ns_movk_i32 s51, 5462')
    for i in range(3):
        p(f'v_add_u32 v{X0}, {64*i}, v0\nv_mul_u32_u24 v{X0+1}, s51, v{X0}\nv_lshrrev_b32 v{X0+1}, 16, v{X0+1}\nv_mul_u32_u24 v{X0+1}, 576, v{X0+1}\nv_add_u32 v{X0+2+i}, v{X0+1}, v{VL}')
        p(f'buffer_load_dwordx4 v{X0+2+i}, s[4:7], s50 offen offset:{1024*i} lds', tag='tq')
    p(f's_mul_i32 s98, s3, 18432\ns_add_u32 s44, s44, s98\ns_add_u32 s98, s98, {LW}')
    p(f'v_mul_u32_u24 v{X0+5}, 3072, v{g_}\nv_lshl_add_u32 v{X0+5}, v{m_}, 1, v{X0+5}')
    p('s_mul_i32 s59, s3, 73728\ns_lshl_b32 s50, s41, 5\ns_add_u32 s59, s59, s50')
    p.ext(stampi('a_q'))
    for pp in range(3):
        p(f's_add_u32 s50, s44, {6144*pp}\ns_add_u32 m0, s98, {6144*pp}')
        for i in range(6):
            if i == 4: p(f's_add_u32 m0, s98, {6144*pp+4096}\ns_add_u32 s50, s50, 4096')
            p(f'buffer_load_dwordx4 v{VL}, s[8:11], s50 offen offset:{1024*(i%4)} lds', tag='tw')
        if pp == 0:
            p.ext(stampi('a_w'))
            p(f'v_lshrrev_b32 v{X0+6}, 1, v{g_}\nv_lshlrev_b32 v{X0+6}, 8, v{X0+6}\nv_lshl_add_u32 v{X0+6}, v{m_}, 4, v{X0+6}\nv_and_b32 v{X0+7}, 1, v{g_}\nv_lshl_add_u32 v{X0+6}, v{X0+7}, 3, v{X0+6}')
            p(f'v_mul_u32_u24 v{X0+3}, 192, v{m_}\nv_lshl_add_u32 v{X0+4}, v{g_}, 3, v{X0+3}\nv_add_u32 v{X0+4}, s99, v{X0+4}\nv_lshl_add_u32 v{X0+3}, v{g_}, 4, v{X0+3}')
            p(f'v_add_u32 v{X0+7}, {LK}, v{X0+3}\nv_add_u32 v{X0+2}, s98, v{X0+3}\nv_add_u32 v{X0+3}, s99, v{VL}')
            setupA(p)
    for s in range(6):
        for r in range(4): p(f'buffer_load_ushort v{WM+4*s+r}, v{X0+5}, s[88:91], s59 offen offset:{768*r}')
        if s < 5: p('s_add_u32 s59, s59, 12288')
    p(f'v_mov_b32 v{X0}, -1\nv_lshlrev_b32 v{X0+1}, 2, v0\ns_lshl_b32 s44, s57, 10\ns_lshl_b32 s50, s3, 8\ns_add_u32 s44, s44, s50\ns_add_u32 s44, s44, {WS_XCH}')
    p(f'buffer_store_dword v{X0}, v{X0+1}, s[28:31], s44 offen sc0 sc1', tag='clean')
    p.ext(stampi('a_iss'))
    TS = plan.get('tsplit', (1, 2))
    start(p, plan, 0, TS[0])
    p('WAITV tq tw\ns_barrier')
    p.ext(stampi('a_bar'))
    for ks in range(3): p(f'ds_read_b128 {vr(KF+4*ks,4)}, v{X0+7} offset:{64*ks}')
    for t in range(6):
        for ks in range(3): p(f'ds_read_b128 {ar(12*t+4*ks,4)}, v{X0+2} offset:{3072*t+64*ks}')
    for s in range(3): p(f'ds_read_b64 {ar(QF+4*s,2)}, v{X0+4} offset:{64*s}\nds_read_b64 {ar(QF+2+4*s,2)}, v{X0+4} offset:{64*s+32}')
    start(p, plan, TS[0], TS[1])
    p('WAITL\ns_barrier')
    p0 = p; p = Prog()
    for t in range(6):
        for ks in range(3): p(mfma(vr(D1+4*t,4), ar(12*t+4*ks,4), vr(KF+4*ks,4), '0' if ks == 0 else vr(D1+4*t,4)))
    for i in range(12): p(f'v_lshl_or_b32 v{MF+i}, v{WM+1+2*i}, 16, v{WM+2*i}')
    for s in range(3): p(mfma(vr(D2+4,4), vr(MF+4*s,4), ar(QF+4*s,4), '0' if s == 0 else vr(D2+4,4)))
    for t in range(6): p(f'v_cvt_pk_bf16_f32 v{WF+2*t}, v{D1+4*t}, v{D1+4*t+1}\nv_cvt_pk_bf16_f32 v{WF+2*t+1}, v{D1+4*t+2}, v{D1+4*t+3}')
    for s in range(3): p(mfma(vr(D2,4), vr(WF+4*s,4), ar(QF+4*s,4), '0' if s == 0 else vr(D2,4)))
    p(f's_mov_b32 s50, {f2u(96**-0.5*LOG2E):#x}\ns_mov_b32 s51, {f2u(384**-0.5*LOG2E):#x}')
    for r in range(4): p(f'v_mul_f32 v{D2+r}, s50, v{D2+r}\nv_fma_f32 v{D2+r}, s51, v{D2+4+r}, v{D2+r}')
    p(f'ds_write_b128 v{X0+3}, {vr(D2,4)}')
    p0.ext(schedule(p.L)[0]); p = p0
    p.ext(stampi('a_cmp'))
    p('WAITL\ns_barrier\ns_cmp_eq_u32 s3, 0\ns_cbranch_scc0 H_a2')
    for w in range(4): p(f'ds_read_b128 {vr(D1+4*w,4)}, v{X0+3} offset:{3072*w}')
    for r in range(4): p(f'v_add_f32 v{D1+r}, v{D1+r}, v{D1+4+r}\nv_add_f32 v{D1+8+r}, v{D1+8+r}, v{D1+12+r}\nv_add_f32 v{D1+r}, v{D1+r}, v{D1+8+r}')
    p(f'v_cvt_pk_bf16_f32 v{D1}, v{D1}, v{D1+1}\nv_cvt_pk_bf16_f32 v{D1+1}, v{D1+2}, v{D1+3}')
    p('s_mul_i32 s50, s40, 12288\ns_lshl_b32 s51, s41, 9\ns_add_u32 s50, s50, s51')
    p(f'buffer_store_dwordx2 {vr(D1,2)}, v{X0+6}, s[28:31], s50 offen sc0 sc1')
    p.ext(stampi('a_pub'))
    p('H_a2:')
    start(p, plan, TS[1], 9)
    p(f's_lshl_b32 s44, s40, 12\ns_lshl_b32 s50, s41, 7\ns_add_u32 s44, s44, s50\ns_add_u32 s44, s44, {WS_HF}\ns_cmp_eq_u32 s3, 0\ns_cselect_b32 s96, s44, s96\ns_branch J_Ab')
    h_a = finalize(p.L)
    p = Prog(); p('H_v:')
    srd(p, 8, 76, 294912)
    p('s_bfe_u32 s40, s57, 0x20001\ns_and_b32 s41, s57, 1\ns_mul_i32 s41, s41, 3\ns_lshr_b32 s44, s57, 3\ns_add_u32 s41, s41, s44\ns_sub_u32 s41, s41, 12')
    p(f'v_mul_u32_u24 v{X0+5}, 768, v{g_}\nv_lshl_add_u32 v{X0+5}, v{m_}, 1, v{X0+5}')
    p('s_mul_i32 s50, s40, 73728\ns_mul_i32 s51, s3, 18432\ns_add_u32 s50, s50, s51\ns_lshl_b32 s51, s41, 5\ns_add_u32 s50, s50, s51')
    for s in range(6):
        for r in range(4): p(f'buffer_load_ushort v{WM+4*s+r}, v{X0+5}, s[8:11], s50 offen offset:{192*r}')
        p('s_add_u32 s50, s50, 3072')
    start(p, plan, 0, TS[1])
    setupA(p)
    for i in range(24): p(f'v_lshlrev_b32 v{WM+i}, 16, v{WM+i}')
    for i in range(0, 24, 4): p(f'v_add_f32 v{D1+i//2}, v{WM+i}, v{WM+i+1}\nv_add_f32 v{D1+i//2+1}, v{WM+i+2}, v{WM+i+3}')
    for i in range(1, 12): p(f'v_add_f32 v{D1}, v{D1}, v{D1+i}')
    allred(p, 'v_add_f32', D1, D1+1)
    p(f's_lshl_b32 s44, s3, 2\ns_add_u32 s44, s44, {STAT}\nv_and_b32 v{X0+3}, 15, v0\nv_lshlrev_b32 v{X0+3}, 4, v{X0+3}\nv_add_u32 v{X0+4}, s44, v{X0+3}\nv_add_u32 v{X0+3}, {STAT}, v{X0+3}')
    p(f'ds_write_b32 v{X0+4}, v{D1}\nWAITL\ns_barrier\nds_read_b128 {vr(D1+4,4)}, v{X0+3}')
    p(f's_mov_b32 s44, {f2u(1/384):#x}\nv_add_f32 v{D1+4}, v{D1+4}, v{D1+5}\nv_add_f32 v{D1+6}, v{D1+6}, v{D1+7}\nv_add_f32 v{D1+4}, v{D1+4}, v{D1+6}\nv_mul_f32 v{D1+4}, s44, v{D1+4}')
    for rnd in range(2):
        for i in range(24):
            if rnd == 0: p(f'v_sub_f32 v{WM+i}, v{WM+i}, v{D1+4}')
            if rnd or i: p(f'v_add_f32 v{D1+5}, v{WM+i}, v{D1+5}')
            else: p(f'v_mov_b32 v{D1+5}, v{WM}')
            p(f'v_cvt_pk_bf16_f32 v{WM+i}, v{D1+5}, v{D1+5}\nv_and_b32 v{WM+i}, 0xffff0000, v{WM+i}\nv_sub_f32 v{D1+5}, v{D1+5}, v{WM+i}')
    for i in range(12): p(f'v_cvt_pk_bf16_f32 v{WF+i}, v{WM+2*i}, v{WM+2*i+1}')
    p(f's_mul_i32 s50, s40, 73728\ns_mul_i32 s51, s3, 18432\ns_add_u32 s50, s50, s51\ns_lshl_b32 s51, s41, 10\ns_add_u32 s50, s50, s51\ns_add_u32 s50, s50, {WS_VT}')
    for s in range(3):
        p(f'buffer_store_dwordx4 {vr(WF+4*s,4)}, v{VL}, s[28:31], s50 offen sc0 sc1', tag='pub')
        if s < 2: p('s_add_u32 s50, s50, 6144')
    start(p, plan, TS[1], 9)
    p(f's_lshl_b32 s44, s40, 12\ns_lshl_b32 s50, s41, 7\ns_add_u32 s44, s44, s50\ns_add_u32 s44, s44, {WS_HF+24*128}\ns_cmp_eq_u32 s3, 0\ns_cselect_b32 s97, s44, s97\ns_branch J_Ab')
    h_v = finalize(p.L)

    def mkbody(plan, sfx, role):
        slot_of = {}
        for name, its in plan.items():
            if not isinstance(its, list) or name == 'regions': continue
            for it in its:
                if it[0] in ('L', 'X', 'W', 'XW'): slot_of[f'{it[0][0]}{it[1]}'] = it[2]
        LATSLOT = plan['lat_slots']; UX = plan['uslot']*SLOT
        q = Prog(); pre = Prog()
        isA = role == 'A'
        if isA: start(pre, plan, 0, 9)
        base = {'Q': 0, 'P': 0, 'LT': 2*SLOT, 'QB': 0}
        def rebase(which, off, span=SLOT):
            regs = {'Q': range(Q, Q+4), 'P': range(P, P+6), 'LT': range(LT, LT+12), 'QB': [QB]}[which]
            if not (base[which] <= off and off+span <= base[which]+65536):
                nb = (off//(2*SLOT))*2*SLOT
                d = nb - base[which]
                for r in regs: q(f'v_add_u32 v{r}, {d & 0xffffffff:#x}, v{r}')
                base[which] = nb
            return off - base[which]
        DP = plan.get('dmaprio', 300)
        deferred = []
        rix = [0]
        TT = opt.get('T', 1200)
        class span:
            def __init__(s, f0, f1): s.f = (f0, f1)
            def __enter__(s): s.n = len(q.L)
            def __exit__(s, *a):
                L = [i for i in q.L[s.n:] if i.kind != 'bar' and getattr(i, 'dl', None) is None]
                for x, i in enumerate(L): i.dl = rix[0]*10000 + TT*(s.f[0] + (s.f[1]-s.f[0])*x/max(len(L)-1, 1))
        NDA = opt.get('nda', 2); NDB = opt.get('ndb', 8)
        def bar(waits, name):
            b = q('BAR ' + ' '.join(waits)); b.extra = stampi(name); b.tag = stampi('b'+name)
            rix[0] += 1; b.dl = rix[0]*10000 - 2000
            if opt.get('jit') and (rix[0]*7 + (3 if isA else 0) + opt['jit']) % 4 == 0:
                lab = f'C_J{role}{sfx}{rix[0]}'
                b.extra = b.extra + [I(f's_bitcmp1_b32 s{39 if rix[0] % 2 else 2}, {rix[0] % 2}'), I(f's_cbranch_scc0 {lab}'), I(f's_sleep {3+(rix[0]*5+opt["jit"]) % 20}'), I(lab+':')]
            if opt.get('dloop'):
                if name == 'm1': b.extra = b.extra + [I('s_mov_b32 s58, 0')]
                if name == 'm2': b.extra = [I(f'C_DLOOP{role}{sfx}:')] + b.extra
                if name == 'm6': b.extra = [I('s_add_u32 s58, s58, 1'), I('s_cmp_lt_u32 s58, 3'), I(f's_cbranch_scc1 C_DLOOP{role}{sfx}')] + b.extra
            with span(-0.01, 0.08):
                for t in deferred: q(t, R=['EPOCH'])
            deferred.clear()
            if not isA and name == 'm8': b.extra = b.extra + [I(f's_setprio {opt.get("pjprio", 2)}')]
            with span(*(opt.get('vmspan', (0.0, 0.8)))): issue0(q, name, None, plan, sfx, role)
        for ks in range(12):
            bar([f'L{ks}', f'F{ks//4}'], f'lat{ks}')
            if not isA:
              with span(0, 0.3):
                o = rebase('LT', slot_of[f'L{ks}']*SLOT)
                for pt in range(4):
                    q(f'ds_read_b128 {ar(BF[ks%2]+4*pt,4)}, v{Q0+ks%4} offset:{16384*(ks//4)+4096*pt}')
                for t in range(6):
                    for e in range(2): q(f'ds_read_b64_tr_b16 {ar(AF[ks%2]+4*t+2*e,2)}, v{LT+2*t+e} offset:{o}')
              with span(10000/TT-0.02, 10000/TT+0.3):
                for kk, t, pt in ([(ks, t, pt) for t in range(6) for pt in range(4)] if ks < 10 else [] if ks == 10 else [(kk, t, pt) for pt in range(4) for kk in (10, 11) for t in range(6)]):
                        d = vr(U+4*(4*t+pt), 4)
                        z = q(mfma(d, ar(AF[kk % 2]+4*t, 4), ar(BF[kk % 2]+4*pt, 4), '0' if kk == 0 else d))
                        if ks == 11: z.dl = (rix[0]*10000 if 2*pt+kk-10 < opt.get('epib', 3) else (rix[0]+1)*10000 - 1500) + 64*(2*pt+kk-10) + 8*t
        bar([], 'epi')
        if isA and sfx == 'a': q('s_mov_b32 s16, s10\ns_mov_b32 s17, s11\ns_mov_b32 s18, 294912', R=['EPOCH'])
        xfc = [0]; trc = [0]
        q('FENCE').dl = rix[0]*10000
        if not isA:
          with span(0.0, 0.45):
            q('s_mul_i32 s50, s3, 12')
            for t in range(6):
                q(f'v_add3_u32 v{LW_+t}, s50, v{LH+2}, {2*t}\nv_xor_b32 v{LW_+t}, v{LW_+t}, v{LH+1}\nv_lshl_add_u32 v{LW_+t}, v{LW_+t}, 4, v{LH}')
            assert LATSLOT == (0, 1)
            for pt in range(4):
                for t in range(6):
                    d = U+4*(4*t+pt); tm = (TB, TB+2, S1+4, S1+6, 58, 60)[(6*pt+t) % 6]
                    q(f'v_cvt_pk_bf16_f32 v{tm}, v{d}, v{d+1}\nv_cvt_pk_bf16_f32 v{tm+1}, v{d+2}, v{d+3}')
                    q(f'ds_write_b64 v{LW_+t}, {vr(tm,2)} offset:{12288*pt}', private=(pt < 2)).dl = rix[0]*10000 - 1500 + 128*pt + 140 + 8*t
            q(f'v_mov_b32 v62, 0\ns_lshl_b32 s50, s3, 2\nv_add_u32 v63, s50, v{FL}\nds_write2_b32 v63, v62, v62 offset0:0 offset1:4')
        def sumA():
            q(f's_mov_b32 s50, 0x3f803f80')
            for i in range(4): q(f'v_mov_b32 v{PK+i}, s50')
            for j in range(12): q(mfma(vr(PKL,4), vr(PK,4), ar(AA+4*j,4), '0' if j == 0 else vr(PKL,4)), R=['EPOCH'] if j == 0 else [])
            q(f'v_sub_f32 v{SA}, 0, v{PKL}')
        def proA(pt):
            o = rebase('Q', LATSLOT[pt//2]*SLOT) + 12288*(pt % 2)
            for a_ in range(4):
                for G in range(3):
                    fr = ar(XF+4*(xfc[0] % NXF), 4); xfc[0] += 1
                    q(f'ds_read_b128 {fr}, v{Q+a_} offset:{o+256*G}')
                    q(mfma(vr(SLO[pt % 2],4), fr, ar(AA+4*(3*a_+G),4), '0' if a_+G == 0 else vr(SLO[pt % 2],4)))
        def partS(k):
            o = rebase('Q', slot_of[f'X{k}']*SLOT)
            sa = SACC[k % 2]
            for a_ in range(4):
                for G in range(3):
                    for mt in range(2):
                        fr = ar(XF+4*(xfc[0] % NXF), 4); xfc[0] += 1
                        q(f'ds_read_b128 {fr}, v{Q+a_} offset:{o+256*G+12288*mt}')
                        d = vr(sa+4*mt, 4)
                        t = mfma(d, fr, ar(AA+4*(3*a_+G),4), vr(SLO[(k//2) % 2],4) if a_+G == 0 else d)
                        if 6*a_+2*G+mt >= 24-NDA: deferred.append(t)
                        else: q(t)
        def sum4(t0, areg, off):
            q(f'ds_read2_b64 {vr(t0,4)}, v{areg} offset0:{off} offset1:{off+2}')
            q(f'ds_read2_b64 {vr(t0+4,4)}, v{areg} offset0:{off+4} offset1:{off+6}')
            q(f'v_add_f32 v{t0}, v{t0}, v{t0+2}\nv_add_f32 v{t0+1}, v{t0+1}, v{t0+3}\nv_add_f32 v{t0+4}, v{t0+4}, v{t0+6}\nv_add_f32 v{t0+5}, v{t0+5}, v{t0+7}')
        def softmax(k):
            sa = SACC[k % 2]; t0 = T
            def ysum(pt, tb):
                sum4(tb, HA, 160*(pt//2)+pt % 2)
                q(f'v_add_f32 v{YS+2*pt}, v{tb}, v{tb+4}\nv_add_f32 v{YS+2*pt+1}, v{tb+1}, v{tb+5}')
            if k == 0:
                q(f'v_and_b32 v{HA}, 4, v0\nv_lshlrev_b32 v{HA}, 1, v{HA}\nv_sub_u32 v{HA}, v{SR}, v{HA}\nv_add_u32 v{HA}, {PLB-STAT}, v{HA}')
                ysum(0, PE)
            sum4(t0, SR, 160*(k % 2))
            y = YS+2*(k//2)
            q(f'v_add_f32 v{t0}, v{t0}, v{y}\nv_add_f32 v{t0+1}, v{t0+1}, v{y+1}')
            q(f'v_add_f32 v{t0}, v{t0}, v{t0+4}\nv_add_f32 v{t0+1}, v{t0+1}, v{t0+5}')
            q(f'v_mul_f32 v{t0+1}, s53, v{t0+1}')
            q(f'v_mul_f32 v{t0}, s53, v{t0}\nv_fma_f32 v{t0}, -v{t0+1}, v{t0+1}, v{t0}')
            q(f'v_max_f32 v{t0}, 0, v{t0}\nv_add_f32 v{t0}, s54, v{t0}\nv_rsq_f32 v{t0}, v{t0}')
            for i in range(8): q(f'v_fmac_f32_dpp v{sa+i}, v{t0+1}, v{SA} row_newbcast:{i} {DPP}')
            for i in range(8): q(f'v_mov_b32_dpp v{RS+i}, v{t0} row_newbcast:{i} {DPP}').R.discard(f'v{RS+i}')
            mx = T+2; ts = T+4
            def exps(z):
                for i in range(8): z(f'v_exp_f32 v{PE+i}, v{sa+i}')
                z(f'v_add_f32 v{ts}, v{PE}, v{PE+1}\nv_add_f32 v{ts+1}, v{PE+2}, v{PE+3}\nv_add_f32 v{ts+2}, v{PE+4}, v{PE+5}\nv_add_f32 v{ts+3}, v{PE+6}, v{PE+7}')
                z(f'v_add_f32 v{ts}, v{ts}, v{ts+1}\nv_add_f32 v{ts+2}, v{ts+2}, v{ts+3}\nv_add_f32 v{ts}, v{ts}, v{ts+2}')
            def maxes(z):
                z(f'v_max3_f32 v{mx}, v{sa}, v{sa+1}, v{sa+2}\nv_max3_f32 v{mx+1}, v{sa+3}, v{sa+4}, v{sa+5}\nv_max3_f32 v{mx}, v{mx}, v{sa+6}, v{sa+7}\nv_max_f32 v{mx}, v{mx}, v{mx+1}')
                allred(z, 'v_max_f32', mx, mx+1)
            if k == 0:
                for i in range(8): q(f'v_mul_f32 v{sa+i}, v{sa+i}, v{RS+i}')
                maxes(q)
                for i in range(8): q(f'v_sub_f32 v{sa+i}, v{sa+i}, v{mx}')
                q(f'v_sub_f32 v{NM}, 0, v{mx}')
                exps(q)
            else:
                for i in range(8): q(f'v_fma_f32 v{sa+i}, v{sa+i}, v{RS+i}, v{NM}')
                exps(q)
                q(f'v_cmp_nge_f32 vcc, s55, v{ts}')
                live_pl = ([PL+i for i in range(4)] if k % 4 >= 1 else []) + ([PL+4+i for i in range(4)] if k % 4 == 3 else [])
                touched = [f'v{x+i}' for x in (sa, PE) for i in range(8)] + [f'v{x}' for x in (NM, LS, AL, mx, mx+1, ts, ts+1, ts+2, ts+3)] + [f'v{x}' for x in live_pl]
                br = q(f's_cbranch_vccnz RARE{k}{sfx}', R=touched+['EPOCH'], W=touched+['s59', 'scc'])
                br.text += f'\nC_{k}{sfx}:'
                slow(f'RARE{k}{sfx}:')
                maxes(slow)
                slow(f'v_max_f32 v{mx}, 0, v{mx}')
                for i in range(8): slow(f'v_sub_f32 v{sa+i}, v{sa+i}, v{mx}')
                slow(f'v_sub_f32 v{NM}, v{NM}, v{mx}\nv_exp_f32 v{AL}, -v{mx}')
                for r in [LS] + live_pl: slow(f'v_mul_f32 v{r}, v{AL}, v{r}')
                slow(f's_lshl_b32 s59, s3, 6\ns_add_u32 s59, s59, {XA+256*(k%2)}\nv_and_b32 v{mx}, 15, v0\nv_lshl_add_u32 v{mx}, v{mx}, 2, s59\nds_write_b32 v{mx}, v{AL}')
                slow(f's_lshl_b32 s59, s3, 2\ns_add_u32 s59, s59, {FLG+16*(k%2)}\nv_mov_b32 v{mx}, s59\nv_mov_b32 v{mx+1}, {k+1}\nds_write_b32 v{mx}, v{mx+1}')
                exps(slow)
                slow(f's_waitcnt lgkmcnt(0)\ns_branch C_{k}{sfx}')
            q(f'v_add_f32 v{LS}, v{LS}, v{ts}')
            for i in range(8): q(f'v_mul_f32 v{RS+i}, v{PE+i}, v{RS+i}')
            for i in range(4): q(f'v_cvt_pk_bf16_f32 v{PK+i}, v{RS+2*i}, v{RS+2*i+1}')
            q(f'ds_write_b128 v{PXW}, {vr(PK,4)} offset:{4096*(k%2)}')
            pl = PL+4*((k//2) % 2)
            for r in range(4):
                if k % 2 == 0: q(f'v_add_f32 v{pl+r}, v{RS+r}, v{RS+4+r}')
                else: q(f'v_add_f32 v{pl+r}, v{pl+r}, v{RS+r}\nv_add_f32 v{pl+r}, v{pl+r}, v{RS+4+r}')
            for pt in {1: (1, 2), 2: (3,)}.get(k, ()): ysum(pt, PE)
            if k % 4 == 3:
                for i in range(4): q(f'v_cvt_pk_bf16_f32 v{PKL+i}, v{PL+2*i}, v{PL+2*i+1}')
                q(f'ds_write_b128 v{PXW}, {vr(PKL,4)} offset:8192')
        def extract(off):
            for mt in range(2):
                for (src, dst) in ((S2+4*mt, TB+2*mt), (S1+4*mt, TB+1+2*mt)):
                    q(f'v_cndmask_b32 v{dst}, v{src}, v{src+1}, s[32:33]\nv_cndmask_b32 v{dst}, v{dst}, v{src+2}, s[34:35]\nv_cndmask_b32 v{dst}, v{dst}, v{src+3}, s[36:37]')
            q(f'ds_write_b128 v{SW}, {vr(TB,4)} offset:{off}')
        def loadY(pt, dbl=True):
            o = rebase('QB', LATSLOT[pt//2]*SLOT) + 12288*(pt % 2)
            for G in range(3): q(f'ds_read_b128 {vr(Y2[pt%2]+4*G,4)}, v{QB} offset:{o+256*G}')
            if dbl: dblY(pt)
        def dblY(pt):
            for i in range(12): q(f'v_add_u32 v{Y2[pt%2]+i}, s56, v{Y2[pt%2]+i}')
        def ystats(t):
            for mt in range(2):
                if t == 0: loadY(mt, False)
                else: o = rebase('QB', LATSLOT[1]*SLOT) + 12288*mt
                for G in range(3):
                    if t == 0: fr = vr(Y2[mt]+4*G, 4)
                    else:
                        fr = ar(TR+4*(trc[0] % NTR), 4); trc[0] += 1
                        q(f'ds_read_b128 {fr}, v{QB} offset:{o+256*G}')
                    q(mfma(vr(S2+4*mt,4), fr, fr, '0' if G == 0 else vr(S2+4*mt,4)))
                    q(mfma(vr(S1+4*mt,4), fr, ar(ONES,4), '0' if G == 0 else vr(S1+4*mt,4)))
            extract(PLB-STAT+1280*t)
        def ltf(t):
            o = rebase('P', LATSLOT[t]*SLOT)
            for i in range(6):
                for e in range(2): q(f'ds_read_b64_tr_b16 {ar(LTF+24*t+4*i+2*e,2)}, v{P+i} offset:{o+12288*e}')
        def stats(k):
            o = rebase('QB', slot_of[f'X{k}']*SLOT)
            y = Y2[(k//2) % 2]
            for G in range(3):
                for mt in range(2):
                    fr = ar(XB+4*(trc[0] % NXB), 4); trc[0] += 1
                    q(f'ds_read_b128 {fr}, v{QB} offset:{o+256*G+12288*mt}')
                    d2 = vr(S2+4*mt, 4); d1 = vr(S1+4*mt, 4)
                    q(mfma(d2, fr, fr, '0' if G == 0 else d2))
                    q(mfma(d1, fr, ar(ONES,4), '0' if G == 0 else d1))
                    q(mfma(d2, fr, vr(y+4*G,4), d2))
            extract(1280*(k % 2))
        def pvcheck(k):
            if k > 0:
                f = TB
                q(f'ds_read_b128 {vr(f,4)}, v{FL} offset:{16*(k%2)}')
                q(f'v_max3_u32 v15, v{f}, v{f+1}, v{f+2}\nv_max_u32 v15, v15, v{f+3}\nv_cmp_eq_u32 vcc, {k+1}, v15')
                touched = [f'v{U+i}' for i in range(96)] + [f'v{f+i}' for i in range(4)] + ['v15']
                br = q(f's_cbranch_vccnz RESC{k}{sfx}', R=touched+['EPOCH'], W=touched+['vcc'])
                br.text += f'\nC_R{k}{sfx}:'
                slow(f'RESC{k}{sfx}:\ns_nop 7')
                for j in range(4):
                    slow(f'v_and_b32 v15, 15, v0\nv_lshlrev_b32 v15, 2, v15\nv_add_u32 v15, {XA+256*(k%2)+64*j}, v15\nds_read_b32 v15, v15\nv_cmp_eq_u32 vcc, {k+1}, v{f+j}\ns_waitcnt lgkmcnt(0)\nv_cndmask_b32 v15, 1.0, v15, vcc')
                    for i in range(6):
                        for r in range(4): slow(f'v_mul_f32 v{U+16*i+4*j+r}, v15, v{U+16*i+4*j+r}')
                slow(f's_nop 1\ns_branch C_R{k}{sfx}')
        def pv(k):
            n7 = len(q.L); r7 = rix[0]
            for j in range(4): q(f'ds_read_b128 {ar(PF+4*j,4)}, v{PX} offset:{4096*(k%2)+1024*j}')
            o = rebase('P', slot_of[f'X{k}']*SLOT)
            ms = []
            if k == 7:
                PG = Y2[0]
                for j in range(4): q(f'ds_read_b128 {vr(PG+4*j,4)}, v{PX} offset:{8192+1024*j}')
                q(f's_mul_i32 s50, s3, 3072\ns_add_u32 s50, s50, {UX}\nv_add_u32 v{QB}, s50, v{VL}')
            n = 0
            for i in range(6):
                fr = TR+4*(trc[0] % NTR); trc[0] += 1
                for e in range(2): q(f'ds_read_b64_tr_b16 {ar(fr+2*e,2)}, v{P+i} offset:{o+12288*e}', private=(k == 7))
                for j in range(4):
                    d = vr(U+16*i+4*j, 4)
                    t = mfma(d, ar(fr,4), ar(PF+4*j,4), '0' if k == 0 else d)
                    if k not in (3, 6, 7) and 4*i+j >= 24-NDB: deferred.append(t)
                    else: q(t)
                    if k == 7: q(mfma(d, ar(LTF+24+4*i,4), vr(PG+4*j,4), d))
                if k == 7 and i % 2:
                    for j in range(4):
                        b = S2+4*(n % 4); n += 1
                        for e in range(2):
                            u = U+16*(i-1+e)+4*j
                            q(f'v_cvt_pk_bf16_f32 v{b+2*e}, v{u}, v{u+1}\nv_cvt_pk_bf16_f32 v{b+2*e+1}, v{u+2}, v{u+3}')
                        if opt.get('xw64', 0): q(f'ds_write_b64 v{QB}, {vr(b,2)} offset:{12288*j+1024*(i//2)}\nds_write_b64 v{QB}, {vr(b+2,2)} offset:{12288*j+1024*(i//2)+8}', private=(i > 1), tag='must')
                        else: q(f'ds_write_b128 v{QB}, {vr(b,4)} offset:{12288*j+1024*(i//2)}', private=(i > 1), tag='must')
                    for x, z in enumerate(q.L[n7:]): z.dl = (r7*10000 + 300*(i//2) + 4*x) if 'tr_b16' not in z.op else (r7-1)*10000 + 900 + 10*i
                    if i != 3: bar(['W8', 'W9', 'W10'] if i == 1 else [], f'pj{i//4+(i>1)*0 if i == 1 else 1}')
                    n7 = len(q.L)
            if k == 3:
                for j in range(4): q(f'ds_read_b128 {ar(PF+4*j,4)}, v{PX} offset:{8192+1024*j}')
                for i in range(6):
                    for j in range(4):
                        d = vr(U+16*i+4*j, 4)
                        t = mfma(d, ar(LTF+4*i,4), ar(PF+4*j,4), d)
                        if 4*i+j >= 24-NDB: deferred.append(t)
                        else: q(t)
        REG = plan.get('regions') or ([(f'm{k}', k+1 if k < 7 else None, k if 0 <= k < 8 else None, k-1 if k >= 1 else None) for k in range(-1, 9)])
        for name, ka, ks_, kp in REG:
            bar([f'X{ka}'] if ka is not None else [], name)
            SP = opt.get('sp', {})
            if isA:
                if name == 'm0' and opt.get('sum0', 1):
                    with span(-0.01, 0.1): sumA()
                if ks_ is not None:
                    with span(*SP.get('sm', (0, 0.9))): softmax(ks_)
                with span(*SP.get('S', (0.03, 1.0))):
                    for pt in opt.get('pro', {'m-1': (0, 1), 'm1': (2,), 'm3': (3,)}).get(name, ()): proA(pt)
                    if ka is not None: partS(ka)
                    if name == 'm-1' and not opt.get('sum0', 1): sumA()
            else:
                if kp is not None:
                    with span(-0.1 if kp == 7 else 0.0, -0.05 if kp == 7 else 0.1): pvcheck(kp)
                with span(*SP.get('st', (0.0, 0.6))):
                    if name == 'm-1':
                        ystats(0); dblY(0)
                    if ka is not None: stats(ka)
                with span(*SP.get('pv', (0.05, 1.0))):
                    if name == 'm-1': dblY(1)
                    if name == 'm0': ystats(1); ltf(0); ltf(1)
                    if kp is not None: pv(kp)
                    if name in ('m1', 'm3'): loadY({'m1': 2, 'm3': 3}[name])
        if isA:
            q('FENCE').dl = rix[0]*10000
            allred(q, 'v_add_f32', LS, T)
            q(f's_mul_i32 s50, s3, 12288\ns_add_u32 s50, s50, {UX}\nv_add_u32 v{Q}, s50, v{VL}')
            for bk in (8, 9, 10): q(f's_add_u32 s50, s24, {slot_of[f"W{bk}"]*SLOT}\nv_add_u32 v{Q+bk-7}, s50, v{VL}')
            O = PL
            q(f'v_and_b32 v{SR}, 15, v0\nv_lshlrev_b32 v{PA}, 4, v{SR}\nv_lshlrev_b32 v{SR}, 8, v{SR}\nv_and_b32 v{PXW}, 48, v0\nv_add_u32 v{SR}, v{SR}, v{PXW}')
            q(f's_lshl_b32 s50, s2, 14\ns_lshl_b32 s51, s3, 12\ns_add_u32 s50, s50, s51\ns_lshr_b32 s51, s50, 4\ns_add_u32 s50, s50, {WS_PART}\ns_add_u32 s51, s51, {WS_ML}')
            BB = (T, T+4, PK, PKL)
            for ph in range(3):
                if ph < 2: bar(['W8', 'W9', 'W10'] if ph == 0 else [], f'pj{ph}')
                n0 = len(q.L)
                for n in range(4*ph, 4*ph+4): q(f'ds_read_b128 {vr(BB[n%4],4)}, v{Q} offset:{1024*(3*(n%4)+ph)}')
                order = [(n, dt) for n in range(4*ph, 4*ph+4) for dt in range(6)] if ph < 2 else [(n, dt) for dt in range(6) for n in range(8, 12)]
                for n, dt in order:
                    d = vr(CT+4*dt, 4)
                    fr = rg(VLOC[n-7][dt]) if VLOC[n] is None else rg(VLOC[n][dt])
                    q(mfma(d, fr, vr(BB[n % 4], 4), '0' if n == 0 else d))
                    if ph == 1 and n < 7 and dt % 2 == 0:
                        for n2 in (1, 2, 3): q(f'ds_read_b128 {rg(VLOC[n2][2*(n-4)+dt//4 if dt != 2 else 0])}, v{Q+n2} offset:{1024*(2*(n-4)+dt//4)}') if dt != 2 else None
                    if n == 0 and dt == 5: issue0(q, 'pjv', None, plan, sfx)
                if ph == 1:
                    for j in range(4): q(f'v_mov_b32 v{O+4*j+3}, s38')
                    q(f'v_sub_f32 v{O+16}, 0, v{NM}\nv_mov_b32 v{O+17}, v{LS}\nv_mov_b32 v{O+18}, s38\nv_mov_b32 v{O+19}, s38')
                for x, z in enumerate(q.L[n0:]): z.dl = rix[0]*10000 + 8*x + (400 if ph == 2 else 0)
            q('FENCE').dl = rix[0]*10000
            for i in range(12): q(f'v_cvt_pk_bf16_f32 v{O+4*(i//3)+i%3}, v{CT+2*i}, v{CT+2*i+1}')
            MLP = opt.get('mlpos', 2)
            for j in range(5):
                if j == MLP: q(f'buffer_store_dwordx4 {vr(O+16,4)}, v{PA}, s[28:31], s51 offen sc0 sc1', R=[f'v{O+4*min(j,3)}'])
                if j < 4: q(f'buffer_store_dwordx4 {vr(O+4*j,4)}, v{SR}, s[28:31], s50 offen offset:{64*j} {opt.get("stfl", "sc0 sc1")}')
        body, tt = schedule(q.L, verbose=True)
        return pre, body

    p = Prog()
    p('T_red:')
    p.ext(stampi('stored'))
    p('s_cmp_lt_u32 s57, 64\ns_cbranch_scc0 K_fin')
    p('s_load_dwordx2 s[4:5], s[0:1], 0\ns_load_dwordx2 s[8:9], s[0:1], 72')
    p('s_lshr_b32 s40, s57, 2\ns_and_b32 s41, s57, 3')
    p('v_mov_b32 v1, s39\nv_mov_b32 v2, v0\nv_lshl_add_u32 v0, v1, 6, v2')
    WO = 96; D = 32; ML = 64; A = 24
    p('v_mul_u32_u24 v5, 12, v2\ns_mul_i32 s42, s41, 73728\ns_mul_i32 s43, s39, 9216\ns_add_u32 s42, s42, s43')
    for i in range(12):
        p(f'buffer_load_dwordx3 {vr(WO+4*i,3)}, v5, s[16:19], s42 offen offset:{768*(i%4)}')
        if i % 4 == 3: p('s_add_u32 s42, s42, 3072')
    p('v_lshrrev_b32 v10, 4, v2\nv_and_b32 v4, 15, v2\nv_lshlrev_b32 v3, 14, v10\nv_lshl_add_u32 v3, v4, 4, v3')
    p('v_and_b32 v8, 7, v2\nv_lshl_add_u32 v8, v8, 2, v10\nv_lshlrev_b32 v8, 10, v8')
    p('s_mov_b32 s46, 0x05040100\ns_mov_b32 s47, 0x07060302\ns_mov_b32 s48, 0x00ff00ff\ns_mov_b32 s49, 0x00ff00ff')
    p('s_waitcnt lgkmcnt(0)')
    srd(p, 12, 4, 12288); srd(p, 20, 8, 12288)
    p('v_lshlrev_b32 v6, 2, v0\ns_mul_i32 s44, s40, 768\ns_mul_i32 s43, s41, 192\ns_add_u32 s44, s44, s43')
    p('buffer_load_dword v7, v6, s[12:15], s44 offen')
    p('v_lshrrev_b32 v11, 2, v4\nv_mul_u32_u24 v11, 3, v11\nv_and_b32 v12, 3, v4')
    p('v_and_b32 v13, 1, v10\nv_lshrrev_b32 v14, 1, v10')
    def daddr(dst, dw):
        p(f'v_lshrrev_b32 v15, 1, v{dw}\nv_lshlrev_b32 v15, 4, v15\nv_and_b32 v16, 1, v{dw}\nv_lshl_add_u32 v15, v16, 1, v15\nv_lshl_add_u32 v15, v12, 2, v15\nv_add_u32 v15, v15, v14')
        p(f'v_lshlrev_b32 v15, 5, v15\nv_lshl_add_u32 v{dst}, v1, 2, v15')
    p('v_add_u32 v17, v11, v13'); daddr(18, 17)
    p('v_add_u32 v17, 2, v11'); daddr(19, 17)
    p('v_lshlrev_b32 v20, 2, v1\nv_add_u32 v20, 3072, v20\nv_cmp_eq_u32 vcc, 1, v13\nv_cndmask_b32 v19, v19, v20, vcc')
    p('v_mul_u32_u24 v21, 12, v1\nv_lshrrev_b32 v22, 3, v2\nv_and_b32 v23, 7, v2\nv_lshlrev_b32 v23, 2, v23\nv_add_u32 v9, v21, v22\nv_lshl_add_u32 v9, v9, 5, v23')
    p('v_and_b32 v22, 3, v22\nv_add3_u32 v21, v21, v22, 8\nv_lshl_add_u32 v21, v21, 5, v23\nv_add_u32 v22, 3072, v23')
    WPI = [3, 7, 0, 4, 1, 5]
    for i in range(6):
        for u in range(3):
            p(f'v_perm_b32 v{WO+8*i+WPI[2*u]}, v{WO+8*i+4+u}, v{WO+8*i+u}, s46\nv_perm_b32 v{WO+8*i+WPI[2*u+1]}, v{WO+8*i+4+u}, v{WO+8*i+u}, s47')
    p('s_barrier')
    p(f's_lshl_b32 s42, s39, 19\ns_lshl_b32 s43, s41, 12\ns_add_u32 s42, s42, s43\ns_lshl_b32 s43, s40, 8\ns_add_u32 s42, s42, s43\ns_lshr_b32 s43, s42, 4\ns_add_u32 s42, s42, {WS_PART}\ns_add_u32 s43, s43, {WS_ML}')
    NP = opt.get('npoll', 1)
    PB = [ML, 84, 88, 92][:NP]
    p(f's_mov_b32 s58, {SPIN}\nT_re:')
    for b in PB[:-1]: p(f'buffer_load_dwordx4 {vr(b,4)}, v8, s[28:31], s43 offen sc1\ns_sleep 1')
    p('T_poll:')
    for x, b in enumerate(PB):
        p(f'buffer_load_dwordx4 {vr(PB[x-1],4)}, v8, s[28:31], s43 offen sc1\ns_waitcnt vmcnt({NP-1})\nv_cmp_ne_u32 vcc, s38, v{b+2}\ns_cbranch_vccz T_ok{x}')
    p('s_sub_u32 s58, s58, 1\ns_cbranch_scc0 T_poll\ns_branch T_pd')
    for x in range(NP-1, 0, -1):
        p(f'T_ok{x}:\nv_mov_b32 v80, v{PB[x]}\nv_mov_b32 v81, v{PB[x]+1}\ns_branch T_go')
    p(f'T_ok0:\nv_mov_b32 v80, v{ML}\nv_mov_b32 v81, v{ML+1}\nT_go:')
    ML = 80
    p.ext(stampi('fl1'))
    for j in range(8): p(f's_add_u32 s45, s42, {4*j*16384}\nbuffer_load_dwordx4 {vr(D+4*j,4)}, v3, s[28:31], s45 offen sc1')
    p(f'v_mov_b32 v13, v{ML}')
    for r in (4, 2, 1): p(f'v_max_f32_dpp v13, v13, v13 row_ror:{r} {DPP}')
    allred(p, 'v_max_f32', 13, 15)
    p(f'v_sub_f32 v{ML}, v{ML}, v13\nv_exp_f32 v{ML}, v{ML}\nds_write_b32 v20, v13 offset:32')
    p(f'v_cvt_pk_bf16_f32 v{ML+2}, v{ML}, 0\nv_lshlrev_b32 v{ML+3}, 16, v{ML+2}\nv_mul_f32 v{A+6}, v{ML+3}, v{ML+1}')
    for r in (4, 2, 1): p(f'v_add_f32_dpp v{A+6}, v{A+6}, v{A+6} row_ror:{r} {DPP}')
    for j in range(8):
        p(f'v_mov_b32_dpp v{144+2*j}, v{ML+2} row_newbcast:{j} {DPP}\nv_mov_b32_dpp v{145+2*j}, v{ML+3} row_newbcast:{j} {DPP}')
    p(f'v_mov_b32 v11, s38\nv_mov_b32 v12, s38\nv_mov_b32 v{A+7}, v{A+6}')
    for j in range(8):
        for i in range(3):
            p(f'v_dot2_f32_bf16 v{A+2*i}, v{D+4*j+i}, v{144+2*j}, {"0" if j == 0 else f"v{A+2*i}"}')
            p(f'v_dot2_f32_bf16 v{A+2*i+1}, v{D+4*j+i}, v{145+2*j}, {"0" if j == 0 else f"v{A+2*i+1}"}')
        if j % 2:
            for op, r in (('v_min3_u32', 11), ('v_max3_u32', 12)): p(f'{op} v{r}, v{r}, v{D+4*j-1}, v{D+4*j+3}')
    p(f'v_cmp_ne_u32 vcc, v11, v12\ns_cbranch_vccnz T_rt\nT_pd:\ns_nop 2')
    slow('T_rt:\ns_sub_u32 s58, s58, 1\ns_cbranch_scc0 T_re\ns_branch T_pd')
    p.ext(stampi('acc'))
    for i in range(0, 8, 2): p(f'v_permlane32_swap_b32 v{A+i}, v{A+i+1}')
    for i in range(0, 8, 2): p(f'v_add_f32 v{A+i}, v{A+i}, v{A+i+1}')
    p(f'v_permlane16_swap_b32 v{A}, v{A+2}\nv_permlane16_swap_b32 v{A+4}, v{A+6}\nv_add_f32 v{A}, v{A}, v{A+2}\nv_add_f32 v{A+4}, v{A+4}, v{A+6}')
    p(f'ds_write_b32 v18, v{A}\nds_write_b32 v19, v{A+4}\nWAITL\ns_barrier')
    p(f'ds_read_b32 v{D}, v22 offset:32\nds_read_b32 v{D+1}, v22\nds_read_b32 v{D+2}, v9\nds_read_b32 v{D+3}, v21')
    R8 = ['quad_perm:[1,0,3,2]', 'quad_perm:[2,3,0,1]', 'row_half_mirror']
    p(f'v_mov_b32 v13, v{D}')
    for r in R8: p(f'v_max_f32_dpp v13, v13, v13 {r} {DPP}')
    p(f'v_sub_f32 v{D}, v{D}, v13\nv_exp_f32 v{D}, v{D}')
    for i in range(1, 4): p(f'v_mul_f32 v{D+i}, v{D}, v{D+i}')
    for r in R8:
        for i in range(1, 4): p(f'v_add_f32_dpp v{D+i}, v{D+i}, v{D+i} {r} {DPP}')
    p(f'v_rcp_f32 v{D+1}, v{D+1}\nv_mul_f32 v{D+2}, v{D+2}, v{D+1}\nv_mul_f32 v{D+3}, v{D+3}, v{D+1}\nv_cvt_pk_bf16_f32 v15, v{D+2}, v{D+3}')
    for i in range(8): p(f'v_readlane_b32 s{4+i}, v15, {8*i}')
    for i in range(4): p(f's_pack_ll_b32_b16 s{50+i}, s{4+2*i}, s{5+2*i}')
    for i in range(2): p(f's_pack_hh_b32_b16 s{54+i}, s{4+2*i}, s{5+2*i}')
    p.ext(stampi('ctx'))
    for i in range(6):
        for u in range(6): p(f'v_dot2_f32_bf16 v{A+u}, v{WO+8*i+WPI[u]}, s{50+i}, {"0" if i == 0 else f"v{A+u}"}')
    p('v_mul_u32_u24 v11, 24, v2\ns_mul_i32 s45, s39, 1536\nv_add_u32 v11, s45, v11')
    p.ext(stampi('gemv'))
    for u in range(3): p(f'ds_write_b64 v11, {vr(A+2*u,2)} offset:{8192+8*u}')
    p('WAITL\ns_barrier')
    p('v_cmp_gt_u32 vcc, 192, v0\ns_and_saveexec_b64 s[46:47], vcc\ns_cbranch_execz K_fin')
    p('v_lshlrev_b32 v25, 3, v0')
    for z in range(8): p(f'ds_read_b64 {vr(D+2*z,2)}, v25 offset:{8192+1536*z}')
    p('s_mov_b32 s45, 0x7fc00000\nv_mov_b32 v27, s45')
    for i in range(2):
        for z in range(0, 8, 2): p(f'v_add_f32 v{D+2*z+i}, v{D+2*z+i}, v{D+2*z+2+i}')
        p(f'v_add_f32 v{D+i}, v{D+i}, v{D+4+i}\nv_add_f32 v{D+8+i}, v{D+8+i}, v{D+12+i}\nv_add_f32 v{D+i}, v{D+i}, v{D+8+i}')
        p(f'v_cmp_eq_u32 vcc, -1, v{D+i}\nv_cndmask_b32 v{D+i}, v{D+i}, v27, vcc')
    p(f's_mul_i32 s42, s57, 1536\ns_add_u32 s42, s42, {WS_XCH}')
    p(f'buffer_store_dwordx2 {vr(D,2)}, v25, s[28:31], s42 offen sc0 sc1')
    p.ext(stampi('xpub'))
    p('v_cmp_gt_u32 vcc, 48, v0\ns_and_saveexec_b64 s[46:47], vcc\ns_cbranch_execz K_fin')
    p(f's_mov_b32 s46, {WS_EPOCH}\ns_cmp_eq_u32 s57, 0\ns_cselect_b32 s45, s46, {WS_SIZE}\nv_mov_b32 v26, s38\nv_mov_b32 v28, 0')
    p(f'buffer_store_dword v26, v28, s[28:31], s45 offen')
    p(f's_mul_i32 s42, s40, 6144\ns_mul_i32 s43, s41, 384\ns_add_u32 s42, s42, s43\ns_add_u32 s42, s42, {WS_XCH}')
    p('s_add_u32 s43, s42, 3072')
    def ld2(b):
        p(f'buffer_load_dwordx2 {vr(b,2)}, v25, s[28:31], s42 offen sc1\nbuffer_load_dwordx2 {vr(b+2,2)}, v25, s[28:31], s42 offen offset:1536 sc1')
        p(f'buffer_load_dwordx2 {vr(b+4,2)}, v25, s[28:31], s43 offen sc1\nbuffer_load_dwordx2 {vr(b+6,2)}, v25, s[28:31], s43 offen offset:1536 sc1')
    def ck2(b, lab):
        p(f's_waitcnt vmcnt(4)\nv_max3_u32 v48, v{b}, v{b+1}, v{b+2}\nv_max3_u32 v48, v48, v{b+3}, v{b+4}\nv_max3_u32 v48, v48, v{b+5}, v{b+6}\nv_max_u32 v48, v48, v{b+7}\nv_cmp_eq_u32 vcc, -1, v48\ns_cbranch_vccz {lab}')
    if opt.get('hop2', 0):
        p(f's_mov_b32 s58, {SPIN}'); ld2(40); p('s_sleep 2\nT_poll2:')
        ld2(52); ck2(40, 'T_k0'); ld2(40); ck2(52, 'T_k1')
    else:
        p(f's_mov_b32 s58, {SPIN}\ns_sleep {opt.get("hopsl", 0)}\nT_poll2:'); ld2(40); p('s_waitcnt vmcnt(0)'); ck2(40, 'T_k0')
    p('s_sub_u32 s58, s58, 1\ns_cbranch_scc0 T_poll2')
    p('T_k1:\nv_add_f32 v60, v52, v54\nv_add_f32 v62, v56, v58\nv_add_f32 v61, v53, v55\nv_add_f32 v63, v57, v59\ns_branch T_k2')
    p('T_k0:\nv_add_f32 v60, v40, v42\nv_add_f32 v62, v44, v46\nv_add_f32 v61, v41, v43\nv_add_f32 v63, v45, v47\nT_k2:')
    p('v_lshlrev_b32 v48, 16, v7\nv_and_b32 v49, 0xffff0000, v7')
    p('v_add_f32 v60, v60, v62\nv_add_f32 v61, v61, v63\nv_add_f32 v60, v60, v48\nv_add_f32 v61, v61, v49\nv_cvt_pk_bf16_f32 v60, v60, v61')
    p('buffer_store_dword v60, v6, s[20:23], s44 offen')
    p('K_fin:')
    bodies = {}
    for gi, sfx in enumerate('ab'):
        for role in 'AB':
            pre, body = mkbody(plans[gi], sfx, role)
            lab = f'J_{role}{sfx}:'
            m = finalize(pre.L + [I(lab), I('s_waitcnt lgkmcnt(0)' if role == 'A' else 's_waitcnt vmcnt(0) lgkmcnt(0)'), I('s_add_u32 s38, s38, 1')] + body + ([I('s_branch T_red')] if sfx == 'a' else stampi('stored') + [I('s_branch K_fin')]))
            bodies[role+sfx] = m[[i.text for i in m].index(lab):]
    if stamps:
        p('s_waitcnt vmcnt(0)')
        p.ext(stampi('end'))
        n = len(stamps)
        order = [names.index(x) if x in names else 0 for x in stamps]
        if opt.get('dbg'):
            p('s_load_dwordx2 s[10:11], s[0:1], 80\ns_waitcnt lgkmcnt(0)')
            p(f's_and_b32 s50, s2, 0xf7\ns_add_u32 s50, s50, s39\ns_cmp_eq_u32 s50, {opt["dbg"] & 0xf7}\ns_cbranch_scc0 K_end\ns_and_b32 s50, s2, 8\ns_lshl_b32 s50, s50, 2\ns_mov_b64 exec, 1\nv_mov_b32 v1, s50')
            for i in range(n):
                p(f's_sub_u32 s51, s{SB(order[i])}, s{SB(order[0])}' if i else f's_and_b32 s51, s{SB(order[0])}, 0xffff')
                p(f'v_mov_b32 v2, s51\nglobal_store_dword v1, v2, s[10:11] offset:{4*i}\ns_nop 1')
        else:
            p('s_load_dwordx2 s[10:11], s[0:1], 88\ns_waitcnt lgkmcnt(0)')
            p(f's_add_u32 s10, s10, {STAMP_OFF}\ns_addc_u32 s11, s11, 0')
            p(f's_mul_i32 s50, s2, {8*n}\ns_mov_b64 exec, 1\nv_mov_b32 v1, s50')
            p(f's_cmp_eq_u32 s39, {opt.get("stwave", 0)}\ns_cbranch_scc0 K_end')
            for i in range(n):
                p(f'v_mov_b32 v2, s{SB(order[i])}\nv_mov_b32 v3, s{SB(order[i])+1}\nglobal_store_dwordx2 v1, v[2:3], s[10:11] offset:{8*i}\ns_nop 1')
        print('stamps', n, ','.join(stamps), file=sys.stderr)
    p('K_end:\ns_endpgm')
    return head0 + h_a + h_v + h_none + h_none2 + h_B + bodies['Ba'] + bodies['Aa'] + bodies['Bb'] + bodies['Ab'] + fintail(p.L) + finalize(slow.L) + [I('CODE_END:')]

BASE = {
    'lat_slots': (0, 1), 'uslot': 2,
    'start': [('F', 0), ('L', 0, 2), ('L', 1, 3), ('F', 1)],
    **{f'lat{k}': [('L', k+3, 2+(k+3) % 4)] for k in range(9)},
    'lat0': [('L', 2, 4), ('L', 3, 5)], 'lat3': [('F', 2), ('L', 6, 4)],
    'm1': [('X', 4, 0)], 'm2': [('X', 5, 2)], 'm3': [('X', 6, 3)],
    'm4': [('X', 7, 4), ('V', 0), ('W', 8, 1)], 'm5': [('V', 1), ('V', 2), ('W', 9, 5)], 'm6': [('V', 3), ('W', 10, 0)],
    'm7': [('V', 4)], 'm8': [('V', 5), ('V', 6), ('V', 7)], 'pjv': [('V', 11)],
}
E = {'lat8': [('L', 11, 5), ('POLL',)], 'lat9': [('X', 0, 2)], 'lat10': [('CHECK',), ('A', 0, 2)], 'epi': [('A', 2, 4), ('X', 1, 3)], 'm-1': [('X', 2, 4)], 'm0': [('X', 3, 5)]}
P1 = {**BASE, **E, 'lat10': [('CHECK',), ('TOUCHV',), ('A', 0, 2)], 'm6': [('V', 3), ('W', 10, 0), ('TOUCHO',)],
      'start': [('F', 0), ('L', 0, 2), ('L', 1, 3), ('L', 2, 4), ('F', 1)], 'lat0': [('L', 3, 5)], 'lat3': [('L', 6, 4), ('F', 2)]}
P2 = {**BASE, **E, 'lat0': [('GO', 96, 6), ('L', 2, 4), ('L', 3, 5)], 'lat1': [('GO', 97), ('L', 4, 2)], 'lat3': [('L', 6, 4), ('F', 2)],
      'start': [('F', 0), ('L', 0, 2), ('F', 1), ('L', 1, 3)], 'tsplit': (2, 3)}
PLAN = (P1, P2)

def build(fn, plan=PLAN, stamps=False, opt={}):
    hdr = open('standalone__detection_seg_mask2former__vision.s.ref').read().split('\n')
    hdr = [l for l in hdr if l.startswith(';') and '@launch' not in l and 'Override launch' not in l and 'grid=ceil' not in l]
    s = '\n'.join(hdr) + '\n'
    s += '; @launch grid=(256,1,1) block=(512,1,1) lds=163840\n'
    s += '.amdgcn_target "amdgcn-amd-amdhsa--gfx950"\n.text\n'
    s += f'.globl {KN}\n.p2align 8\n.type {KN},@function\n{KN}:\n'
    s += emit(gen(plan, stamps, opt)).replace('CODE_LIM', f'CODE_END-{KN}-8192-64')
    s += f'''.section .rodata,"a"
.p2align 6
.amdhsa_kernel {KN}
  .amdhsa_next_free_vgpr 256
  .amdhsa_next_free_sgpr 102
  .amdhsa_accum_offset {NV}
  .amdhsa_group_segment_fixed_size 0
  .amdhsa_kernarg_size 96
  .amdhsa_user_sgpr_count 2
  .amdhsa_user_sgpr_kernarg_segment_ptr 1
  .amdhsa_system_sgpr_workgroup_id_x 1
.end_amdhsa_kernel
'''
    open(fn, 'w').write(s)

ST = ['start', 'lat0', 'lat10', 'epi', 'm-1', 'm0', 'm2', 'm4', 'm7', 'm8', 'pj0', 'stored', 'fl1', 'acc', 'ctx', 'gemv', 'xpub', 'end']
if __name__ == '__main__':
    build('k5.s')
    build('k_st.s', stamps=ST)
```
